```python
import torch

def _softmax(x, axis=-1):
    return torch.softmax(x, dim=axis)
def _gelu(x):
    return torch.nn.functional.gelu(x, approximate="tanh")
def _silu(x):
    return torch.nn.functional.silu(x)
def _sigmoid(x):
    return torch.sigmoid(x)
def _layernorm(x, axis=-1, eps=1e-5):
    m = x.mean(dim=axis, keepdim=True)
    v = x.var(dim=axis, keepdim=True, unbiased=False)
    return (x - m) / torch.sqrt(v + eps)
def _scatter_add(tgt, idx, src, axis=0):
    return tgt.clone().index_add_(axis, idx, src)
def _segment_sum(src, seg, n):
    out = torch.zeros((n,) + src.shape[1:], dtype=src.dtype)
    return out.index_add_(0, seg, src)
def _pad(x, pw):
    flat = tuple(v for pair in reversed(pw) for v in pair)
    return torch.nn.functional.pad(x, flat)

kernel_name = 'parallel_sum__spectral_gfnet__glu_gated_swiglu__prompt'

def setup_inputs():

    _w = (lambda a: (lambda t: t.to(torch.bfloat16) if t.is_floating_point() else t)(torch.as_tensor(a)))
    def _A_setup():
        B, S, D = 1, 2048, 512
        Df = D // 2 + 1
        return {
            "x": _w((lambda *s: torch.randn(*s, dtype=torch.bfloat16) * 0.05)(B, S, D)),
            "w_r": _w((lambda *s: torch.randn(*s, dtype=torch.bfloat16) * 0.4)(S, Df) * 0.02),
            "w_i": _w((lambda *s: torch.randn(*s, dtype=torch.bfloat16) * 0.4)(S, Df) * 0.02),
        }
    _A_in = _A_setup()

    def _B_setup():
        B, S, D, F = 1, 2048, 512, 1792
        return {
            "x": _w((lambda *s: torch.randn(*s, dtype=torch.bfloat16) * 0.05)(B, S, D)),
            "w1": _w((lambda *s: torch.randn(*s, dtype=torch.bfloat16) * 0.2)(D, F) * (2.0 / D) ** 0.5),
            "w3": _w((lambda *s: torch.randn(*s, dtype=torch.bfloat16) * 0.2)(D, F) * (2.0 / D) ** 0.5),
            "w2": _w((lambda *s: torch.randn(*s, dtype=torch.bfloat16) * 0.2)(F, D) * (2.0 / F) ** 0.5),
        }
    _B_in = _B_setup()

    return {
        "A_x": _A_in["x"],
        "A_w_r": _A_in["w_r"],
        "A_w_i": _A_in["w_i"],
        "B_x": _B_in["x"],
        "B_w1": _B_in["w1"],
        "B_w3": _B_in["w3"],
        "B_w2": _B_in["w2"],
    }

def reference(A_x, A_w_r, A_w_i, B_x, B_w1, B_w3, B_w2):
    def _A_ref(x, w_r, w_i):
        B, S, D = x.shape
        X = (lambda x, axes=(-2,-1): torch.fft.rfft2(x.float(), dim=axes))(x, axes=(-2, -1))
        W = w_r + 1j * w_i
        X = X * W
        y = (lambda x, s, axes=(-2,-1): torch.fft.irfft2(x, s=s, dim=axes).to(torch.bfloat16))(X, (S, D), axes=(-2, -1))
        return y

    def _B_ref(x, w1, w3, w2):
        gate = torch.einsum("bsd,df->bsf", x, w1)
        up = torch.einsum("bsd,df->bsf", x, w3)
        h = _silu(gate) * up
        out = torch.einsum("bsf,fd->bsd", h, w2)
        return out

    x = A_x
    xn = _layernorm(x, axis=-1)
    return x + _A_ref(xn, A_w_r, A_w_i) + _B_ref(xn, B_w1, B_w3, B_w2)
```

```python
import re
REG = re.compile(r'^(-|\|)?([vas])(\d+|\[(\d+):(\d+)\])\|?$')
def regs_of(tok):
    tok = tok.strip()
    t = tok.lstrip('-')
    t = t.strip('|')
    m = re.match(r'^(?:abs\()?([vas])(?:(\d+)|\[(\d+):(\d+)\])\)?$', t)
    if m:
        f = m.group(1)
        if m.group(2) is not None: return [(f, int(m.group(2)))]
        return [(f, i) for i in range(int(m.group(3)), int(m.group(4)) + 1)]
    if t == 'vcc': return [('s', 106), ('s', 107)]
    if t == 'exec': return [('s', 126), ('s', 127)]
    if t == 'm0': return [('s', 124)]
    return []
TRANS = ('v_exp_f32', 'v_log_f32', 'v_rcp_f32', 'v_rsq_f32', 'v_sqrt_f32', 'v_sin_f32', 'v_cos_f32')
class Ins:
    def __init__(self, text):
        self.text = text
        t = text.split(';')[0].strip()
        self.op = t.split()[0] if t else ''
        rest = t[len(self.op):].strip()
        ops = [o.strip() for o in rest.split(',')] if rest else []
        self.mods = ''
        if ops:
            parts = ops[-1].split()
            ops[-1] = parts[0] if parts else ''
            self.mods = ' '.join(parts[1:])
        self.ops = ops
        op = self.op
        self.is_mfma = op.startswith('v_mfma')
        self.is_valu = op.startswith('v_') and not self.is_mfma
        self.is_ds = op.startswith('ds_')
        self.is_vmem = op.startswith('buffer_') or op.startswith('global_')
        self.is_salu = op.startswith('s_')
        self.is_trans = any(op.startswith(x) for x in TRANS)
        R = [regs_of(o) for o in ops]
        self.dst = []; self.src = []
        if self.is_mfma:
            self.dst = R[0]; self.srcA = R[1]; self.srcB = R[2]; self.srcC = R[3]; self.src = R[1] + R[2] + R[3]
            self.passes = 8 if '32x32' in op else 4
        elif self.is_valu:
            if op.startswith('v_cmp'):
                self.dst = R[0]; self.src = sum(R[1:], [])
            elif op.startswith('v_permlane') and 'swap' in op:
                self.dst = R[0] + R[1]; self.src = R[0] + R[1]
            elif op.startswith('v_add_co') or op.startswith('v_sub_co') or op.startswith('v_addc_co'):
                self.dst = R[0] + R[1]; self.src = sum(R[2:], [])
            elif op.startswith('v_readfirstlane') or op.startswith('v_readlane'):
                self.dst = R[0]; self.src = sum(R[1:], [])
            else:
                self.dst = R[0]; self.src = sum(R[1:], [])
                if op.startswith('v_fmac') or op.startswith('v_dot2c') or op.startswith('v_pk_fmac'): self.src += R[0]
                if op.startswith('v_cndmask') and len(ops) == 3: self.src += [('s', 106), ('s', 107)]
                if 'dpp' in op or 'row_' in self.mods or 'quad_perm' in self.mods: self.dpp = True
        elif self.is_ds:
            if op.startswith('ds_read') or op.startswith('ds_bpermute') or op.startswith('ds_swizzle'):
                self.dst = R[0]; self.src = sum(R[1:], [])
            else:
                self.src = sum(R, [])
        elif self.is_vmem:
            if 'load' in op and 'lds' not in self.mods.split() and 'load_lds' not in op:
                self.dst = R[0]; self.src = sum(R[1:], [])
            elif op.startswith('global_atomic') and 'sc0' in self.mods.split():
                self.dst = R[0]; self.src = sum(R[1:], [])
            else:
                self.src = sum(R, [])
            if 'lds' in self.mods.split() or 'load_lds' in op: self.src = self.src + [('s', 124)]
        elif self.is_salu:
            if op.startswith('s_cmp') or op.startswith('s_cbranch') or op.startswith('s_waitcnt') or op in ('s_barrier', 's_nop', 's_branch', 's_endpgm', 's_setprio', 's_sleep', 's_bitcmp1_b32', 's_bitcmp0_b32'):
                self.src = sum(R, [])
            else:
                self.dst = R[0] if R else []; self.src = sum(R[1:], [])
        self.dpp = getattr(self, 'dpp', False) or ('row_' in self.mods) or ('quad_perm' in self.mods)
    def states(self):
        if self.op == 's_nop': return int(self.ops[0], 0) + 1
        return 1
def check(lines, name=''):
    ins = []
    for l in lines:
        t = l.split(';')[0].strip()
        if not t or t.endswith(':') or t.startswith('.'): continue
        ins.append(Ins(l.strip()))
    probs = []
    def dist(i, j):
        return sum(ins[k].states() for k in range(i + 1, j))
    N = len(ins)
    W = 24
    for j in range(N):
        c = ins[j]
        acc = 0
        for i in range(j - 1, max(-1, j - W - 1), -1):
            p = ins[i]
            need = 0; why = ''
            pd = set(p.dst); cs = set(c.src); cd = set(c.dst)
            vd = {r for r in pd if r[0] in 'va'}; sd = {r for r in pd if r[0] == 's'}
            if p.is_valu and not p.is_mfma:
                if c.is_mfma and vd & cs: need, why = 2, 'VALU->MFMA operand'
                if c.dpp and vd & cs: need, why = max(need, 2), 'VALU->DPP'
                if (c.op.startswith('v_readfirstlane') or c.op.startswith('v_readlane')) and vd & cs: need, why = max(need, 1), 'VALU->readlane'
                if c.op.startswith('v_permlane') and vd & cs: need, why = max(need, 2), 'VALU->permlane'
                if p.is_trans and c.is_valu and not c.is_trans and vd & cs: need, why = max(need, 1), 'trans->use'
                if p.is_trans and (c.is_valu or c.is_mfma) and vd & cs and need < 1: need, why = 1, 'trans->use'
                if sd and c.is_vmem and sd & cs: need, why = max(need, 5), 'VALU sgpr->VMEM'
                if sd and c.is_valu and sd & cs: need, why = max(need, 2), 'VALU sgpr->VALU const'
                if sd and (c.op.startswith('v_readlane') or c.op.startswith('v_writelane')) and sd & cs: need, why = max(need, 4), 'VALU sgpr->lanesel'
                if ('s', 126) in sd and (c.is_mfma): need, why = max(need, 4), 'VALU exec->MFMA'
                if ('s', 126) in sd and c.dpp: need, why = max(need, 5), 'VALU exec->DPP'
            if p.is_mfma:
                n = p.passes
                full = {8: 12, 4: 8}[n]; ovl = {8: 10, 4: 6}[n]; war = {8: 7, 4: 3}[n]
                if c.is_mfma:
                    if vd & (set(c.srcA) | set(c.srcB)): need, why = full, 'MFMA D->MFMA A/B'
                    elif vd & set(c.srcC):
                        if not (p.dst == c.srcC and p.passes == c.passes): need, why = ovl, 'MFMA D->MFMA C overlap'
                elif (c.is_valu or c.is_vmem or c.is_ds):
                    if vd & cs: need, why = full, 'MFMA D->read'
                    if vd & cd: need, why = full, 'MFMA D->WAW'
                    if c.is_valu and set(p.srcC) & cd: need, why = max(need, war), 'MFMA C WAR'
            if p.is_salu and ('s', 124) in sd and (c.is_vmem and ('s', 124) in cs): need, why = 1, 'm0->lds dma'
            if p.is_vmem and 'store' in p.op and ('x4' in p.op or 'x3' in p.op) and c.is_valu:
                data = set(p.src[:4]) if p.op.startswith('buffer') else set()
                if p.op.startswith('global'): data = set(regs_of(p.ops[1]))
                if data & cd: need, why = max(need, 2), 'store data WAR'
            if need > acc:
                probs.append(f"{name}: need {need} have {acc} [{why}]\n    P: {p.text}\n    C: {c.text}")
            acc += p.states()
            if acc >= 20: break
    return probs
class K:
    def __init__(self):
        self.l = []
    def __call__(self, s):
        for line in s.split('\n'):
            if line.strip(): self.l.append('    ' + line.strip() if not line.strip().endswith(':') else line.strip())
    def label(self, n): self.l.append(n + ':')
    def nop(self, n):
        while n > 0:
            k = min(n, 16); self(f's_nop {k-1}'); n -= k
    def text(self): return '\n'.join(self.l) + '\n'
def vr(a, n=1): return f'v{a}' if n == 1 else f'v[{a}:{a+n-1}]'
def ar(a, n=1): return f'a{a}' if n == 1 else f'a[{a}:{a+n-1}]'
def sr(a, n=1): return f's{a}' if n == 1 else f's[{a}:{a+n-1}]'
```

```python
from asmgen import *
from tables import TAB_F, TAB_G, TAB_E64, TAB_E32, TAB_TW, TAB_END
KA_X, KA_WR, KA_WI, KA_W1, KA_W3, KA_W2, KA_OUT, KA_DBG, KA_WS = 0, 8, 16, 32, 40, 48, 56, 64, 72
WS_XN = 0x0000000
WS_WT = 0x0200000
WS_U  = 0x0400000
WS_V  = 0x0600000
WS_H  = 0x0800000
WS_ST = 0x0F00000
WS_CS = 0x0F10000
WS_FL = 0x0F80000
WS_SIZE = 0x1000000
S_X, S_W1, S_W3, S_W2, S_WS, S_OUT, S_TAB, S_WR, S_WI = 4, 8, 12, 16, 20, 24, 28, 32, 36
SIZES = {S_X: 2048*512*2, S_W1: 512*1792*2, S_W3: 512*1792*2, S_W2: 1792*512*2, S_WS: WS_SIZE, S_OUT: 2048*512*2, S_WR: 2048*257*2, S_WI: 2048*257*2}
KAOFF = {S_X: KA_X, S_W1: KA_W1, S_W3: KA_W3, S_W2: KA_W2, S_WS: KA_WS, S_OUT: KA_OUT, S_WR: KA_WR, S_WI: KA_WI}
def load_srds(k, which, tab=False):
    for s in which:
        k(f's_load_dwordx2 s[{s}:{s+1}], s[0:1], {KAOFF[s]}')
    if tab:
        k(f's_getpc_b64 s[{S_TAB}:{S_TAB+1}]')
        k(f's_add_u32 s{S_TAB}, s{S_TAB}, TABS@rel32@lo+4')
        k(f's_addc_u32 s{S_TAB+1}, s{S_TAB+1}, TABS@rel32@hi+12')
        k(f's_mov_b32 s{S_TAB+2}, {TAB_END}')
        k(f's_mov_b32 s{S_TAB+3}, 0x20000')
    for s in which:
        k(f's_mov_b32 s{s+2}, {SIZES[s]}')
        k(f's_mov_b32 s{s+3}, 0x20000')
    k('s_waitcnt lgkmcnt(0)')
class VM:
    def __init__(self, k): self.k = k; self.q = []
    def issue(self, text, tag):
        self.k(text); self.q.append(tag)
    def wait(self, tag, extra=''):
        idx = [i for i, t in enumerate(self.q) if t == tag]
        if not idx: return False
        n = len(self.q) - 1 - idx[-1]
        assert n <= 63, n
        self.k(f's_waitcnt vmcnt({n})' + extra)
        self.q = self.q[idx[-1]+1:]
        return True
    def drain(self):
        self.k('s_waitcnt vmcnt(0)'); self.q = []
def kernel_header(name):
    return f""".text
.globl {name}
.p2align 8
.type {name},@function
{name}:
"""
def kernel_desc(name, vgpr, sgpr=96, accum=None):
    if accum is None: accum = min(256, (vgpr + 3)//4*4)
    return f""".section .rodata,"a"
.p2align 6
.amdhsa_kernel {name}
  .amdhsa_next_free_vgpr {vgpr}
  .amdhsa_next_free_sgpr {sgpr}
  .amdhsa_accum_offset {accum}
  .amdhsa_group_segment_fixed_size 0
  .amdhsa_kernarg_size 80
  .amdhsa_user_sgpr_count 2
  .amdhsa_user_sgpr_kernarg_segment_ptr 1
  .amdhsa_system_sgpr_workgroup_id_x 1
  .amdhsa_float_denorm_mode_32 3
.end_amdhsa_kernel
.text
"""
def wave_allreduce_add(k, v, t):
    for r in (8, 4, 2, 1):
        k(f's_nop 1')
        k(f'v_add_f32_dpp v{v}, v{v}, v{v} row_ror:{r} row_mask:0xf bank_mask:0xf')
    k(f'v_mov_b32 v{t}, v{v}')
    k('s_nop 1')
    k(f'v_permlane16_swap_b32 v{v}, v{t}')
    k('s_nop 1')
    k(f'v_add_f32 v{v}, v{v}, v{t}')
    k(f'v_mov_b32 v{t}, v{v}')
    k('s_nop 1')
    k(f'v_permlane32_swap_b32 v{v}, v{t}')
    k('s_nop 1')
    k(f'v_add_f32 v{v}, v{v}, v{t}')
def bf16_round(k, dst, src):
    k(f'v_cvt_pk_bf16_f32 v{dst}, v{src}, v{src}')
    k(f'v_and_b32 v{dst}, 0xffff0000, v{dst}')
```

```python
from common import *
DEPTH = 5
RING = 6
DR = 8
TR = DR + 8*RING
ACC = TR + 16
V_L, V_DW, V_DV, V_DH, V_TW0, V_TW1, V_TV0, V_TV1 = 1, 2, 3, 4, 5, 6, 7, 0
XR = ACC + 64
V_RA, V_OO, V_T0, V_T1 = XR + 4, XR + 5, XR + 6, XR + 7
RD = XR + 8
G2_VGPR = RD + 24
L_RING = 0
RED_STRIDE = 1056
RED_W = 16*RED_STRIDE
G2_LDS = 8*RED_W
S_WV, S_RB, S_G, S_CB2 = 40, 41, 42, 43
S_HB, S_W2B, S_VB, S_GB, S_LB, S_TMP = 44, 45, 46, 47, 48, 56
def gen_g2_body(k, xsrd, sc='', gtab=True):
    vm = VM(k)
    L, T0, T1 = V_L, V_T0, V_T1
    k(f'v_and_b32 v{L}, 63, v0')
    k(f'v_lshrrev_b32 v{T0}, 6, v0'); k('s_nop 0'); k(f'v_readfirstlane_b32 s{S_WV}, v{T0}')
    k(f's_and_b32 s{S_TMP}, s2, 7'); k(f's_lshr_b32 s{S_TMP+1}, s2, 3')
    k(f's_lshl_b32 s{S_TMP}, s{S_TMP}, 2'); k(f's_and_b32 s{S_TMP+2}, s{S_TMP+1}, 3'); k(f's_add_u32 s{S_TMP}, s{S_TMP}, s{S_TMP+2}')
    k(f's_lshr_b32 s{S_CB2}, s{S_TMP+1}, 2')
    k(f's_lshr_b32 s{S_RB}, s{S_TMP}, 1'); k(f's_and_b32 s{S_G}, s{S_TMP}, 1')
    k(f'v_lshlrev_b32 v{V_DH}, 4, v{L}')
    k(f's_lshl_b32 s{S_TMP}, s{S_RB}, 2'); k(f's_lshl_b32 s{S_TMP+1}, s{S_G}, 1'); k(f's_add_u32 s{S_TMP}, s{S_TMP}, s{S_TMP+1}')
    k(f's_mul_i32 s{S_TMP}, s{S_TMP}, 112'); k(f's_mul_i32 s{S_TMP+1}, s{S_WV}, 14'); k(f's_add_u32 s{S_TMP}, s{S_TMP}, s{S_TMP+1}')
    k(f's_lshl_b32 s{S_HB}, s{S_TMP}, 10'); k(f's_add_u32 s{S_HB}, s{S_HB}, {WS_H}')
    k(f'v_lshrrev_b32 v{T0}, 3, v{L}'); k(f'v_lshlrev_b32 v{V_DW}, 10, v{T0}')
    k(f'v_bfe_u32 v{T0}, v{L}, 4, 1'); k(f'v_bfe_u32 v{T1}, v{L}, 2, 1'); k(f'v_xor_b32 v{T0}, v{T0}, v{T1}')
    k(f'v_lshl_add_u32 v{V_DW}, v{T0}, 6, v{V_DW}')
    k(f'v_and_b32 v{T0}, 3, v{L}'); k(f'v_lshl_add_u32 v{V_DW}, v{T0}, 4, v{V_DW}')
    k(f's_mul_i32 s{S_W2B}, s{S_WV}, {14*16*1024}'); k(f's_lshl_b32 s{S_TMP}, s{S_CB2}, 7'); k(f's_add_u32 s{S_W2B}, s{S_W2B}, s{S_TMP}')
    k(f'v_lshrrev_b32 v{T0}, 4, v{L}'); k(f'v_lshlrev_b32 v{V_DV}, 13, v{T0}')
    k(f'v_and_b32 v{T0}, 1, v{T0}'); k(f'v_lshlrev_b32 v{T0}, 3, v{T0}'); k(f'v_and_b32 v{T1}, 15, v{L}'); k(f'v_xor_b32 v{T0}, v{T0}, v{T1}')
    k(f'v_lshl_add_u32 v{V_DV}, v{T0}, 4, v{V_DV}')
    k(f's_lshl_b32 s{S_VB}, s{S_WV}, 18'); k(f's_lshl_b32 s{S_TMP}, s{S_RB}, 9'); k(f's_add_u32 s{S_VB}, s{S_VB}, s{S_TMP}')
    k(f's_lshl_b32 s{S_TMP}, s{S_G}, 8'); k(f's_add_u32 s{S_VB}, s{S_VB}, s{S_TMP}'); k(f's_add_u32 s{S_VB}, s{S_VB}, {WS_V}')
    k(f's_lshl_b32 s{S_GB}, s{S_CB2}, 16'); k(f's_lshl_b32 s{S_TMP}, s{S_WV}, 13'); k(f's_add_u32 s{S_GB}, s{S_GB}, s{S_TMP}'); k(f's_add_u32 s{S_GB}, s{S_GB}, {TAB_G}')
    k(f's_mul_i32 s{S_LB}, s{S_WV}, {RING*2048}'); k(f's_add_u32 s{S_LB}, s{S_LB}, {L_RING}')
    k(f'v_lshrrev_b32 v{T0}, 5, v{L}'); k(f'v_lshlrev_b32 v{V_TW0}, 9, v{T0}')
    k(f'v_bfe_u32 v{T0}, v{L}, 2, 2'); k(f'v_lshl_add_u32 v{V_TW0}, v{T0}, 7, v{V_TW0}')
    k(f'v_bfe_u32 v{T0}, v{L}, 3, 1'); k(f'v_lshl_add_u32 v{V_TW0}, v{T0}, 6, v{V_TW0}')
    k(f'v_bfe_u32 v{T0}, v{L}, 4, 1'); k(f'v_lshl_add_u32 v{V_TW0}, v{T0}, 5, v{V_TW0}')
    k(f'v_and_b32 v{T0}, 3, v{L}'); k(f'v_lshl_add_u32 v{V_TW0}, v{T0}, 3, v{V_TW0}')
    k(f'v_add_u32 v{V_TW0}, s{S_LB}, v{V_TW0}'); k(f'v_xor_b32 v{V_TW1}, 64, v{V_TW0}')
    k(f'v_lshrrev_b32 v{T0}, 5, v{L}'); k(f'v_lshlrev_b32 v{V_TV0}, 10, v{T0}')
    k(f'v_bfe_u32 v{T0}, v{L}, 3, 1'); k(f'v_lshl_add_u32 v{V_TV0}, v{T0}, 8, v{V_TV0}')
    k(f'v_lshl_add_u32 v{V_TV0}, v{T0}, 7, v{V_TV0}')
    k(f'v_bfe_u32 v{T0}, v{L}, 4, 1'); k(f'v_lshl_add_u32 v{V_TV0}, v{T0}, 6, v{V_TV0}')
    k(f'v_and_b32 v{T0}, 3, v{L}'); k(f'v_lshl_add_u32 v{V_TV0}, v{T0}, 4, v{V_TV0}')
    k(f'v_bfe_u32 v{T0}, v{L}, 2, 1'); k(f'v_lshl_add_u32 v{V_TV0}, v{T0}, 3, v{V_TV0}')
    k(f'v_add_u32 v{V_TV0}, s{S_LB}, v{V_TV0}')
    k(f's_lshr_b32 s{S_TMP}, s{S_WV}, 2'); k(f's_and_b32 s{S_TMP+1}, s{S_WV}, 3'); k(f's_lshl_b32 s{S_TMP+1}, s{S_TMP+1}, 3')
    k(f'v_lshrrev_b32 v{T0}, 3, v{L}'); k(f'v_add_u32 v{T0}, s{S_TMP+1}, v{T0}')
    k(f'v_and_b32 v{T1}, 7, v{L}')
    k(f'v_mul_u32_u24 v{V_RA}, {RED_STRIDE}, v{T1}'); k(f'v_lshl_add_u32 v{V_RA}, v{T0}, 4, v{V_RA}')
    k(f's_mul_i32 s{S_TMP+2}, s{S_TMP}, {8*RED_STRIDE}'); k(f'v_add_u32 v{V_RA}, s{S_TMP+2}, v{V_RA}')
    k(f'v_lshlrev_b32 v{V_OO}, 4, v{T1}')
    k(f'v_and_b32 v{T1}, 3, v{T0}'); k(f'v_lshl_add_u32 v{V_OO}, v{T1}, 15, v{V_OO}')
    k(f'v_lshrrev_b32 v{T1}, 3, v{T0}'); k(f'v_lshl_add_u32 v{V_OO}, v{T1}, 11, v{V_OO}')
    k(f'v_bfe_u32 v{T1}, v{T0}, 2, 1'); k(f'v_lshl_add_u32 v{V_OO}, v{T1}, 10, v{V_OO}')
    k(f's_lshl_b32 s{S_TMP+2}, s{S_G}, 1'); k(f's_add_u32 s{S_TMP+2}, s{S_TMP+2}, s{S_TMP}'); k(f's_lshl_b32 s{S_TMP+2}, s{S_TMP+2}, 13')
    k(f's_lshl_b32 s{S_TMP+3}, s{S_RB}, 17'); k(f's_add_u32 s{S_TMP+2}, s{S_TMP+2}, s{S_TMP+3}')
    k(f's_lshl_b32 s{S_TMP+3}, s{S_CB2}, 7'); k(f's_add_u32 s{S_TMP+2}, s{S_TMP+2}, s{S_TMP+3}')
    k(f'v_add_u32 v{V_OO}, s{S_TMP+2}, v{V_OO}')
    k(f'v_xor_b32 v{V_TV1}, 128, v{V_TV0}')
    vm.issue(f'buffer_load_dwordx4 v[{XR}:{XR+3}], v{V_OO}, s[{xsrd}:{xsrd+3}], 0 offen', 'x')
    NS = 18
    def issue(n):
        slot = n % RING
        d = DR + 8*slot
        if n < 14:
            for e in range(2):
                k(f's_add_u32 s{S_TMP}, s{S_HB}, {n*1024 + e*112*1024}')
                vm.issue(f'buffer_load_dwordx4 v[{d+4*e}:{d+4*e+3}], v{V_DH}, s[{S_WS}:{S_WS+3}], s{S_TMP} offen {sc}', ('s', n))
            for e in range(2):
                k(f's_add_u32 m0, s{S_LB}, {slot*2048 + e*1024}')
                k(f's_add_u32 s{S_TMP}, s{S_W2B}, {(16*n + 8*e)*1024}')
                vm.issue(f'buffer_load_dwordx4 v{V_DW}, s[{S_W2}:{S_W2+3}], s{S_TMP} offen lds', ('s', n))
        else:
            c = n - 14
            for e in range(2):
                k(f's_add_u32 s{S_TMP}, s{S_GB}, {c*2048 + e*1024}')
                vm.issue(f'buffer_load_dwordx4 v[{d+4*e}:{d+4*e+3}], v{V_DH}, s[{S_TAB}:{S_TAB+3}], s{S_TMP} offen', ('s', n))
            for e in range(2):
                k(f's_add_u32 m0, s{S_LB}, {slot*2048 + e*1024}')
                k(f's_add_u32 s{S_TMP}, s{S_VB}, {(8*c + 4*e)*8192}')
                vm.issue(f'buffer_load_dwordx4 v{V_DV}, s[{S_WS}:{S_WS+3}], s{S_TMP} offen {sc} lds', ('s', n))
    def reads(n):
        slot = n % RING; par = n & 1
        b = TR + 8*par
        for t in range(2):
            va = (V_TW0, V_TW1)[t] if n < 14 else (V_TV0, V_TV1)[t]
            for part in range(2):
                off = slot*2048 + (part*8*128 if n < 14 else part*2*256)
                k(f'ds_read_b64_tr_b16 v[{b+4*t+2*part}:{b+4*t+2*part+1}], v{va} offset:{off}')
    for n in range(DEPTH): issue(n)
    vm.wait(('s', 0)); reads(0)
    for n in range(NS):
        if n + 1 < NS:
            vm.wait(('s', n + 1)); reads(n + 1)
            k('s_waitcnt lgkmcnt(4)')
        else:
            k('s_waitcnt lgkmcnt(0)')
        d = DR + 8*(n % RING); b = TR + 8*(n & 1)
        for e in range(2):
            for ct in range(2):
                a_ = f'v[{ACC+16*(2*e+ct)}:{ACC+16*(2*e+ct)+15}]'
                c_ = '0' if n == 0 else a_
                if n < 14: A, B = b + 4*ct, d + 4*e
                else: A, B = d + 4*ct, b + 4*e
                k(f'v_mfma_f32_32x32x16_bf16 {a_}, v[{A}:{A+3}], v[{B}:{B+3}], {c_}')
        if n + DEPTH < NS: issue(n + DEPTH)
    k('s_barrier')
    k(f's_mul_i32 s{S_TMP}, s{S_WV}, {RED_W}'); k(f'v_lshl_add_u32 v{T0}, v{L}, 4, s{S_TMP}')
    k.nop(8)
    for e in range(2):
        for ct in range(2):
            for q in range(4):
                r = ACC + 16*(2*e+ct) + 4*q
                k(f'ds_write_b128 v{T0}, v[{r}:{r+3}] offset:{((e*2+ct)*4+q)*RED_STRIDE}')
    k('s_waitcnt lgkmcnt(0)'); k('s_barrier')
    S = ACC
    for w in range(8):
        r = ACC + 8*w
        if w == 4: k(f'v_add_u32 v{V_RA}, {4*RED_W}, v{V_RA}')
        k(f'ds_read_b128 v[{r}:{r+3}], v{V_RA} offset:{(w&3)*RED_W}')
        k(f'ds_read_b128 v[{r+4}:{r+7}], v{V_RA} offset:{(w&3)*RED_W + 512}')
    for w in range(1, 8):
        k(f's_waitcnt lgkmcnt({2*(7-w)})')
        for i in range(8): k(f'v_add_f32 v{S+i}, v{S+i}, v{ACC+8*w+i}')
    vm.wait('x')
    for i in range(4):
        k(f'v_lshlrev_b32 v{T0}, 16, v{XR+i}'); k(f'v_and_b32 v{T1}, 0xffff0000, v{XR+i}')
        k(f'v_add_f32 v{S+2*i}, v{S+2*i}, v{T0}'); k(f'v_add_f32 v{S+2*i+1}, v{S+2*i+1}, v{T1}')
        k(f'v_cvt_pk_bf16_f32 v{XR+i}, v{S+2*i}, v{S+2*i+1}')
    vm.issue(f'buffer_store_dwordx4 v[{XR}:{XR+3}], v{V_OO}, s[{S_OUT}:{S_OUT+3}], 0 offen', 'o')
    return vm
def gen_g2(name):
    k = K()
    k('s_cmp_ge_u32 s2, 256'); k(f's_cbranch_scc1 L_{name}_end')
    load_srds(k, [S_X, S_W2, S_WS, S_OUT], tab=True)
    gen_g2_body(k, S_X)
    k.label(f'L_{name}_end'); k('s_endpgm')
    return k
if __name__ == '__main__':
    k = gen_g2('g2_kernel')
    p = check(k.l, 'g2')
    print('\n'.join(p[:12]) if p else 'no hazards'); print(len(k.l), G2_VGPR, G2_LDS)
```

```python
from common import *
XF = 128
ACC = [64, 96]
AF = 32
V_XA = 4
V_WA = 8
V_FA = 10
V_XD = 11
V_W1D, V_W3D, V_FD = 13, 14, 15
V_C1, V_C2 = 16, 17
V_HO, V_UTW, V_UTR, V_UO = 18, 19, 20, 21
V_LANE, V_T0, V_T1, V_T2 = 1, 2, 3, 22
ET = 48
L_X = 0x0000
L_W = 0x10000
L_UT = 0x0000
P1_LDS = 0x20000
S_WV, S_NT, S_CH, S_RB, S_CB, S_G = 40, 41, 42, 43, 44, 45
S_XO, S_WO0, S_WO1, S_FO, S_HO, S_UO = 46, 47, 48, 49, 50, 51
S_MX, S_MW1, S_MW3, S_MF = 52, 53, 54, 55
S_TMP = 56
def p1_setup(k, xsrd, xbase):
    k(f'v_and_b32 v{V_LANE}, 63, v0')
    k(f'v_lshrrev_b32 v{V_T0}, 6, v0'); k('s_nop 0')
    k(f'v_readfirstlane_b32 s{S_WV}, v{V_T0}')
    k(f's_and_b32 s{S_NT}, s{S_WV}, 3'); k(f's_lshr_b32 s{S_CH}, s{S_WV}, 2')
    k(f's_and_b32 s{S_TMP}, s2, 7'); k(f's_lshr_b32 s{S_TMP+1}, s2, 3')
    k(f's_and_b32 s{S_RB}, s{S_TMP}, 1'); k(f's_lshl_b32 s{S_RB}, s{S_RB}, 3')
    k(f's_and_b32 s{S_TMP+2}, s{S_TMP+1}, 7'); k(f's_add_u32 s{S_RB}, s{S_RB}, s{S_TMP+2}')
    k(f's_lshr_b32 s{S_G}, s{S_TMP}, 1')
    k(f's_lshr_b32 s{S_TMP+2}, s{S_TMP+1}, 3')
    k(f's_mul_i32 s{S_CB}, s{S_G}, 3'); k(f's_add_u32 s{S_CB}, s{S_CB}, s{S_TMP+2}')
    k(f's_add_u32 s{S_TMP+3}, s{S_G}, 12')
    k(f's_cmp_eq_u32 s{S_TMP+2}, 3'); k(f's_cselect_b32 s{S_CB}, s{S_TMP+3}, s{S_CB}')
    L, T0, T1, T2 = V_LANE, V_T0, V_T1, V_T2
    k(f'v_and_b32 v{T0}, 31, v{L}')
    k(f'v_lshrrev_b32 v{T1}, 5, v{L}')
    k(f'v_bfe_u32 v{T2}, v{T0}, 1, 3')
    k(f'v_xor_b32 v{T1}, v{T1}, v{T2}'); k(f'v_lshlrev_b32 v{T1}, 4, v{T1}')
    k(f's_lshl_b32 s{S_TMP}, s{S_NT}, 12')
    k(f'v_lshl_add_u32 v{T0}, v{T0}, 7, s{S_TMP}')
    for ks in range(4):
        k(f'v_xor_b32 v{V_XA+ks}, {ks*32}, v{T1}'); k(f'v_add_u32 v{V_XA+ks}, v{V_XA+ks}, v{T0}')
    k(f'v_bfe_u32 v{T0}, v{L}, 4, 1')
    k(f'v_bfe_u32 v{T1}, v{L}, 2, 2')
    k(f'v_lshrrev_b32 v{T2}, 1, v{T1}'); k(f'v_lshl_or_b32 v{T2}, v{T0}, 1, v{T2}')
    k(f'v_lshlrev_b32 v{T0}, 13, v{T0}')
    k(f'v_lshl_add_u32 v{T0}, v{T1}, 7, v{T0}')
    k(f'v_lshrrev_b32 v{T1}, 5, v{L}'); k(f'v_lshl_add_u32 v{T0}, v{T1}, 10, v{T0}')
    k(f'v_and_b32 v{T1}, 3, v{L}'); k(f'v_lshl_add_u32 v{T0}, v{T1}, 3, v{T0}')
    k(f'v_add_u32 v{T0}, {L_W}, v{T0}')
    k(f's_lshl_b32 s{S_TMP}, s{S_CH}, 1')
    for t in range(2):
        k(f's_add_u32 s{S_TMP+1}, s{S_TMP}, {t}')
        k(f'v_xor_b32 v{T1}, s{S_TMP+1}, v{T2}'); k(f'v_lshl_add_u32 v{V_WA+t}, v{T1}, 5, v{T0}')
    k(f's_lshl_b32 s{S_TMP}, s{S_CH}, 11'); k(f's_add_u32 s{S_TMP}, s{S_TMP}, {L_W}')
    k(f'v_lshl_add_u32 v{V_FA}, v{L}, 4, s{S_TMP}')
    for e in range(2):
        k(f's_lshl_b32 s{S_TMP}, s{S_WV}, 4'); k(f's_add_u32 s{S_TMP}, s{S_TMP}, {8*e}')
        k(f'v_lshrrev_b32 v{T0}, 3, v{L}'); k(f'v_add_u32 v{T0}, s{S_TMP}, v{T0}')
        k(f'v_bfe_u32 v{T1}, v{T0}, 1, 3'); k(f'v_and_b32 v{T2}, 7, v{L}'); k(f'v_xor_b32 v{T1}, v{T1}, v{T2}')
        k(f'v_lshlrev_b32 v{V_XD+e}, 4, v{T1}')
        k(f'v_and_b32 v{T1}, 3, v{T0}'); k(f'v_lshl_add_u32 v{V_XD+e}, v{T1}, 15, v{V_XD+e}')
        k(f'v_lshrrev_b32 v{T1}, 5, v{T0}'); k(f'v_lshl_add_u32 v{V_XD+e}, v{T1}, 13, v{V_XD+e}')
        k(f'v_bfe_u32 v{T1}, v{T0}, 3, 2'); k(f'v_lshl_add_u32 v{V_XD+e}, v{T1}, 11, v{V_XD+e}')
        k(f'v_bfe_u32 v{T1}, v{T0}, 2, 1'); k(f'v_lshl_add_u32 v{V_XD+e}, v{T1}, 10, v{V_XD+e}')
    k(f's_lshl_b32 s{S_TMP}, s{S_WV}, 3')
    k(f'v_lshrrev_b32 v{T0}, 3, v{L}'); k(f'v_add_u32 v{T0}, s{S_TMP}, v{T0}')
    k(f'v_bfe_u32 v{T1}, v{T0}, 1, 1')
    k(f'v_bfe_u32 v{T2}, v{L}, 1, 2'); k(f'v_xor_b32 v{T1}, v{T1}, v{T2}')
    k(f'v_mul_u32_u24 v{T0}, 3584, v{T0}')
    k(f'v_and_b32 v{T2}, 1, v{L}'); k(f'v_lshl_add_u32 v{T0}, v{T2}, 4, v{T0}')
    k(f'v_lshl_add_u32 v{V_W1D}, v{T1}, 5, v{T0}')
    k(f'v_xor_b32 v{T1}, 2, v{T1}'); k(f'v_lshl_add_u32 v{V_W3D}, v{T1}, 5, v{T0}')
    k(f's_lshl_b32 s{S_TMP}, s{S_WV}, 11'); k(f'v_lshl_add_u32 v{V_FD}, v{L}, 4, s{S_TMP}')
    k(f's_lshl_b32 s{S_XO}, s{S_RB}, 17'); k(f's_add_u32 s{S_XO}, s{S_XO}, {xbase}')
    k(f's_lshl_b32 s{S_WO0}, s{S_CB}, 8')
    k(f's_add_u32 s{S_WO1}, s{S_WO0}, 128')
    k(f's_lshl_b32 s{S_TMP}, s{S_G}, 7'); k(f's_add_u32 s{S_TMP}, s{S_TMP}, {1536*2}')
    k(f's_cmp_ge_u32 s{S_CB}, 12'); k(f's_cselect_b32 s{S_WO1}, s{S_TMP}, s{S_WO1}')
    k(f's_lshl_b32 s{S_FO}, s{S_G}, 17'); k(f's_add_u32 s{S_FO}, s{S_FO}, {TAB_F}')
    k(f's_lshl_b32 s{S_MX}, s{S_WV}, 11'); k(f's_add_u32 s{S_MX}, s{S_MX}, {L_X}')
    k(f's_lshl_b32 s{S_MW1}, s{S_WV}, 10'); k(f's_add_u32 s{S_MW1}, s{S_MW1}, {L_W}')
    k(f's_add_u32 s{S_MW3}, s{S_MW1}, 8192')
    k(f's_lshl_b32 s{S_MF}, s{S_WV}, 11'); k(f's_add_u32 s{S_MF}, s{S_MF}, {L_W}')
    k(f's_mul_i32 s{S_TMP}, s{S_NT}, {112*1024}'); k(f'v_lshl_add_u32 v{V_HO}, v{L}, 4, s{S_TMP}')
    k(f's_mul_i32 s{S_HO}, s{S_RB}, {4*112*1024}'); k(f's_add_u32 s{S_HO}, s{S_HO}, {WS_H}')
    k(f's_lshl_b32 s{S_TMP}, s{S_CB}, 3'); k(f's_lshl_b32 s{S_TMP+1}, s{S_G}, 2'); k(f's_add_u32 s{S_TMP+1}, s{S_TMP+1}, 92')
    k(f's_cmp_ge_u32 s{S_CB}, 12'); k(f's_cselect_b32 s{S_TMP}, s{S_TMP+1}, s{S_TMP}')
    k(f's_lshl_b32 s{S_TMP+1}, s{S_CH}, 1'); k(f's_add_u32 s{S_TMP}, s{S_TMP}, s{S_TMP+1}')
    k(f's_lshl_b32 s{S_TMP}, s{S_TMP}, 10'); k(f's_add_u32 s{S_HO}, s{S_HO}, s{S_TMP}')
    k(f'v_and_b32 v{T0}, 15, v{L}'); k(f'v_mul_u32_u24 v{T0}, 528, v{T0}')
    k(f'v_bfe_u32 v{T1}, v{L}, 4, 1'); k(f'v_lshl_add_u32 v{T0}, v{T1}, 3, v{T0}')
    k(f'v_lshrrev_b32 v{T1}, 5, v{L}'); k(f'v_lshl_add_u32 v{T0}, v{T1}, 4, v{T0}')
    k(f's_mul_i32 s{S_TMP}, s{S_CH}, {32*528}'); k(f's_lshl_b32 s{S_TMP+1}, s{S_NT}, 7'); k(f's_add_u32 s{S_TMP}, s{S_TMP}, s{S_TMP+1}')
    k(f's_add_u32 s{S_TMP}, s{S_TMP}, {L_UT}'); k(f'v_add_u32 v{V_UTW}, s{S_TMP}, v{T0}')
    k(f'v_lshrrev_b32 v{T0}, 5, v{L}'); k(f'v_mul_u32_u24 v{T0}, 528, v{T0}')
    k(f'v_and_b32 v{T1}, 31, v{L}'); k(f'v_lshl_add_u32 v{T0}, v{T1}, 4, v{T0}')
    k(f's_mul_i32 s{S_TMP}, s{S_WV}, {8*528}'); k(f's_add_u32 s{S_TMP}, s{S_TMP}, {L_UT}'); k(f'v_add_u32 v{V_UTR}, s{S_TMP}, v{T0}')
    k(f'v_lshrrev_b32 v{T0}, 5, v{L}'); k(f'v_lshlrev_b32 v{T0}, 13, v{T0}'); k(f'v_lshl_add_u32 v{T0}, v{T1}, 4, v{T0}')
    k(f's_lshl_b32 s{S_TMP}, s{S_WV}, 16'); k(f'v_add_u32 v{V_UO}, s{S_TMP}, v{T0}')
    k(f's_lshl_b32 s{S_UO}, s{S_G}, 19'); k(f's_lshl_b32 s{S_TMP}, s{S_RB}, 9'); k(f's_add_u32 s{S_UO}, s{S_UO}, s{S_TMP}'); k(f's_add_u32 s{S_UO}, s{S_UO}, {WS_U}')
    k(f'v_mov_b32 v{V_C1}, 0xbfb8aa3b')
    k(f'v_mov_b32 v{V_C2}, 1.0')
def ffn_epilogue(acc, t, tg_off, vm, sc=''):
    a = acc + 16*t
    E = ET + 8*(t & 1)
    out = []
    for half in range(2):
        for r in range(4):
            i = 4*half + r
            out.append(f'v_mul_f32 v{E+r}, v{a+i}, v{V_C1}')
        for r in range(4): out.append(f'v_exp_f32 v{E+r}, v{E+r}')
        for r in range(4):
            i = 4*half + r
            out.append(f'v_mul_f32 v{a+i}, v{a+i}, v{a+8+i}')
        for r in range(4): out.append(f'v_fma_f32 v{E+r}, v{E+r}, v{V_C2}, v{V_C2}')
        for r in range(4): out.append(f'v_rcp_f32 v{E+r}, v{E+r}')
        out.append('s_nop 0')
        for r in range(4):
            i = 4*half + r
            out.append(f'v_mul_f32 v{a+i}, v{a+i}, v{E+r}')
        out.append(f'v_cvt_pk_bf16_f32 v{E+4+2*half}, v{a+4*half}, v{a+4*half+1}')
        out.append(f'v_cvt_pk_bf16_f32 v{E+5+2*half}, v{a+4*half+2}, v{a+4*half+3}')
    out.append(('store', f'buffer_store_dwordx4 v[{E+4}:{E+7}], v{V_HO}, s[{S_WS}:{S_WS+3}], s{S_TMP+4+t} offen {sc}', (f's_add_u32 s{S_TMP+4+t}, s{S_HO}, {(tg_off + t)*1024}')))
    return out
def dft_epilogue_a(acc):
    out = []
    for t in range(2):
        a = acc + 16*t
        for q in range(4):
            E = ET + 2*((4*t+q) & 3)
            out.append(f'v_cvt_pk_bf16_f32 v{E}, v{a+4*q}, v{a+4*q+1}')
            out.append(f'v_cvt_pk_bf16_f32 v{E+1}, v{a+4*q+2}, v{a+4*q+3}')
            out.append(('ds', f'ds_write_b64 v{V_UTW}, v[{E}:{E+1}] offset:{t*16*528 + q*32}'))
    return out
def gen_p1_body(k, isB, xsrd, sc=''):
    vm = VM(k)
    nm = 'B' if isB else 'A'
    def dma(m0s, m0imm, voff, srd, so, soimm, tag):
        k(f's_add_u32 m0, s{m0s}, {m0imm}')
        k(f's_add_u32 s{S_TMP}, s{so}, {soimm}')
        vm.issue(f'buffer_load_dwordx4 v{voff}, s[{srd}:{srd+3}], s{S_TMP} offen {sc if False else ""} lds', tag)
    def dma_x(i):
        slot = i & 3
        for e in range(2):
            dma(S_MX, slot*16384 + e*1024, V_XD+e, xsrd, S_XO, i*128, ('st', i))
    def dma_w(i):
        slot = i & 3
        p = i >> 3; st = i & 7
        if isB and p == 0:
            for e in range(2):
                dma(S_MF, slot*16384 + e*1024, V_FD, S_TAB, S_FO, st*16384 + e*1024, ('st', i))
        else:
            so = S_WO0 if p == 0 else S_WO1
            dma(S_MW1, slot*16384, V_W1D, S_W1, so, st*64*3584, ('st', i))
            dma(S_MW3, slot*16384, V_W3D, S_W3, so, st*64*3584, ('st', i))
    def dma_stage(i):
        if i < 8: dma_x(i)
        dma_w(i)
    def reads(n):
        i, ks = n >> 2, n & 3
        p = i >> 3; slot = i & 3; par = n & 1
        cnt = 0
        if p == 0:
            kk = 4*i + ks
            k(f'ds_read_b128 v[{XF+4*kk}:{XF+4*kk+3}], v{V_XA+ks} offset:{slot*16384}'); cnt += 1
        for t in range(2):
            b = AF + par*8 + t*4
            if isB and p == 0:
                k(f'ds_read_b128 v[{b}:{b+3}], v{V_FA} offset:{slot*16384 + (ks*4+t)*1024}'); cnt += 1
            else:
                for part in range(2):
                    k(f'ds_read_b64_tr_b16 v[{b+2*part}:{b+2*part+1}], v{V_WA+t} offset:{slot*16384 + (16*ks+4*part)*128}'); cnt += 1
        return cnt
    for i in range(4): dma_stage(i)
    vm.wait(('st', 0)); k('s_barrier')
    reads(0)
    extras = []
    def pop_extras(nmax):
        c = 0
        while extras and c < nmax:
            e = extras.pop(0)
            if isinstance(e, tuple):
                if e[0] == 'store':
                    k(e[2]); vm.issue(e[1], 'hst')
                elif e[0] == 'ds': k(e[1]); lg['n'] += 1
                elif e[0] == 'call': e[1]()
            else: k(e)
            c += 1
    lg = {'n': 0}
    NST = 64
    for n in range(NST):
        i, ks = n >> 2, n & 3
        p = i >> 3; par = n & 1
        if ks == 3 and i + 1 < 16:
            vm.wait(('st', i + 1)); k('s_barrier')
            if i >= 1 and i + 3 < 16: dma_stage(i + 3)
            if n == 35 and isB:
                pass
        lg['n'] = 0
        cnt = reads(n + 1) if n + 1 < NST else 0
        k(f's_waitcnt lgkmcnt({cnt})')
        acc = ACC[p]
        kk = 4*(i & 7) + ks
        xf = f'v[{XF+4*kk}:{XF+4*kk+3}]'
        for t in range(2):
            b = AF + par*8 + t*4
            af = f'v[{b}:{b+3}]'
            d = f'v[{acc+16*t}:{acc+16*t+15}]'
            c = '0' if kk == 0 else d
            if isB and p == 0: k(f'v_mfma_f32_32x32x16_bf16 {d}, {xf}, {af}, {c}')
            else: k(f'v_mfma_f32_32x32x16_bf16 {d}, {af}, {xf}, {c}')
            if p == 1: pop_extras(2)
        if n == 32:
            if isB:
                extras += ['s_nop 0']*2 + dft_epilogue_a(ACC[0])
            else:
                extras += ['s_nop 0']*4 + ffn_epilogue(ACC[0], 0, 0, vm, sc) + ffn_epilogue(ACC[0], 1, 0, vm, sc)
        if isB and n == 43:
            assert not extras, len(extras)
            def rb():
                for e in range(4):
                    E = ET + 4*(e & 1) + 8*0
                    E = ET + 4*e
                    k(f'ds_read_b128 v[{E}:{E+3}], v{V_UTR} offset:{e*2*528}')
                k('s_waitcnt lgkmcnt(0)')
                for e in range(4):
                    E = ET + 4*e
                    k(f's_add_u32 s{S_TMP+4}, s{S_UO}, {e*2*8192}')
                    vm.issue(f'buffer_store_dwordx4 v[{E}:{E+3}], v{V_UO}, s[{S_WS}:{S_WS+3}], s{S_TMP+4} offen {sc}', 'ust')
            extras.append(('call', rb))
    assert not extras, len(extras)
    k.nop(12)
    fin = ffn_epilogue(ACC[1], 0, 4, vm, sc) + ffn_epilogue(ACC[1], 1, 4, vm, sc)
    extras += fin
    pop_extras(10000)
    return vm
def gen_p1(name):
    k = K()
    k('s_cmp_ge_u32 s2, 256'); k(f's_cbranch_scc1 L_{name}_end')
    load_srds(k, [S_W1, S_W3, S_WS], tab=True)
    p1_setup(k, S_WS, WS_XN)
    k(f's_cmp_ge_u32 s{S_CB}, 12'); k(f's_cbranch_scc1 L_{name}_B')
    gen_p1_body(k, False, S_WS)
    k('s_endpgm')
    k.label(f'L_{name}_B')
    gen_p1_body(k, True, S_WS)
    k.label(f'L_{name}_end'); k('s_endpgm')
    return k
if __name__ == '__main__':
    k = gen_p1('p1_kernel')
    p = check(k.l, 'p1')
    print('\n'.join(p[:10]) if p else 'no hazards'); print(len(k.l))
```

```python
from common import *
UF = 8
E64 = 40
E32 = 72
TW = 96
WT = 112
D = 120
T = 136
B = 152
FB = 160
A_L, A_U, A_W, A_YW, A_YR = 1, 2, 3, 4, 5
V_YW0, V_YW1, V_YR0, V_YR1, V_TMP, V_TMP2 = 192, 193, 194, 195, 196, 197
P2A_VGPR = 200
L_Y = 0
def mf16(d, a, b, c):
    return f'v_mfma_f32_16x16x32_bf16 v[{d}:{d+3}], v[{a}:{a+3}], v[{b}:{b+3}], ' + ('0' if c is None else f'v[{c}:{c+3}]')
def gen_p2a_body(k, s_cc, s_w, sc='', ldsbase=0):
    vm = VM(k)
    S0 = 56
    k(f'v_and_b32 v{A_L}, 63, v0')
    k(f'v_lshrrev_b32 v{V_TMP}, 4, v{A_L}'); k(f'v_and_b32 v{V_TMP2}, 15, v{A_L}')
    k(f'v_lshlrev_b32 v{A_U}, 9, v{V_TMP}'); k(f'v_lshl_add_u32 v{A_U}, v{V_TMP2}, 4, v{A_U}')
    k(f'v_lshlrev_b32 v{A_W}, 7, v{V_TMP2}'); k(f'v_lshl_add_u32 v{A_W}, v{V_TMP}, 4, v{A_W}')
    k(f's_lshl_b32 s{S0}, s{s_cc}, 13')
    k(f's_add_u32 s{S0+1}, s{S0}, {WS_U}'); k(f's_add_u32 s{S0+2}, s{S0+1}, 4096')
    k(f's_lshl_b32 s{S0+3}, s{s_w}, 11'); k(f's_add_u32 s{S0+3}, s{S0+3}, s{S0}'); k(f's_add_u32 s{S0+3}, s{S0+3}, {WS_WT}')
    k(f'v_lshlrev_b32 v{V_TMP}, 4, v{A_L}')
    for ks in range(4):
        for mt in range(2):
            r = UF + 4*(mt*4+ks)
            vm.issue(f'buffer_load_dwordx4 v[{r}:{r+3}], v{A_U}, s[{S_WS}:{S_WS+3}], s{S0+1+(ks>>1)} offen offset:{(ks&1)*2048 + mt*256} {sc}', 'u')
    k(f's_lshl_b32 s{S0+4}, s{s_w}, 13'); k(f's_add_u32 s{S0+4}, s{S0+4}, {TAB_E64}'); k(f's_add_u32 s{S0+5}, s{S0+4}, 4096')
    for ks in range(4):
        for var in range(2):
            r = E64 + 4*(ks*2+var); idx = ks*2+var
            vm.issue(f'buffer_load_dwordx4 v[{r}:{r+3}], v{V_TMP}, s[{S_TAB}:{S_TAB+3}], s{S0+4+(idx>>2)} offen offset:{(idx&3)*1024}', 'e64')
    k(f's_lshl_b32 s{S0+6}, s{s_w}, 12'); k(f's_add_u32 s{S0+6}, s{S0+6}, {TAB_TW}')
    for i in range(4):
        vm.issue(f'buffer_load_dwordx4 v[{TW+4*i}:{TW+4*i+3}], v{V_TMP}, s[{S_TAB}:{S_TAB+3}], s{S0+6} offen offset:{i*1024}', 'tw')
    k(f's_mov_b32 s{S0+4}, {TAB_E32}'); k(f's_mov_b32 s{S0+5}, {TAB_E32+4096}')
    for i in range(6):
        vm.issue(f'buffer_load_dwordx4 v[{E32+4*i}:{E32+4*i+3}], v{V_TMP}, s[{S_TAB}:{S_TAB+3}], s{S0+4+(i>>2)} offen offset:{(i&3)*1024}', 'e32')
    for mt in range(2):
        vm.issue(f'buffer_load_dwordx4 v[{WT+4*mt}:{WT+4*mt+3}], v{A_W}, s[{S_WS}:{S_WS+3}], s{S0+3} offen offset:{mt*64} {sc}', 'wt')
    k(f'v_and_b32 v{V_TMP2}, 15, v{A_L}')
    k(f'v_lshlrev_b32 v{V_YW0}, 6, v{V_TMP2}')
    k(f'v_bfe_u32 v{V_TMP}, v{A_L}, 2, 1'); k(f'v_lshl_add_u32 v{V_YW0}, v{V_TMP}, 5, v{V_YW0}')
    k(f'v_lshrrev_b32 v{V_TMP}, 4, v{A_L}'); k(f'v_lshl_add_u32 v{V_YW0}, v{V_TMP}, 3, v{V_YW0}')
    k(f's_lshl_b32 s{S0}, s{s_w}, 10'); k(f's_add_u32 s{S0}, s{S0}, {ldsbase + L_Y}'); k(f'v_add_u32 v{V_YW0}, s{S0}, v{V_YW0}')
    k(f'v_xor_b32 v{V_YW1}, 32, v{V_YW0}')
    k(f'v_lshrrev_b32 v{V_TMP}, 2, v{A_L}'); k(f'v_lshlrev_b32 v{V_YR0}, 6, v{V_TMP}')
    k(f'v_bfe_u32 v{V_TMP}, v{A_L}, 4, 1'); k(f'v_lshl_add_u32 v{V_YR0}, v{V_TMP}, 5, v{V_YR0}')
    k(f'v_and_b32 v{V_TMP}, 3, v{A_L}'); k(f'v_lshl_add_u32 v{V_YR0}, v{V_TMP}, 3, v{V_YR0}')
    if ldsbase + L_Y: k(f'v_add_u32 v{V_YR0}, {ldsbase + L_Y}, v{V_YR0}')
    k(f'v_xor_b32 v{V_YR1}, 32, v{V_YR0}')
    vm.wait('e64')
    for ks in range(4):
        for mt in range(2):
            for var in range(2):
                d = D + 4*(mt*2+var)
                k(mf16(d, UF + 4*(mt*4+ks), E64 + 4*(ks*2+var), None if ks == 0 else d))
    vm.wait('tw')
    k.nop(6)
    def twiddle(sign):
        for mt in range(2):
            for r in range(4):
                R, I = D + 8*mt + r, D + 8*mt + 4 + r
                c, s = TW + 8*mt + r, TW + 8*mt + 4 + r
                k(f'v_mul_f32 v{T+8*mt+r}, v{R}, v{c}'); k(f'v_mul_f32 v{T+8*mt+4+r}, v{I}, v{c}')
            for r in range(4):
                R, I = D + 8*mt + r, D + 8*mt + 4 + r
                c, s = TW + 8*mt + r, TW + 8*mt + 4 + r
                k(f'v_fma_f32 v{T+8*mt+r}, {"" if sign > 0 else "-"}v{I}, v{s}, v{T+8*mt+r}')
                k(f'v_fma_f32 v{T+8*mt+4+r}, {"-" if sign > 0 else ""}v{R}, v{s}, v{T+8*mt+4+r}')
    def pack():
        for mt in range(2):
            for part in range(2):
                k(f'v_cvt_pk_bf16_f32 v{B+4*part+2*mt}, v{T+8*mt+4*part}, v{T+8*mt+4*part+1}')
                k(f'v_cvt_pk_bf16_f32 v{B+4*part+2*mt+1}, v{T+8*mt+4*part+2}, v{T+8*mt+4*part+3}')
    twiddle(+1); pack()
    vm.wait('e32')
    k.nop(1)
    Br, Bi = B, B + 4
    def C32(mt): return E32 + 12*mt
    def S32(mt): return E32 + 12*mt + 4
    def N32(mt): return E32 + 12*mt + 8
    for mt in range(2):
        k(mf16(D + 8*mt, C32(mt), Br, None)); k(mf16(D + 8*mt + 4, C32(mt), Bi, None))
    for mt in range(2):
        k(mf16(D + 8*mt, S32(mt), Bi, D + 8*mt)); k(mf16(D + 8*mt + 4, N32(mt), Br, D + 8*mt + 4))
    vm.wait('wt')
    for mt in range(2):
        for r in range(4):
            k(f'v_lshlrev_b32 v{UF+4*mt+r}, 16, v{WT+4*mt+r}'); k(f'v_and_b32 v{UF+8+4*mt+r}, 0xffff0000, v{WT+4*mt+r}')
    for mt in range(2):
        for r in range(4):
            R, I = D + 8*mt + r, D + 8*mt + 4 + r
            k(f'v_mul_f32 v{T+8*mt+r}, v{R}, v{UF+4*mt+r}'); k(f'v_mul_f32 v{T+8*mt+4+r}, v{R}, v{UF+8+4*mt+r}')
        for r in range(4):
            R, I = D + 8*mt + r, D + 8*mt + 4 + r
            k(f'v_fma_f32 v{T+8*mt+r}, -v{I}, v{UF+8+4*mt+r}, v{T+8*mt+r}')
            k(f'v_fma_f32 v{T+8*mt+4+r}, v{I}, v{UF+4*mt+r}, v{T+8*mt+4+r}')
    pack()
    k.nop(2)
    for mt in range(2):
        k(mf16(D + 8*mt, C32(mt), Br, None)); k(mf16(D + 8*mt + 4, C32(mt), Bi, None))
    for mt in range(2):
        k(mf16(D + 8*mt, N32(mt), Bi, D + 8*mt)); k(mf16(D + 8*mt + 4, S32(mt), Br, D + 8*mt + 4))
    k.nop(8)
    twiddle(-1); pack()
    for mt in range(2):
        va = V_YW0 if mt == 0 else V_YW1
        k(f'ds_write_b64 v{va}, v[{B+4+2*mt}:{B+4+2*mt+1}]')
        k(f'ds_write_b64 v{va}, v[{B+2*mt}:{B+2*mt+1}] offset:4096')
    k('s_waitcnt lgkmcnt(0)'); k('s_barrier')
    for nt in range(2):
        va = V_YR0 if nt == 0 else V_YR1
        for ks in range(4):
            r = FB + 4*(nt*4+ks)
            k(f'ds_read_b64_tr_b16 v[{r}:{r+1}], v{va} offset:{ks*1024}')
            k(f'ds_read_b64_tr_b16 v[{r+2}:{r+3}], v{va} offset:{4096 + ks*1024}')
    k(f's_lshl_b32 s{S0}, s{s_cc}, 13'); k(f's_lshl_b32 s{S0+1}, s{s_w}, 11'); k(f's_add_u32 s{S0}, s{S0}, s{S0+1}'); k(f's_add_u32 s{S0}, s{S0}, {WS_V}')
    for nt in range(2):
        k(f's_waitcnt lgkmcnt({8 if nt == 0 else 0})')
        for ks in range(4):
            f = FB + 4*(nt*4+ks)
            k(mf16(D + 8*nt + 4, E64 + 4*(ks*2+0), f, None if ks == 0 else D + 8*nt + 4))
            k(mf16(D + 8*nt, E64 + 4*(ks*2+1), f, None if ks == 0 else D + 8*nt))
    k.nop(8)
    for nt in range(2):
        o = B + 4*nt
        k(f'v_cvt_pk_bf16_f32 v{o}, v{D+8*nt}, v{D+8*nt+1}'); k(f'v_cvt_pk_bf16_f32 v{o+1}, v{D+8*nt+2}, v{D+8*nt+3}')
        k(f'v_cvt_pk_bf16_f32 v{o+2}, v{D+8*nt+4}, v{D+8*nt+5}'); k(f'v_cvt_pk_bf16_f32 v{o+3}, v{D+8*nt+6}, v{D+8*nt+7}')
        vm.issue(f'buffer_store_dwordx4 v[{o}:{o+3}], v{A_U}, s[{S_WS}:{S_WS+3}], s{S0} offen offset:{nt*256} {sc}', 'vst')
    return vm
def gen_p2a(name):
    k = K()
    k('s_cmp_ge_u32 s2, 256'); k(f's_cbranch_scc1 L_{name}_end')
    load_srds(k, [S_WS], tab=True)
    k('v_lshrrev_b32 v2, 6, v0'); k('s_nop 0'); k('v_readfirstlane_b32 s40, v2')
    gen_p2a_body(k, 2, 40)
    k.label(f'L_{name}_end'); k('s_endpgm')
    return k
if __name__ == '__main__':
    k = gen_p2a('p2a_kernel')
    p = check(k.l, 'p2a')
    print('\n'.join(p[:12]) if p else 'no hazards'); print(len(k.l))
```

```python
from common import *
def gen_prep(name, write_xn=True):
    k = K()
    k('s_cmp_ge_u32 s2, 256'); k(f's_cbranch_scc1 L_{name}_end')
    load_srds(k, [S_X, S_WR, S_WI, S_WS])
    k('v_and_b32 v1, 63, v0')
    k('v_lshrrev_b32 v2, 6, v0')
    k('s_nop 0')
    k('v_readfirstlane_b32 s40, v2')
    k('s_lshl_b32 s41, s2, 3'); k('s_add_u32 s41, s41, s40'); k('s_lshl_b32 s41, s41, 10')
    k('v_lshlrev_b32 v3, 4, v1')
    k(f'buffer_load_dwordx4 v[4:7], v3, s[{S_X}:{S_X+3}], s41 offen')
    k('s_lshr_b32 s42, s2, 2'); k('s_and_b32 s43, s2, 3')
    k('s_lshl_b32 s44, s40, 8'); k('s_add_u32 s44, s44, s42')
    k('s_mul_i32 s44, s44, 514')
    k('s_lshl_b32 s45, s43, 7'); k('s_add_u32 s44, s44, s45'); k('s_add_u32 s44, s44, 2')
    k('v_lshlrev_b32 v8, 1, v1')
    for e in range(4):
        if e: k(f's_add_u32 s44, s44, {64*514}')
        k(f'buffer_load_ushort v{10+e}, v8, s[{S_WR}:{S_WR+3}], s44 offen')
        k(f'buffer_load_ushort v{14+e}, v8, s[{S_WI}:{S_WI+3}], s44 offen')
    k('s_waitcnt vmcnt(8)')
    for i in range(4):
        k(f'v_lshlrev_b32 v{20+2*i}, 16, v{4+i}')
        k(f'v_and_b32 v{21+2*i}, 0xffff0000, v{4+i}')
    k('v_add_f32 v28, v20, v21')
    for i in range(2, 8): k(f'v_add_f32 v28, v28, v{20+i}')
    wave_allreduce_add(k, 28, 29)
    k('v_mul_f32 v28, 0x3b000000, v28')
    k('v_sub_f32 v30, v20, v28'); k('v_mul_f32 v31, v30, v30')
    for i in range(1, 8):
        k(f'v_sub_f32 v30, v{20+i}, v28'); k(f'v_fma_f32 v31, v30, v30, v31')
    wave_allreduce_add(k, 31, 29)
    k('v_mul_f32 v31, 0x3b000000, v31')
    bf16_round(k, 28, 28)
    bf16_round(k, 31, 31)
    k('v_add_f32 v31, 0x3727c5ac, v31')
    bf16_round(k, 31, 31)
    k('v_sqrt_f32 v31, v31'); k('s_nop 0')
    bf16_round(k, 31, 31)
    k('v_rcp_f32 v32, v31'); k('s_nop 0')
    for i in range(8):
        k(f'v_sub_f32 v{20+i}, v{20+i}, v28')
    for i in range(0, 8, 2):
        k(f'v_cvt_pk_bf16_f32 v33, v{20+i}, v{21+i}')
        k(f'v_lshlrev_b32 v{20+i}, 16, v33'); k(f'v_and_b32 v{21+i}, 0xffff0000, v33')
    for i in range(8): k(f'v_mul_f32 v{20+i}, v{20+i}, v32')
    for i in range(4): k(f'v_cvt_pk_bf16_f32 v{4+i}, v{20+2*i}, v{21+2*i}')
    k(f's_add_u32 s41, s41, {WS_XN}')
    k(f'buffer_store_dwordx4 v[4:7], v3, s[{S_WS}:{S_WS+3}], s41 offen')
    k('s_waitcnt vmcnt(1)')
    for e in range(4): k(f'v_lshl_or_b32 v{10+e}, v{14+e}, 16, v{10+e}')
    k('v_mul_u32_u24 v9, 144, v1'); k('v_lshl_add_u32 v9, v2, 4, v9')
    k('ds_write_b128 v9, v[10:13]')
    k('s_waitcnt lgkmcnt(0)'); k('s_barrier')
    k('v_lshrrev_b32 v9, 3, v1'); k('v_lshl_add_u32 v9, v2, 3, v9')
    k('v_and_b32 v18, 7, v1'); k('v_lshlrev_b32 v18, 4, v18')
    k('v_mul_u32_u24 v19, 144, v9'); k('v_add_u32 v19, v19, v18')
    k('ds_read_b128 v[10:13], v19')
    k('v_lshlrev_b32 v19, 13, v9'); k('v_add_u32 v19, v19, v18')
    k('s_lshl_b32 s45, s43, 19'); k('s_lshl_b32 s46, s42, 7'); k('s_add_u32 s45, s45, s46'); k(f's_add_u32 s45, s45, {WS_WT}')
    k('s_waitcnt lgkmcnt(0)')
    k(f'buffer_store_dwordx4 v[10:13], v19, s[{S_WS}:{S_WS+3}], s45 offen')
    k.label(f'L_{name}_end'); k('s_endpgm')
    return k
```

```python
import sys
from common import *
from tables import tables_asm
import k_prep, k_p1, k_p2a, k_g2
def build():
    hdr = """; parallel_sum(spectral gfnet, swiglu) -- generated by gen/gen_v1.py
; @launch kernel=prep_kernel grid=(256,1,1) block=(512,1,1) lds=16384
; @launch kernel=p1_kernel grid=(256,1,1) block=(512,1,1) lds=%d
; @launch kernel=p2a_kernel grid=(256,1,1) block=(256,1,1) lds=8192
; @launch kernel=g2_kernel grid=(256,1,1) block=(512,1,1) lds=%d
.amdgcn_target "amdgcn-amd-amdhsa--gfx950"
""" % (k_p1.P1_LDS, k_g2.G2_LDS)
    out = hdr
    ks = [('prep_kernel', k_prep.gen_prep('prep_kernel'), 64), ('p1_kernel', k_p1.gen_p1('p1_kernel'), 256),
          ('p2a_kernel', k_p2a.gen_p2a('p2a_kernel'), k_p2a.P2A_VGPR), ('g2_kernel', k_g2.gen_g2('g2_kernel'), k_g2.G2_VGPR)]
    for name, k, vg in ks:
        p = check(k.l, name)
        if p: print('\n'.join(p[:10])); raise SystemExit('hazards')
        out += kernel_header(name) + k.text() + kernel_desc(name, vg)
    out += tables_asm()
    return out
if __name__ == '__main__':
    s = build()
    dst = sys.argv[1] if len(sys.argv) > 1 else 'parallel_sum__spectral_gfnet__glu_gated_swiglu__prompt.s'
    open(dst, 'w').write(s)
    print(len(s), 'bytes ->', dst)
```

```python
from asmgen import *
from tables import TAB_F, TAB_G, TAB_E64, TAB_E32, TAB_TW, TAB_END
KA_X, KA_WR, KA_WI, KA_W1, KA_W3, KA_W2, KA_OUT, KA_DBG, KA_WS = 0, 8, 16, 32, 40, 48, 56, 64, 72
WS_XN = 0x0000000
WS_WT = 0x0200000
WS_U  = 0x0400000
WS_V  = 0x0600000
WS_H  = 0x0800000
WS_ST = 0x0F00000
WS_CS = 0x0F10000
WS_FL = 0x0F80000
WS_SIZE = 0x1400000
S_X, S_W1, S_W3, S_W2, S_WS, S_OUT, S_TAB, S_WR, S_WI = 4, 8, 12, 16, 20, 24, 28, 32, 36
SIZES = {S_X: 2048*512*2, S_W1: 512*1792*2, S_W3: 512*1792*2, S_W2: 1792*512*2, S_WS: WS_SIZE, S_OUT: 2048*512*2, S_WR: 2048*257*2, S_WI: 2048*257*2}
KAOFF = {S_X: KA_X, S_W1: KA_W1, S_W3: KA_W3, S_W2: KA_W2, S_WS: KA_WS, S_OUT: KA_OUT, S_WR: KA_WR, S_WI: KA_WI}
def load_srds(k, which, tab=False):
    for s in which:
        k(f's_load_dwordx2 s[{s}:{s+1}], s[0:1], {KAOFF[s]}')
    if tab:
        k(f's_getpc_b64 s[{S_TAB}:{S_TAB+1}]')
        k(f's_add_u32 s{S_TAB}, s{S_TAB}, TABS@rel32@lo+4')
        k(f's_addc_u32 s{S_TAB+1}, s{S_TAB+1}, TABS@rel32@hi+12')
        k(f's_mov_b32 s{S_TAB+2}, {TAB_END}')
        k(f's_mov_b32 s{S_TAB+3}, 0x20000')
    for s in which:
        k(f's_mov_b32 s{s+2}, {SIZES[s]}')
        k(f's_mov_b32 s{s+3}, 0x20000')
    k('s_waitcnt lgkmcnt(0)')
class VM:
    def __init__(self, k): self.k = k; self.q = []; self.ever = set()
    def issue(self, text, tag):
        self.k(text); self.q.append(tag); self.ever.add(tag)
    def wait_many(self, tags):
        idx = [i for i, t in enumerate(self.q) if t in tags]
        if not idx: return False
        n = len(self.q) - 1 - idx[-1]
        assert n <= 63, n
        self.k(f's_waitcnt vmcnt({n})')
        self.q = self.q[idx[-1]+1:]
        return True
    def wait(self, tag, extra=''):
        idx = [i for i, t in enumerate(self.q) if t == tag]
        if not idx: return False
        n = len(self.q) - 1 - idx[-1]
        assert n <= 63, n
        self.k(f's_waitcnt vmcnt({n})' + extra)
        self.q = self.q[idx[-1]+1:]
        return True
    def drain(self):
        self.k('s_waitcnt vmcnt(0)'); self.q = []
def kernel_header(name):
    return f""".text
.globl {name}
.p2align 8
.type {name},@function
{name}:
"""
def kernel_desc(name, vgpr, sgpr=96, accum=None):
    if accum is None: accum = min(256, (vgpr + 3)//4*4)
    return f""".section .rodata,"a"
.p2align 6
.amdhsa_kernel {name}
  .amdhsa_next_free_vgpr {vgpr}
  .amdhsa_next_free_sgpr {sgpr}
  .amdhsa_accum_offset {accum}
  .amdhsa_group_segment_fixed_size 0
  .amdhsa_kernarg_size 80
  .amdhsa_user_sgpr_count 2
  .amdhsa_user_sgpr_kernarg_segment_ptr 1
  .amdhsa_system_sgpr_workgroup_id_x 1
  .amdhsa_float_denorm_mode_32 3
.end_amdhsa_kernel
.text
"""
def wave_allreduce_add(k, v, t):
    for r in (8, 4, 2, 1):
        k(f's_nop 1')
        k(f'v_add_f32_dpp v{v}, v{v}, v{v} row_ror:{r} row_mask:0xf bank_mask:0xf')
    k(f'v_mov_b32 v{t}, v{v}')
    k('s_nop 1')
    k(f'v_permlane16_swap_b32 v{v}, v{t}')
    k('s_nop 1')
    k(f'v_add_f32 v{v}, v{v}, v{t}')
    k(f'v_mov_b32 v{t}, v{v}')
    k('s_nop 1')
    k(f'v_permlane32_swap_b32 v{v}, v{t}')
    k('s_nop 1')
    k(f'v_add_f32 v{v}, v{v}, v{t}')
def bf16_round(k, dst, src):
    k(f'v_cvt_pk_bf16_f32 v{dst}, v{src}, v{src}')
    k(f'v_and_b32 v{dst}, 0xffff0000, v{dst}')
WS_TS = 0x1000000
TS_BASE = 64
class Stamps:
    def __init__(self, k, on, kid, vts=31):
        self.k = k; self.on = on; self.n = 0; self.kid = kid; self.names = []; self.vts = vts
    only = None
    def stamp(self, name):
        if not self.on: return
        if Stamps.only and name not in Stamps.only: return
        assert self.n < 30
        k = self.k
        k(f's_memrealtime s[{TS_BASE}:{TS_BASE+1}]'); k(f's_memtime s[{TS_BASE+2}:{TS_BASE+3}]'); k('s_waitcnt lgkmcnt(0)')
        k(f'v_writelane_b32 v{self.vts}, s{TS_BASE}, {2*self.n}'); k(f'v_writelane_b32 v{self.vts}, s{TS_BASE+2}, {2*self.n+1}')
        self.names.append(name); self.n += 1
    def flush(self, vt=0, va=1):
        if not self.on: return
        k = self.k
        k('s_waitcnt vmcnt(0) lgkmcnt(0)')
        self.stamp('end')
        k(f'v_mbcnt_lo_u32_b32 v{va}, -1, 0'); k(f'v_mbcnt_hi_u32_b32 v{va}, -1, v{va}')
        k(f'v_lshlrev_b32 v{va}, 2, v{va}')
        k(f's_lshl_b32 s{TS_BASE}, s2, 3'); k(f's_add_u32 s{TS_BASE}, s{TS_BASE}, s40')
        k(f's_lshl_b32 s{TS_BASE}, s{TS_BASE}, 8'); k(f's_add_u32 s{TS_BASE}, s{TS_BASE}, {WS_TS + self.kid*0x80000}')
        k(f'buffer_store_dword v{self.vts}, v{va}, s[{S_WS}:{S_WS+3}], s{TS_BASE} offen')
```

```python
import sys
from asmgen import *
from tables import tables_asm, TAB_F, TAB_G, TAB_E64, TAB_E32, TAB_TW, TAB_END
import common as C
from common import VM, Stamps, kernel_header, kernel_desc, S_X, S_W1, S_W3, S_W2, S_WS, S_OUT, S_TAB, S_WR, S_WI
NAME = 'parallel_sum__spectral_gfnet__glu_gated_swiglu__prompt_kernel'
OPT = set()
WS_EPOCH = 0x0
WS_HF = 0x1000
WS_UF = 0x2000
WS_WTF = 0x3000
WS_VF = 0x4000
WS_ST = 0x10000
WS_CS = 0x20000
WS_WT, WS_U, WS_V, WS_H = 0x100000, 0x300000, 0x500000, 0x700000
WS_SIZE = 0x1400000
C.WS_WT, C.WS_U, C.WS_V, C.WS_H = WS_WT, WS_U, WS_V, WS_H
S_WV, S_WR_, S_WC, S_RB, S_CB, S_G, S_NON, S_ROT = 40, 41, 42, 43, 44, 45, 46, 47
S_XO, S_WO0, S_WO1, S_FO, S_HO, S_UO = 48, 49, 50, 51, 52, 53
S_MX, S_MW1 = 54, 55
T = 56
S_RB2, S_G2, S_CB2 = 84, 85, 86
S_SX, S_SW = 87, 88
S_PAR = 89
S_K2, S_CBLK = 90, 91
S_A, S_B, S_C_, S_D = 92, 93, 94, 95
L_X, L_W = 0x0000, 0x10000
L_UT = 0x0000
L_MISC = 0x24000
L_Y = L_MISC
L_WTB = L_MISC
L_AX = L_MISC + 0x2400
L_RS = L_AX + 0x1000
LDS_TOTAL = 0x28000
V_L = 1
V_XA = 2
V_WA = 6
V_FA = 8
V_XD = 9
V_W1D = 13
V_W3D = 15
V_FD = 17
V_C1, V_C2 = 18, 20
V_BX = 24
V_HO, V_UTW, V_UTR, V_UO = 32, 33, 34, 35
V_ONE = 36
V_SR = 40
V_WTD = 48
V_STG = 64
V_CSG = 68
V_A0, V_A1, V_A2, V_A3 = 76, 77, 78, 79
ET = 80
AF = 104
ACC = 128
V_TS = 23
V_L0 = 22
S_F0, S_F1 = 96, 97
S_EP, S_EP2 = 98, 99
S_SPIN = 100
S_DBG = 68
SPIN_MAX = 100000
slow_id = [0]
V_L0T = 42
V_EA = 41
def acc(p, t, e): return ACC + p*64 + t*32 + e*16
def xf(e, kk): return (e*32 + kk)*4
class Sched:
    def __init__(self, k, vm): self.k = k; self.vm = vm; self.q = []
    def add(self, items): self.q += items
    def pop(self, nmax):
        c = 0
        while self.q and c < nmax:
            e = self.q[0]
            if e == 'STEP': return
            self.q.pop(0)
            if isinstance(e, tuple):
                if e[0] == 'vm': self.vm.issue(e[1], e[2])
                elif e[0] == 'call': e[1]()
                elif e[0] == 'grp':
                    for x in e[1]:
                        if isinstance(x, tuple): self.vm.issue(x[1], x[2])
                        else: self.k(x)
                    c += len(e[1]) - 1
            else: self.k(e)
            c += 1
    def newstep(self):
        if self.q and self.q[0] == 'STEP': self.q.pop(0)
    def flush(self):
        while self.q:
            if self.q[0] == 'STEP':
                self.q.pop(0); self.k('s_waitcnt lgkmcnt(0)')
            else: self.pop(1)
slow_paths = []
def tag_check(k, label, regs, reload_lines):
    k(f'v_cmp_ne_u32 vcc, s{S_NON}, v{regs[0]}')
    for r in regs[1:]:
        k(f'v_cmp_ne_u32 s[{T+6}:{T+7}], s{S_NON}, v{r}'); k('s_nop 0'); k(f's_or_b64 vcc, vcc, s[{T+6}:{T+7}]')
    k('s_nop 1')
    k('s_cmp_lg_u64 vcc, 0'); k(f's_cbranch_scc1 L_slow_{label}')
    k.label(f'L_back_{label}')
    sp = K()
    slow_id[0] += 1
    sp.label(f'L_slow_{label}')
    sp(f's_sub_u32 s{S_SPIN}, s{S_SPIN}, 1'); sp(f's_cbranch_scc1 L_tmo_{label}')
    sp('s_sleep 2')
    for l in reload_lines: sp(l)
    sp('s_waitcnt vmcnt(0)')
    sp(f'v_cmp_ne_u32 vcc, s{S_NON}, v{regs[0]}')
    for r in regs[1:]:
        sp(f'v_cmp_ne_u32 s[{T+6}:{T+7}], s{S_NON}, v{r}'); sp('s_nop 0'); sp(f's_or_b64 vcc, vcc, s[{T+6}:{T+7}]')
    sp('s_nop 1')
    sp('s_cmp_lg_u64 vcc, 0'); sp(f's_cbranch_scc1 L_slow_{label}')
    sp(f's_branch L_back_{label}')
    sp.label(f'L_tmo_{label}')
    sp(f's_mov_b32 s{S_SPIN}, 0')
    sp(f'v_mov_b32 v{regs[0]}, {slow_id[0]}'); sp(f'v_mov_b32 v{V_L0T}, {4*slow_id[0]}')
    sp(f'buffer_store_dword v{regs[0]}, v{V_L0T}, s[{S_DBG}:{S_DBG+3}], 0 offen')
    sp(f's_branch L_back_{label}')
    slow_paths.append(sp)
def srd(k, s, lo, hi, size):
    k(f's_mov_b32 s{s}, s{lo}'); k(f's_mov_b32 s{s+1}, s{hi}'); k(f's_mov_b32 s{s+2}, {size}'); k(f's_mov_b32 s{s+3}, 0x20000')
def prologue(k, st):
    L, T0, T1, T2 = V_L, V_A0, V_A1, V_A2
    k('s_load_dwordx16 s[64:79], s[0:1], 0'); k('s_load_dwordx4 s[80:83], s[0:1], 64')
    k(f'v_and_b32 v{L}, 63, v0'); k(f'v_lshrrev_b32 v{T0}, 6, v0'); k('s_nop 0')
    k(f'v_readfirstlane_b32 s{S_WV}, v{T0}')
    k(f's_and_b32 s{T}, s2, 7'); k(f's_lshr_b32 s{T+1}, s2, 3')
    k(f's_and_b32 s{S_WR_}, s{S_WV}, 1'); k(f's_lshr_b32 s{S_WC}, s{S_WV}, 1')
    k(f's_and_b32 s{S_RB}, s{T}, 1'); k(f's_lshl_b32 s{S_RB}, s{S_RB}, 3')
    k(f's_and_b32 s{T+2}, s{T+1}, 7'); k(f's_add_u32 s{S_RB}, s{S_RB}, s{T+2}')
    k(f's_lshr_b32 s{S_G}, s{T}, 1'); k(f's_lshr_b32 s{T+2}, s{T+1}, 3')
    k(f's_mul_i32 s{S_CB}, s{S_G}, 3'); k(f's_add_u32 s{S_CB}, s{S_CB}, s{T+2}'); k(f's_add_u32 s{T+3}, s{S_G}, 12')
    k(f's_cmp_eq_u32 s{T+2}, 3'); k(f's_cselect_b32 s{S_CB}, s{T+3}, s{S_CB}')
    k(f's_lshl_b32 s{T+2}, s{T}, 2'); k(f's_and_b32 s{T+3}, s{T+1}, 3'); k(f's_add_u32 s{T+2}, s{T+2}, s{T+3}')
    k(f's_lshr_b32 s{S_RB2}, s{T+2}, 1'); k(f's_and_b32 s{S_G2}, s{T+2}, 1'); k(f's_lshr_b32 s{S_CB2}, s{T+1}, 2')
    k(f's_lshr_b32 s{S_ROT}, s{S_RB}, 1'); k(f's_and_b32 s{S_PAR}, s{S_RB}, 1')
    k(f's_lshr_b32 s{S_K2}, s2, 2'); k(f's_and_b32 s{S_CBLK}, s2, 3')
    k(f'v_lshrrev_b32 v{T0}, 3, v{L}')
    k(f'v_and_b32 v{T1}, 3, v{T0}'); k(f'v_lshlrev_b32 v{T1}, 15, v{T1}')
    k(f'v_lshrrev_b32 v{T2}, 2, v{T0}'); k(f'v_lshl_add_u32 v{T1}, v{T2}, 10, v{T1}')
    k(f's_lshl_b32 s{T+2}, s{S_WV}, 13'); k(f'v_add_u32 v{T1}, s{T+2}, v{T1}')
    k(f'v_and_b32 v{T2}, 7, v{L}')
    for e in range(4):
        k(f'v_lshrrev_b32 v{V_A3}, 4, v{L}'); k(f'v_add_u32 v{V_A3}, {4*e}, v{V_A3}'); k(f'v_and_b32 v{V_A3}, 7, v{V_A3}')
        k(f'v_xor_b32 v{V_A3}, v{V_A3}, v{T2}'); k(f'v_lshl_add_u32 v{V_XD+e}, v{V_A3}, 4, v{T1}')
        if e: k(f'v_add_u32 v{V_XD+e}, {e*1024}, v{V_XD+e}')
    k(f's_lshl_b32 s{T+2}, s{S_WV}, 4'); k(f'v_add_u32 v{T0}, s{T+2}, v{T0}')
    k(f'v_bfe_u32 v{T1}, v{L}, 4, 1'); k(f'v_bfe_u32 v{T2}, v{L}, 1, 2'); k(f'v_xor_b32 v{T1}, v{T1}, v{T2}')
    k(f'v_mul_u32_u24 v{T0}, 3584, v{T0}'); k(f'v_and_b32 v{T2}, 1, v{L}'); k(f'v_lshl_add_u32 v{T0}, v{T2}, 4, v{T0}')
    k(f'v_lshl_add_u32 v{V_W1D}, v{T1}, 5, v{T0}'); k(f'v_add_u32 v{V_W1D+1}, {8*3584-1024}, v{V_W1D}')
    k(f'v_xor_b32 v{T1}, 2, v{T1}'); k(f'v_lshl_add_u32 v{V_W3D}, v{T1}, 5, v{T0}'); k(f'v_add_u32 v{V_W3D+1}, {8*3584-1024}, v{V_W3D}')
    k(f's_lshl_b32 s{T+2}, s{S_WV}, 12'); k(f'v_lshl_add_u32 v{V_FD}, v{L}, 4, s{T+2}')
    k(f's_lshl_b32 s{S_MX}, s{S_WV}, 12')
    k(f's_lshl_b32 s{S_MW1}, s{S_WV}, 11'); k(f's_add_u32 s{S_MW1}, s{S_MW1}, {L_W}')
    k(f's_lshl_b32 s{S_XO}, s{S_RB}, 17')
    k(f's_lshl_b32 s{S_WO0}, s{S_CB}, 8'); k(f's_add_u32 s{S_WO1}, s{S_WO0}, 128')
    k(f's_lshl_b32 s{T+2}, s{S_G}, 7'); k(f's_add_u32 s{T+2}, s{T+2}, {1536*2}')
    k(f's_cmp_ge_u32 s{S_CB}, 12'); k(f's_cselect_b32 s{S_WO1}, s{T+2}, s{S_WO1}')
    k(f's_lshl_b32 s{S_FO}, s{S_G}, 17'); k(f's_add_u32 s{S_FO}, s{S_FO}, {TAB_F}')
    k(f's_getpc_b64 s[{S_TAB}:{S_TAB+1}]')
    k(f's_add_u32 s{S_TAB}, s{S_TAB}, TABS@rel32@lo+4'); k(f's_addc_u32 s{S_TAB+1}, s{S_TAB+1}, TABS@rel32@hi+12')
    k(f's_mov_b32 s{S_TAB+2}, {TAB_END}'); k(f's_mov_b32 s{S_TAB+3}, 0x20000')
    k('s_waitcnt lgkmcnt(0)')
    k(f's_load_dword s{S_NON}, s[82:83], {WS_EPOCH}')
    srd(k, S_X, 64, 65, 2048*512*2); srd(k, S_W1, 72, 73, 512*1792*2); srd(k, S_W3, 74, 75, 512*1792*2)
def prologue2(k):
    L, T0, T1, T2 = V_L, V_A0, V_A1, V_A2
    srd(k, S_W2, 76, 77, 1792*512*2)
    srd(k, S_OUT, 78, 79, 2048*512*2); srd(k, S_WS, 82, 83, WS_SIZE); srd(k, S_DBG, 80, 81, 256)
    k(f's_mov_b32 s{S_SPIN}, {SPIN_MAX}')
    k(f'v_and_b32 v{T0}, 31, v{L}'); k(f'v_lshrrev_b32 v{T1}, 5, v{L}'); k(f'v_bfe_u32 v{T2}, v{T0}, 1, 3')
    k(f'v_xor_b32 v{T1}, v{T1}, v{T2}'); k(f'v_lshlrev_b32 v{T1}, 4, v{T1}')
    k(f's_lshl_b32 s{T}, s{S_WR_}, 13'); k(f'v_lshl_add_u32 v{T0}, v{T0}, 7, s{T}')
    for ks in range(4):
        k(f'v_xor_b32 v{V_XA+ks}, {ks*32}, v{T1}'); k(f'v_add_u32 v{V_XA+ks}, v{V_XA+ks}, v{T0}')
    k(f'v_bfe_u32 v{T0}, v{L}, 4, 1'); k(f'v_bfe_u32 v{T1}, v{L}, 2, 2')
    k(f'v_lshrrev_b32 v{T2}, 1, v{T1}'); k(f'v_lshl_or_b32 v{T2}, v{T0}, 1, v{T2}')
    k(f'v_lshlrev_b32 v{T0}, 13, v{T0}'); k(f'v_lshl_add_u32 v{T0}, v{T1}, 7, v{T0}')
    k(f'v_lshrrev_b32 v{T1}, 5, v{L}'); k(f'v_lshl_add_u32 v{T0}, v{T1}, 10, v{T0}')
    k(f'v_and_b32 v{T1}, 3, v{L}'); k(f'v_lshl_add_u32 v{T0}, v{T1}, 3, v{T0}'); k(f'v_add_u32 v{T0}, {L_W}, v{T0}')
    k(f's_lshl_b32 s{T}, s{S_WC}, 1')
    for t in range(2):
        k(f's_add_u32 s{T+1}, s{T}, {t}'); k(f'v_xor_b32 v{T1}, s{T+1}, v{T2}'); k(f'v_lshl_add_u32 v{V_WA+t}, v{T1}, 5, v{T0}')
    k(f's_lshl_b32 s{T}, s{S_WC}, 11'); k(f's_add_u32 s{T}, s{T}, {L_W}'); k(f'v_lshl_add_u32 v{V_FA}, v{L}, 4, s{T}')
    k(f's_mul_i32 s{T}, s{S_WR_}, {2*112*1024}'); k(f'v_lshl_add_u32 v{V_HO}, v{L}, 4, s{T}')
    k(f's_mul_i32 s{S_HO}, s{S_RB}, {4*112*1024}'); k(f's_add_u32 s{S_HO}, s{S_HO}, {WS_H}')
    k(f's_lshl_b32 s{T}, s{S_CB}, 3'); k(f's_lshl_b32 s{T+1}, s{S_G}, 2'); k(f's_add_u32 s{T+1}, s{T+1}, 92')
    k(f's_cmp_ge_u32 s{S_CB}, 12'); k(f's_cselect_b32 s{T}, s{T+1}, s{T}')
    k(f's_lshl_b32 s{T+1}, s{S_WC}, 1'); k(f's_add_u32 s{T}, s{T}, s{T+1}'); k(f's_lshl_b32 s{T}, s{T}, 10'); k(f's_add_u32 s{S_HO}, s{S_HO}, s{T}')
    k(f'v_and_b32 v{T0}, 15, v{L}'); k(f'v_mul_u32_u24 v{T0}, 528, v{T0}')
    k(f'v_bfe_u32 v{T1}, v{L}, 4, 1'); k(f'v_lshl_add_u32 v{T0}, v{T1}, 3, v{T0}')
    k(f'v_lshrrev_b32 v{T1}, 5, v{L}'); k(f'v_lshl_add_u32 v{T0}, v{T1}, 4, v{T0}')
    k(f's_mul_i32 s{T}, s{S_WC}, {32*528}'); k(f's_lshl_b32 s{T+1}, s{S_WR_}, 8'); k(f's_add_u32 s{T}, s{T}, s{T+1}')
    k(f'v_add_u32 v{V_UTW}, s{T}, v{T0}')
    k(f'v_lshrrev_b32 v{T0}, 5, v{L}'); k(f'v_mul_u32_u24 v{T0}, 528, v{T0}')
    k(f'v_and_b32 v{T1}, 31, v{L}'); k(f'v_lshl_add_u32 v{T0}, v{T1}, 4, v{T0}')
    k(f's_mul_i32 s{T}, s{S_WV}, {16*528}'); k(f'v_add_u32 v{V_UTR}, s{T}, v{T0}')
    k(f'v_lshrrev_b32 v{T0}, 5, v{L}'); k(f'v_lshlrev_b32 v{T0}, 13, v{T0}'); k(f'v_lshl_add_u32 v{T0}, v{T1}, 4, v{T0}')
    k(f's_lshl_b32 s{T}, s{S_WV}, 17'); k(f'v_add_u32 v{V_UO}, s{T}, v{T0}')
    k(f's_lshl_b32 s{S_UO}, s{S_G}, 19'); k(f's_lshl_b32 s{T}, s{S_RB}, 9'); k(f's_add_u32 s{S_UO}, s{S_UO}, s{T}'); k(f's_add_u32 s{S_UO}, s{S_UO}, {WS_U}')
    k(f'v_cmp_eq_u32 vcc, 0, v{L}'); k(f'v_mov_b32 v{T0}, 0x7fffffff'); k('s_nop 0'); k(f'v_cndmask_b32 v{V_L0}, v{T0}, 0, vcc')
    for i in range(4): k(f'v_mov_b32 v{V_ONE+i}, 0x3f803f80')
    for e in range(2):
        for i in range(1, 4): k(f'v_mov_b32 v{V_BX+4*e+i}, 0')
def side_loads(k, vm):
    L, T0 = V_L, V_A0
    k(f's_lshl_b32 s{T}, s{S_RB}, 7'); k(f's_lshl_b32 s{T+1}, s{S_CB}, 3'); k(f's_add_u32 s{T}, s{T}, s{T+1}')
    k(f's_lshl_b32 s{T+1}, s{S_WV}, 1'); k(f's_add_u32 s{S_A}, s{T}, s{T+1}')
    k(f's_lshl_b32 s{T}, s{S_A}, 10'); k(f'v_lshlrev_b32 v{T0}, 4, v{L}')
    for e in range(2):
        vm.issue(f'buffer_load_dwordx4 v[{V_SR+4*e}:{V_SR+4*e+3}], v{T0}, s[{S_X}:{S_X+3}], s{T} offen offset:{e*1024}', 'srow')
    k(f's_lshl_b32 s{T}, s{S_WV}, 9'); k(f's_add_u32 s{T}, s{T}, s{S_K2}'); k(f's_mul_i32 s{T}, s{T}, 514')
    k(f's_lshl_b32 s{T+1}, s{S_CBLK}, 7'); k(f's_add_u32 s{T}, s{T}, s{T+1}'); k(f's_add_u32 s{T}, s{T}, 2')
    k(f'v_lshlrev_b32 v{V_A1}, 1, v{L}')
    for i in range(8):
        if i: k(f's_add_u32 s{T}, s{T}, {64*514}')
        vm.issue(f'buffer_load_ushort v{V_WTD+i}, v{V_A1}, s[{S_WR}:{S_WR+3}], s{T} offen', 'wtl')
        vm.issue(f'buffer_load_ushort v{V_WTD+8+i}, v{V_A1}, s[{S_WI}:{S_WI+3}], s{T} offen', 'wtl')
def stats_code(k, vm):
    X = [192, 200]; S0, S1, Q0, Q1, A = 208, 209, 210, 211, 212
    vm.wait('srow')
    for i in range(4):
        for e in range(2):
            k(f'v_lshlrev_b32 v{X[e]+2*i}, 16, v{V_SR+4*e+i}'); k(f'v_and_b32 v{X[e]+2*i+1}, 0xffff0000, v{V_SR+4*e+i}')
    S = [S0, S1]; Q = [Q0, Q1]
    for e in range(2): k(f'v_add_f32 v{S[e]}, v{X[e]}, v{X[e]+1}'); k(f'v_mul_f32 v{Q[e]}, v{X[e]}, v{X[e]}')
    for e in range(2): k(f'v_fma_f32 v{Q[e]}, v{X[e]+1}, v{X[e]+1}, v{Q[e]}')
    for i in range(2, 8):
        for e in range(2): k(f'v_add_f32 v{S[e]}, v{S[e]}, v{X[e]+i}'); k(f'v_fma_f32 v{Q[e]}, v{X[e]+i}, v{X[e]+i}, v{Q[e]}')
    k('s_nop 1')
    k(f'v_permlane32_swap_b32 v{S0}, v{S1}'); k(f'v_permlane32_swap_b32 v{Q0}, v{Q1}'); k('s_nop 0')
    k(f'v_add_f32 v{S0}, v{S0}, v{S1}'); k(f'v_add_f32 v{Q0}, v{Q0}, v{Q1}'); k('s_nop 1')
    k(f'v_permlane16_swap_b32 v{S0}, v{Q0}'); k('s_nop 1')
    k(f'v_add_f32 v{S0}, v{S0}, v{Q0}')
    for r in (8, 4, 2, 1):
        k('s_nop 1'); k(f'v_add_f32_dpp v{S0}, v{S0}, v{S0} row_ror:{r} row_mask:0xf bank_mask:0xf')
    k(f'v_mov_b32 v{Q0}, v{S0}'); k('s_nop 1')
    k(f'v_permlane16_swap_b32 v{S0}, v{Q0}'); k('s_nop 1')
    k(f'v_mul_f32 v{S0}, 0x3b000000, v{S0}'); k(f'v_mul_f32 v{Q0}, 0x3b000000, v{Q0}')
    k(f'v_fma_f32 v{Q0}, -v{S0}, v{S0}, v{Q0}'); k(f'v_max_f32 v{Q0}, 0, v{Q0}')
    k(f'v_cvt_pk_bf16_f32 v{S0}, v{S0}, v{Q0}')
    k(f'v_and_b32 v{Q0}, 0xffff0000, v{S0}'); k(f'v_add_f32 v{Q0}, 0x3727c5ac, v{Q0}')
    k(f'v_cvt_pk_bf16_f32 v{Q0}, v{Q0}, v{Q0}'); k(f'v_and_b32 v{Q0}, 0xffff0000, v{Q0}')
    k(f'v_sqrt_f32 v{Q0}, v{Q0}'); k(f'v_mov_b32 v{A}, 0xffff')
    k(f'v_cvt_pk_bf16_f32 v{Q0}, v{Q0}, v{Q0}')
    k(f'v_bfi_b32 v{S1}, v{A}, v{S0}, v{Q0}'); k(f'v_mov_b32 v{Q0}, s{S_NON}')
    k(f'v_and_b32 v{A}, 31, v{V_L}'); k(f'v_cmp_eq_u32 vcc, 0, v{A}'); k(f'v_lshrrev_b32 v{A}, 2, v{V_L}'); k(f'v_mov_b32 v{A+1}, 0x7fffffff')
    k(f's_lshl_b32 s{S_B}, s{S_A}, 3'); k(f'v_cndmask_b32 v{A}, v{A+1}, v{A}, vcc'); k(f's_add_u32 s{S_B}, s{S_B}, {WS_ST}')
    k(f'v_mov_b32 v{S0}, v{S1}'); k(f'v_mov_b32 v{S1}, v{Q0}')
    vm.issue(f'buffer_store_dwordx2 v[{S0}:{S1}], v{A}, s[{S_WS}:{S_WS+3}], s{S_B} offen sc1', 'stst')
def wt_code(k, vm):
    L = V_L
    vm.wait('wtl')
    for i in range(8): k(f'v_lshl_or_b32 v{V_WTD+i}, v{V_WTD+8+i}, 16, v{V_WTD+i}')
    k(f'v_mul_u32_u24 v{V_A0}, 144, v{L}'); k(f's_lshl_b32 s{S_B}, s{S_WV}, 5'); k(f's_add_u32 s{S_B}, s{S_B}, {L_WTB}'); k(f'v_add_u32 v{V_A0}, s{S_B}, v{V_A0}')
    k(f'ds_write_b128 v{V_A0}, v[{V_WTD}:{V_WTD+3}]'); k(f'ds_write_b128 v{V_A0}, v[{V_WTD+4}:{V_WTD+7}] offset:16')
    k(f'v_lshrrev_b32 v{V_A0}, 3, v{L}'); k(f's_lshl_b32 s{S_B}, s{S_WV}, 4'); k(f'v_add_u32 v{V_A0}, s{S_B}, v{V_A0}')
    k(f'v_and_b32 v{V_A1}, 7, v{L}'); k(f'v_lshlrev_b32 v{V_A1}, 4, v{V_A1}')
    k(f'v_mul_u32_u24 v{V_A2}, 144, v{V_A0}'); k(f'v_add_u32 v{V_A2}, v{V_A2}, v{V_A1}'); k(f'v_add_u32 v{V_A2}, {L_WTB}, v{V_A2}')
    k(f'v_lshlrev_b32 v{V_A0}, 13, v{V_A0}'); k(f'v_add_u32 v{V_A0}, v{V_A0}, v{V_A1}'); k(f'v_add_u32 v{V_A1}, {8*8192}, v{V_A0}')
    k(f's_lshl_b32 s{S_B}, s{S_CBLK}, 19'); k(f's_lshl_b32 s{S_C_}, s{S_K2}, 7'); k(f's_add_u32 s{S_B}, s{S_B}, s{S_C_}'); k(f's_add_u32 s{S_B}, s{S_B}, {WS_WT}')
    k('s_waitcnt lgkmcnt(0)'); k('s_barrier')
    k(f'ds_read_b128 v[{V_WTD}:{V_WTD+3}], v{V_A2}'); k(f'ds_read_b128 v[{V_WTD+4}:{V_WTD+7}], v{V_A2} offset:{8*144}')
    k('s_waitcnt lgkmcnt(0)')
    vm.issue(f'buffer_store_dwordx4 v[{V_WTD}:{V_WTD+3}], v{V_A0}, s[{S_WS}:{S_WS+3}], s{S_B} offen sc1', 'wtst')
    vm.issue(f'buffer_store_dwordx4 v[{V_WTD+4}:{V_WTD+7}], v{V_A1}, s[{S_WS}:{S_WS+3}], s{S_B} offen sc1', 'wtst')
class LG:
    def __init__(self, k): self.k = k; self.q = []; self.ever = set()
    def issue(self, text, tag=None): self.k(text); self.q.append(tag); self.ever.add(tag)
    def wait(self, tag):
        idx = [i for i, t in enumerate(self.q) if t == tag]
        if not idx: return
        n = len(self.q) - 1 - idx[-1]
        self.k(f's_waitcnt lgkmcnt({min(n, 15)})')
        self.q = self.q[idx[-1]+1:] if n <= 15 else self.q[len(self.q)-15:]
    def drain(self): self.k('s_waitcnt lgkmcnt(0)'); self.q = []
class Sched2:
    def __init__(self, k, vm, lg): self.k = k; self.vm = vm; self.lg = lg; self.q = []; self.lo = []
    def add(self, items, lo=False): (self.lo if lo else self.q).extend(items)
    def emit(self, e):
        if isinstance(e, tuple):
            if e[0] == 'vm': self.vm.issue(e[1], e[2]); return 1
            if e[0] == 'ds': self.lg.issue(e[1], e[2] if len(e) > 2 else None); return 1
            if e[0] == 'call': e[1](); return e[2] if len(e) > 2 else 1
            if e[0] == 'grp':
                return sum(self.emit(x) for x in e[1])
        self.k(e); return 1
    def pop(self, budget):
        c = 0
        while c < budget and (self.q or self.lo):
            c += self.emit((self.q or self.lo).pop(0))
        return c
    def flush(self):
        while self.q or self.lo: self.emit((self.q or self.lo).pop(0))
def ffn_unit(p, t, e):
    a = acc(p, t, e); E = ET
    out = []
    for half in range(2):
        for r in range(4): out.append(f'v_mul_f32 v{E+r}, v{a+4*half+r}, v{V_C1+e}')
        for r in range(4): out.append(f'v_exp_f32 v{E+r}, v{E+r}')
        for r in range(4): out.append(f'v_mul_f32 v{a+4*half+r}, v{a+4*half+r}, v{a+8+4*half+r}')
        for r in range(4): out.append(f'v_fma_f32 v{E+r}, v{E+r}, v{V_C2+e}, v{V_C2+e}')
        for r in range(4): out.append(f'v_rcp_f32 v{E+r}, v{E+r}')
        if half == 0:
            out.append('s_nop 0')
        else:
            out.append(f's_add_u32 s{S_EP}, s{S_HO}, {(4*p + t)*1024 + e*112*1024}')
        for r in range(4): out.append(f'v_mul_f32 v{a+4*half+r}, v{a+4*half+r}, v{E+r}')
        out.append(f'v_cvt_pk_bf16_f32 v{E+4+2*half}, v{a+4*half}, v{a+4*half+1}')
        out.append(f'v_cvt_pk_bf16_f32 v{E+5+2*half}, v{a+4*half+2}, v{a+4*half+3}')
    out.append(('vm', f'buffer_store_dwordx4 v[{E+4}:{E+7}], v{V_HO}, s[{S_WS}:{S_WS+3}], s{S_EP} offen sc1', 'hst'))
    return out
def p1_body(k, isB, st):
    nm = 'B' if isB else 'A'
    vm = VM(k); lg = LG(k); sc = Sched2(k, vm, lg)
    L = V_L
    def dma_group(i):
        p, s_ = i >> 3, i & 7; slot = i & 3
        it = [f's_add_u32 s{T}, s{S_ROT}, {s_}', f's_and_b32 s{T}, s{T}, 7']
        if i < 8:
            it += [f's_lshl_b32 s{T+1}, s{T}, 7', f's_add_u32 m0, s{S_MX}, {L_X + slot*16384}', f's_add_u32 s{S_SX}, s{S_XO}, s{T+1}']
            for e in range(4):
                it.append(('vm', f'buffer_load_dwordx4 v{V_XD+e}, s[{S_X}:{S_X+3}], s{S_SX} offen offset:{e*1024} lds', ('st', i)))
        if isB and p == 0:
            it += [f's_lshl_b32 s{T+1}, s{T}, 14', f's_add_u32 m0, s{S_MX}, {L_W + slot*16384}', f's_add_u32 s{S_SW}, s{S_FO}, s{T+1}']
            for e in range(4):
                it.append(('vm', f'buffer_load_dwordx4 v{V_FD}, s[{S_TAB}:{S_TAB+3}], s{S_SW} offen offset:{e*1024} lds', ('st', i)))
        else:
            it += [f's_mul_i32 s{T+1}, s{T}, {64*3584}', f's_add_u32 m0, s{S_MW1}, {slot*16384}', f's_add_u32 s{S_SW}, s{S_WO0 if p == 0 else S_WO1}, s{T+1}']
            for e in range(2):
                it.append(('vm', f'buffer_load_dwordx4 v{V_W1D+e}, s[{S_W1}:{S_W1+3}], s{S_SW} offen offset:{e*1024} lds', ('st', i)))
            it += [f's_add_u32 m0, s{S_MW1}, {slot*16384 + 8192}', 's_nop 0']
            for e in range(2):
                it.append(('vm', f'buffer_load_dwordx4 v{V_W3D+e}, s[{S_W3}:{S_W3+3}], s{S_SW} offen offset:{e*1024} lds', ('st', i)))
        return it
    def reads(n):
        i, ks = n >> 2, n & 3
        p = i >> 3; slot = i & 3; b0 = AF + 8*(n % 3)
        out = []
        if p == 0:
            kk = 4*i + ks
            for e in range(2):
                a = xf(e, kk)
                out.append(('ds', f'ds_read_b128 a[{a}:{a+3}], v{V_XA+ks} offset:{slot*16384 + e*4096}', ('fr', n)))
        for t in range(2):
            b = b0 + 4*t
            if isB and p == 0:
                out.append(('ds', f'ds_read_b128 v[{b}:{b+3}], v{V_FA} offset:{slot*16384 + (ks*4+t)*1024}', ('fr', n)))
            else:
                for part in range(2):
                    out.append(('ds', f'ds_read_b64_tr_b16 v[{b+2*part}:{b+2*part+1}], v{V_WA+t} offset:{slot*16384 + (16*ks+4*part)*128}', ('fr', n)))
        return out
    srd(k, S_WR, 66, 67, 2048*257*2); srd(k, S_WI, 68, 69, 2048*257*2)
    side_loads(k, vm)
    for x in dma_group(0) + dma_group(1): sc.emit(x)
    prologue2(k)
    for x in dma_group(2) + dma_group(3): sc.emit(x)
    k('s_waitcnt lgkmcnt(0)')
    k(f's_mul_i32 s{S_NON}, s{S_NON}, 0x19660D'); k(f's_add_u32 s{S_NON}, s{S_NON}, 0x3C6EF35F')
    if st: st.stamp('issued')
    stats_code(k, vm)
    wt_code(k, vm)
    if st: st.stamp('side')
    vm.wait(('st', 0)); k('s_barrier')
    if st: st.stamp('st0')
    for x in reads(0) + reads(1): sc.emit(x)
    ev = {}
    evlo = {}
    def at(n, items, lo=False): (evlo if lo else ev).setdefault(n, []).extend(items)
    def flag_store(off_items, tag):
        lab = f'L_fl_{nm}_{tag}'
        return ('grp', [f's_cmp_lg_u32 s{S_WV}, 0', f's_cbranch_scc1 {lab}'] + off_items +
                [f'v_mov_b32 v{V_SR}, s{S_NON}',
                 ('call', lambda: k(f'buffer_store_dword v{V_SR}, v{V_L0}, s[{S_WS}:{S_WS+3}], s{S_F0} offen sc1')), lab + ':'])
    bar_pre = {}
    bar_post = {}
    bar_pre[6] = ['wtst']
    bar_post[6] = [flag_store([f's_lshl_b32 s{S_F0}, s{S_CBLK}, 8', f's_lshl_b32 s{S_F1}, s{S_K2}, 2', f's_add_u32 s{S_F0}, s{S_F0}, s{S_F1}', f's_add_u32 s{S_F0}, s{S_F0}, {WS_WTF}'], 'wt')]
    CT = ET + 8
    def cs_prod(p):
        if isB and p == 0: return
        n0 = 32*p
        direct.setdefault(n0, []).extend([f's_add_u32 s{S_D}, s{S_WR_}, 1', f's_cmp_eq_u32 s{S_PAR}, {p}', f's_cselect_b32 s{S_D}, s{S_D}, 0'])
        for ks in range(4):
            n = n0 + ks; b0 = AF + 8*(n % 3)
            g = []
            for t in range(2):
                lab = f'L_cs_{nm}_{p}_{ks}_{t}'
                g += [f's_cmp_eq_u32 s{S_D}, {1+t}', f's_cbranch_scc0 {lab}',
                      f'v_mfma_f32_32x32x16_bf16 v[{CT}:{CT+15}], v[{V_ONE}:{V_ONE+3}], v[{b0+4*t}:{b0+4*t+3}], ' + ('0' if ks == 0 else f'v[{CT}:{CT+15}]'), lab + ':']
            cs_at.setdefault(n, []).append(('grp', g))
        lab = f'L_csst_{nm}_{p}'
        at(n0 + 6, [('grp', [f's_cmp_eq_u32 s{S_D}, 0', f's_cbranch_scc1 {lab}',
                             f's_lshl_b32 s{S_B}, s{S_CB}, 3', f's_lshl_b32 s{S_C_}, s{S_WC}, 1', f's_add_u32 s{S_B}, s{S_B}, s{S_C_}', f's_add_u32 s{S_B}, s{S_B}, s{S_WR_}',
                             f's_add_u32 s{S_B}, s{S_B}, {4*p}', f's_lshl_b32 s{S_B}, s{S_B}, 3', f's_add_u32 s{S_B}, s{S_B}, s{S_ROT}', f's_lshl_b32 s{S_B}, s{S_B}, 8', f's_add_u32 s{S_B}, s{S_B}, {WS_CS}',
                             f'v_mov_b32 v{CT+1}, s{S_NON}', f'v_lshlrev_b32 v{V_A0}, 3, v{L}', f'v_cmp_gt_u32 vcc, 32, v{L}', f'v_mov_b32 v{V_A1}, 0x7fffffff', 's_nop 0',
                             f'v_cndmask_b32 v{V_A0}, v{V_A1}, v{V_A0}, vcc',
                             ('call', lambda: k(f'buffer_store_dwordx2 v[{CT}:{CT+1}], v{V_A0}, s[{S_WS}:{S_WS+3}], s{S_B} offen sc1')), lab + ':'])])
    cs_at = {}; direct = {}
    cs_prod(0); cs_prod(1)
    stl = [f'buffer_load_dwordx2 v[{V_STG+2*e}:{V_STG+2*e+1}], v{V_A2+e}, s[{S_WS}:{S_WS+3}], s{S_C_} offen sc1' for e in range(2)]
    staddr = [f'v_and_b32 v{V_A0}, 31, v{L}',
              f'v_and_b32 v{V_A1}, 3, v{V_A0}', f'v_lshlrev_b32 v{V_A2}, 8, v{V_A1}',
              f'v_lshrrev_b32 v{V_A1}, 3, v{V_A0}', f'v_lshl_add_u32 v{V_A2}, v{V_A1}, 4, v{V_A2}',
              f'v_bfe_u32 v{V_A1}, v{V_A0}, 2, 1', f'v_lshl_add_u32 v{V_A2}, v{V_A1}, 3, v{V_A2}',
              f's_lshl_b32 s{S_C_}, s{S_WR_}, 7', f'v_add_u32 v{V_A2}, s{S_C_}, v{V_A2}',
              f'v_add_u32 v{V_A3}, 64, v{V_A2}',
              f's_lshl_b32 s{S_C_}, s{S_RB}, 10', f's_add_u32 s{S_C_}, s{S_C_}, {WS_ST}']
    at(7, staddr + [('vm', l, 'stg') for l in stl])
    def st_check():
        vm.wait('stg')
        tag_check(k, f'st{nm}', [V_STG+1, V_STG+3], staddr + stl)
    stc = [('call', st_check, 8)]
    for e in range(2):
        d = V_STG + 2*e
        stc += [f'v_and_b32 v{d+1}, 0xffff0000, v{d}',
                f'v_and_b32 v{d}, 0xffff, v{d}', f'v_xor_b32 v{d}, 0x8000, v{d}', f'v_lshl_or_b32 v{d}, v{d}, 16, v{d}',
                f'v_mul_f32 v{V_C2+e}, v{d+1}, v{d+1}', f'v_rcp_f32 v{d+1}, v{d+1}', f'v_cmp_gt_u32 vcc, 32, v{L}', 's_nop 0',
                f'v_mul_f32 v{V_C1+e}, 0xbfb8aa3b, v{d+1}', f'v_cndmask_b32 v{V_BX+4*e}, 0, v{d}, vcc']
        if isB:
            stc += [f'v_and_b32 v{V_A0}, 31, v{L}', f'v_lshlrev_b32 v{V_A0}, 2, v{V_A0}', f's_lshl_b32 s{S_C_}, s{S_WR_}, 8', f's_add_u32 s{S_C_}, s{S_C_}, {L_RS + 128*e}',
                    f'v_add_u32 v{V_A0}, s{S_C_}, v{V_A0}', ('ds', f'ds_write_b32 v{V_A0}, v{d+1}')]
    at(12, stc)
    def cs_cons(p):
        if isB and p == 0: return
        n0 = 32*p
        addr = [f'v_and_b32 v{V_A0}, 31, v{L}', f'v_lshlrev_b32 v{V_A0}, 3, v{V_A0}', f'v_lshrrev_b32 v{V_A1}, 5, v{L}', f'v_lshl_add_u32 v{V_A0}, v{V_A1}, 10, v{V_A0}',
                f's_lshl_b32 s{S_B}, s{S_CB}, 3', f's_lshl_b32 s{S_C_}, s{S_WC}, 1', f's_add_u32 s{S_B}, s{S_B}, s{S_C_}', f's_add_u32 s{S_B}, s{S_B}, s{S_WR_}',
                f's_add_u32 s{S_B}, s{S_B}, {4*p}', f's_lshl_b32 s{S_B}, s{S_B}, 11', f's_add_u32 s{S_B}, s{S_B}, {WS_CS}']
        lds = [f'buffer_load_dwordx2 v[{V_CSG+2*i}:{V_CSG+2*i+1}], v{V_A0}, s[{S_WS}:{S_WS+3}], s{S_B} offen offset:{i*256} sc1' for i in range(4)]
        at(n0 + (17 if p == 0 else 13), addr + [('vm', l, f'csg{p}') for l in lds])
        def chk():
            vm.wait(f'csg{p}')
            tag_check(k, f'cs{nm}{p}', [V_CSG+1, V_CSG+3, V_CSG+5, V_CSG+7], addr + lds)
        g = V_CSG
        at(n0 + (21 if p == 0 else 18), [('call', chk, 12),
                     f'v_add_f32 v{g}, v{g}, v{g+2}', f'v_add_f32 v{g+4}, v{g+4}, v{g+6}', f'v_add_f32 v{g}, v{g}, v{g+4}', f'v_mov_b32 v{g+1}, v{g}', 's_nop 1',
                     f'v_permlane32_swap_b32 v{g}, v{g+1}', 's_nop 0', f'v_add_f32 v{g}, v{g}, v{g+1}',
                     f'v_cvt_pk_bf16_f32 v{g+1}, v{g}, v{g}', f'v_and_b32 v{g+1}, 0xffff0000, v{g+1}', f'v_sub_f32 v{g+2}, v{g}, v{g+1}',
                     f'v_cvt_pk_bf16_f32 v{g+4}, v{g+1}, v{g+2}', f'v_cmp_gt_u32 vcc, 32, v{L}', f'v_mov_b32 v{g+5}, 0', f'v_mov_b32 v{g+6}, 0',
                     f'v_cndmask_b32 v{g+4}, 0, v{g+4}, vcc', f'v_mov_b32 v{g+7}, 0',
                     f's_lshl_b32 s{S_C_}, s{S_WC}, 1', f's_add_u32 s{S_C_}, s{S_C_}, s{S_WR_}', f's_lshl_b32 s{S_C_}, s{S_C_}, 10', f's_add_u32 s{S_C_}, s{S_C_}, {L_AX}',
                     f'v_lshl_add_u32 v{V_A0}, v{L}, 4, s{S_C_}', ('ds', f'ds_write_b128 v{V_A0}, v[{g+4}:{g+7}]', f'axw{p}')])
        bar_lg.setdefault(n0 + 26, []).append(f'axw{p}')
        AX = V_WTD
        rd = [f's_lshl_b32 s{S_C_}, s{S_WC}, 11', f's_add_u32 s{S_C_}, s{S_C_}, {L_AX}', f'v_lshl_add_u32 v{V_A0}, v{L}, 4, s{S_C_}',
              ('ds', f'ds_read_b128 v[{AX}:{AX+3}], v{V_A0}'), ('ds', f'ds_read_b128 v[{AX+4}:{AX+7}], v{V_A0} offset:1024', f'axr{p}')]
        at(n0 + 26, rd)
        mm = [('call', lambda: lg.wait(f'axr{p}'))]
        for t in range(2):
            for e in range(2):
                a = acc(p, t, e)
                mm.append(f'v_mfma_f32_32x32x16_bf16 v[{a}:{a+15}], v[{AX+4*t}:{AX+4*t+3}], v[{V_BX+4*e}:{V_BX+4*e+3}], v[{a}:{a+15}]')
        at(n0 + 29, mm)
    bar_lg = {}
    cs_cons(0); cs_cons(1)
    if not isB:
        items = []
        for t in range(2):
            for e in range(2): items += ffn_unit(0, t, e)
        at(33, items, lo=True)
    else:
        items = []
        RS = V_WTD
        for e in range(2):
            items += [f'v_lshrrev_b32 v{V_EA}, 5, v{L}', f'v_lshlrev_b32 v{V_EA}, 4, v{V_EA}', f's_lshl_b32 s{S_EP}, s{S_WR_}, 8', f's_add_u32 s{S_EP}, s{S_EP}, {L_RS + 128*e}',
                      f'v_add_u32 v{V_EA}, s{S_EP}, v{V_EA}']
            for q in range(4): items.append(('ds', f'ds_read_b128 v[{RS+4*q}:{RS+4*q+3}], v{V_EA} offset:{q*32}', f'rs{e}'))
            items.append(('call', lambda e=e: lg.wait(f'rs{e}')))
            for t in range(2):
                a = acc(0, t, e)
                for q in range(4):
                    for r in range(4): items.append(f'v_mul_f32 v{a+4*q+r}, v{a+4*q+r}, v{RS+4*q+r}')
                    E = ET + 2*(q & 3)
                    items.append(f'v_cvt_pk_bf16_f32 v{E}, v{a+4*q}, v{a+4*q+1}'); items.append(f'v_cvt_pk_bf16_f32 v{E+1}, v{a+4*q+2}, v{a+4*q+3}')
                    items.append(('ds', f'ds_write_b64 v{V_UTW}, v[{E}:{E+1}] offset:{L_UT + t*16*528 + e*128 + q*32}', 'utw_last' if (e, t, q) == (1, 1, 3) else 'utw'))
        at(33, items, lo=True)
        UTB = 50
        bar_lg.setdefault(UTB, []).append('utw_last')
        rb = []
        for half in range(2):
            for e in range(4):
                E = ET + 4*e
                rb.append(('ds', f'ds_read_b128 v[{E}:{E+3}], v{V_UTR} offset:{L_UT + (4*half+e)*2*528}', f'utr{half}'))
            rb.append(('call', lambda half=half: lg.wait(f'utr{half}')))
            for e in range(4):
                E = ET + 4*e
                rb.append(f's_add_u32 s{S_EP}, s{S_UO}, {(4*half+e)*2*8192}')
                rb.append(('vm', f'buffer_store_dwordx4 v[{E}:{E+3}], v{V_UO}, s[{S_WS}:{S_WS+3}], s{S_EP} offen sc1', 'ust_last' if (half, e) == (1, 3) else 'ust'))
            rb.append('s_nop 0'); rb.append('s_nop 0')
        at(UTB, rb, lo=True)
        bar_pre[58] = ['ust_last']
        bar_post[58] = [flag_store([f's_lshl_b32 s{S_F0}, s{S_G}, 7', f's_lshl_b32 s{S_F1}, s{S_RB}, 2', f's_add_u32 s{S_F0}, s{S_F0}, s{S_F1}', f's_add_u32 s{S_F0}, s{S_F0}, {WS_UF}'], 'u')]
    NST = 64
    for n in range(NST):
        i, ks = n >> 2, n & 3
        p = i >> 3
        mand = []
        if ks == 2 and i + 1 < 16:
            for tg in bar_pre.get(n, []): assert tg in vm.ever, (n, tg)
            for tg in bar_lg.get(n, []): assert tg in lg.ever, (n, tg)
            vm.wait_many([('st', i + 1)] + bar_pre.get(n, []))
            for tg in bar_lg.get(n, []): lg.wait(tg)
            k('s_barrier')
            for x in bar_post.get(n, []): sc.emit(x)
            if i >= 1 and i + 3 < 16: mand += dma_group(i + 3)
        elif ks == 2:
            assert n not in bar_pre and n not in bar_lg
        rd = reads(n + 2) if n + 2 < NST else []
        if n in ev: sc.add(ev.pop(n))
        if n in evlo: sc.add(evlo.pop(n), lo=True)
        for x in direct.get(n, []): k(x)
        lg.wait(('fr', n))
        if st and n in (8, 16, 24, 32, 40, 48, 56): st.stamp(f'n{n}')
        kk = 4*(i & 7) + ks
        b0 = AF + 8*(n % 3)
        mand = rd + mand
        gap = 0
        for t in range(2):
            for e in range(2):
                a = acc(p, t, e); d = f'v[{a}:{a+15}]'; c = '0' if kk == 0 else d
                x = f'a[{xf(e, kk)}:{xf(e, kk)+3}]'; w = f'v[{b0+4*t}:{b0+4*t+3}]'
                if isB and p == 0: k(f'v_mfma_f32_32x32x16_bf16 {d}, {x}, {w}, {c}')
                else: k(f'v_mfma_f32_32x32x16_bf16 {d}, {w}, {x}, {c}')
                used = 0
                nm_ = (len(mand) + (3 - gap)) // (4 - gap)
                for _ in range(nm_):
                    used += sc.emit(mand.pop(0))
                if gap == 3 and n in cs_at:
                    for x_ in cs_at[n]: used += sc.emit(x_)
                sc.pop(max(0, BUDGET - used))
                gap += 1
        assert not mand
    assert not ev and not evlo, (ev.keys(), evlo.keys())
    if st: st.stamp('mfma_done')
    sc.flush()
    k.nop(9)
    for t in range(2):
        for e in range(2):
            for x in ffn_unit(1, t, e): sc.emit(x)
    lg.drain()
    return vm
BUDGET = 4
def remap_temps(items, lo, new, n):
    import re
    def f(s):
        def r1(m):
            v = int(m.group(1)); return f'v{v - lo + new}' if lo <= v < lo + n else m.group(0)
        def r2(m):
            a, b = int(m.group(1)), int(m.group(2))
            return f'v[{a-lo+new}:{b-lo+new}]' if lo <= a < lo + n else m.group(0)
        s = re.sub(r'v\[(\d+):(\d+)\]', r2, s)
        return re.sub(r'\bv(\d+)\b', r1, s)
    out = []
    for e in items:
        if isinstance(e, str): out.append(f(e))
        elif e[0] in ('vm', 'ds'): out.append((e[0], f(e[1])) + tuple(e[2:]))
        else: out.append(e)
    return out
UF, E64, E32, TW, WT_, D_, T_, B_, FB = 8, 40, 72, 96, 112, 120, 136, 152, 160
A_U, A_W = 2, 3
V_YW0, V_YW1, V_YR0, V_YR1, V_TMP, V_TMP2, V_PL = 192, 193, 194, 195, 196, 197, 198
V_L0B, V_TSB = 199, 212
def mf16(d, a, b, c):
    return f'v_mfma_f32_16x16x32_bf16 v[{d}:{d+3}], v[{a}:{a+3}], v[{b}:{b+3}], ' + ('0' if c is None else f'v[{c}:{c+3}]')
def flag_store_now(k, off_items, lab):
    k(f's_cmp_lg_u32 s{S_WV}, 0'); k(f's_cbranch_scc1 {lab}')
    for x in off_items: k(x)
    k(f'v_mov_b32 v{V_PL}, s{S_NON}')
    k(f'buffer_store_dword v{V_PL}, v{V_L0B}, s[{S_WS}:{S_WS+3}], s{S_F0} offen sc1')
    k.label(lab)
def p2a_consts(k, vm):
    L = V_L; S0 = T
    k(f'v_lshlrev_b32 v{V_TMP}, 4, v{L}')
    k(f's_lshl_b32 s{S0+4}, s{S_WV}, 13'); k(f's_add_u32 s{S0+4}, s{S0+4}, {TAB_E64}'); k(f's_add_u32 s{S0+5}, s{S0+4}, 4096')
    for idx in range(8):
        r = E64 + 4*idx
        vm.issue(f'buffer_load_dwordx4 v[{r}:{r+3}], v{V_TMP}, s[{S_TAB}:{S_TAB+3}], s{S0+4+(idx>>2)} offen offset:{(idx&3)*1024}', 'e64')
    k(f's_lshl_b32 s{S0+3}, s{S_WV}, 12'); k(f's_add_u32 s{S0+3}, s{S0+3}, {TAB_TW}')
    for i in range(4):
        vm.issue(f'buffer_load_dwordx4 v[{TW+4*i}:{TW+4*i+3}], v{V_TMP}, s[{S_TAB}:{S_TAB+3}], s{S0+3} offen offset:{i*1024}', 'tw')
    k(f's_mov_b32 s{S0+4}, {TAB_E32}'); k(f's_mov_b32 s{S0+5}, {TAB_E32+4096}')
    for i in range(6):
        vm.issue(f'buffer_load_dwordx4 v[{E32+4*i}:{E32+4*i+3}], v{V_TMP}, s[{S_TAB}:{S_TAB+3}], s{S0+4+(i>>2)} offen offset:{(i&3)*1024}', 'e32')
def p2a_poll_lines():
    L = V_L
    return [f's_lshr_b32 s{S_B}, s2, 6', f's_lshl_b32 s{S_C_}, s{S_B}, 7', f's_add_u32 s{S_C_}, s{S_C_}, {WS_UF}',
            f's_lshl_b32 s{S_B}, s{S_B}, 8', f's_add_u32 s{S_B}, s{S_B}, {WS_WTF}',
            f'v_lshlrev_b32 v{V_YW0}, 2, v{L}', f'v_and_b32 v{V_YW1}, 60, v{V_YW0}',
            f'buffer_load_dword v{V_YR0}, v{V_YW1}, s[{S_WS}:{S_WS+3}], s{S_C_} offen sc1',
            f'buffer_load_dword v{V_YR1}, v{V_YW0}, s[{S_WS}:{S_WS+3}], s{S_B} offen sc1']
def p2a_loads(k, vm):
    L = V_L; S0 = T
    k(f'v_lshrrev_b32 v{V_TMP}, 4, v{L}'); k(f'v_and_b32 v{V_TMP2}, 15, v{L}')
    k(f'v_lshlrev_b32 v{A_U}, 9, v{V_TMP}'); k(f'v_lshl_add_u32 v{A_U}, v{V_TMP2}, 4, v{A_U}')
    k(f'v_lshlrev_b32 v{A_W}, 7, v{V_TMP2}'); k(f'v_lshl_add_u32 v{A_W}, v{V_TMP}, 4, v{A_W}')
    k(f's_lshl_b32 s{S0}, s2, 13')
    k(f's_add_u32 s{S0+1}, s{S0}, {WS_U}'); k(f's_add_u32 s{S0+2}, s{S0+1}, 4096')
    k(f's_lshl_b32 s{S0+3}, s{S_WV}, 11'); k(f's_add_u32 s{S0+3}, s{S0+3}, s{S0}'); k(f's_add_u32 s{S0+3}, s{S0+3}, {WS_WT}')
    for ks in range(4):
        for mt in range(2):
            r = UF + 4*(mt*4+ks)
            vm.issue(f'buffer_load_dwordx4 v[{r}:{r+3}], v{A_U}, s[{S_WS}:{S_WS+3}], s{S0+1+(ks>>1)} offen offset:{(ks&1)*2048 + mt*256} sc1', 'u')
    for mt in range(2):
        vm.issue(f'buffer_load_dwordx4 v[{WT_+4*mt}:{WT_+4*mt+3}], v{A_W}, s[{S_WS}:{S_WS+3}], s{S0+3} offen offset:{mt*64} sc1', 'wt')
def p2a_compute(k, vm, st):
    L = V_L; S0 = T; D, Tt, B = D_, T_, B_
    k(f'v_and_b32 v{V_TMP2}, 15, v{L}')
    k(f'v_lshlrev_b32 v{V_YW0}, 6, v{V_TMP2}')
    k(f'v_bfe_u32 v{V_TMP}, v{L}, 2, 1'); k(f'v_lshl_add_u32 v{V_YW0}, v{V_TMP}, 5, v{V_YW0}')
    k(f'v_lshrrev_b32 v{V_TMP}, 4, v{L}'); k(f'v_lshl_add_u32 v{V_YW0}, v{V_TMP}, 3, v{V_YW0}')
    k(f's_lshl_b32 s{S0}, s{S_WV}, 10'); k(f's_add_u32 s{S0}, s{S0}, {L_Y}'); k(f'v_add_u32 v{V_YW0}, s{S0}, v{V_YW0}')
    k(f'v_xor_b32 v{V_YW1}, 32, v{V_YW0}')
    k(f'v_lshrrev_b32 v{V_TMP}, 2, v{L}'); k(f'v_lshlrev_b32 v{V_YR0}, 6, v{V_TMP}')
    k(f'v_bfe_u32 v{V_TMP}, v{L}, 4, 1'); k(f'v_lshl_add_u32 v{V_YR0}, v{V_TMP}, 5, v{V_YR0}')
    k(f'v_and_b32 v{V_TMP}, 3, v{L}'); k(f'v_lshl_add_u32 v{V_YR0}, v{V_TMP}, 3, v{V_YR0}')
    k(f'v_add_u32 v{V_YR0}, {L_Y}, v{V_YR0}'); k(f'v_xor_b32 v{V_YR1}, 32, v{V_YR0}')
    vm.wait('u')
    if st: st.stamp('u_ok')
    for ks in range(4):
        for mt in range(2):
            for var in range(2):
                d = D + 4*(mt*2+var)
                k(mf16(d, UF + 4*(mt*4+ks), E64 + 4*(ks*2+var), None if ks == 0 else d))
    k.nop(8)
    def twiddle(sign):
        for mt in range(2):
            for r in range(4):
                R, I = D + 8*mt + r, D + 8*mt + 4 + r; c = TW + 8*mt + r
                k(f'v_mul_f32 v{Tt+8*mt+r}, v{R}, v{c}'); k(f'v_mul_f32 v{Tt+8*mt+4+r}, v{I}, v{c}')
            for r in range(4):
                R, I = D + 8*mt + r, D + 8*mt + 4 + r; s_ = TW + 8*mt + 4 + r
                k(f'v_fma_f32 v{Tt+8*mt+r}, {"" if sign > 0 else "-"}v{I}, v{s_}, v{Tt+8*mt+r}')
                k(f'v_fma_f32 v{Tt+8*mt+4+r}, {"-" if sign > 0 else ""}v{R}, v{s_}, v{Tt+8*mt+4+r}')
    def pack():
        for mt in range(2):
            for part in range(2):
                k(f'v_cvt_pk_bf16_f32 v{B+4*part+2*mt}, v{Tt+8*mt+4*part}, v{Tt+8*mt+4*part+1}')
                k(f'v_cvt_pk_bf16_f32 v{B+4*part+2*mt+1}, v{Tt+8*mt+4*part+2}, v{Tt+8*mt+4*part+3}')
    twiddle(+1); pack(); k.nop(2)
    Br, Bi = B, B + 4
    C32 = lambda mt: E32 + 12*mt; S32 = lambda mt: E32 + 12*mt + 4; N32 = lambda mt: E32 + 12*mt + 8
    for mt in range(2):
        k(mf16(D + 8*mt, C32(mt), Br, None)); k(mf16(D + 8*mt + 4, C32(mt), Bi, None))
    for mt in range(2):
        k(mf16(D + 8*mt, S32(mt), Bi, D + 8*mt)); k(mf16(D + 8*mt + 4, N32(mt), Br, D + 8*mt + 4))
    vm.wait('wt')
    for mt in range(2):
        for r in range(4):
            k(f'v_lshlrev_b32 v{UF+4*mt+r}, 16, v{WT_+4*mt+r}'); k(f'v_and_b32 v{UF+8+4*mt+r}, 0xffff0000, v{WT_+4*mt+r}')
    for mt in range(2):
        for r in range(4):
            R = D + 8*mt + r
            k(f'v_mul_f32 v{Tt+8*mt+r}, v{R}, v{UF+4*mt+r}'); k(f'v_mul_f32 v{Tt+8*mt+4+r}, v{R}, v{UF+8+4*mt+r}')
        for r in range(4):
            I = D + 8*mt + 4 + r
            k(f'v_fma_f32 v{Tt+8*mt+r}, -v{I}, v{UF+8+4*mt+r}, v{Tt+8*mt+r}')
            k(f'v_fma_f32 v{Tt+8*mt+4+r}, v{I}, v{UF+4*mt+r}, v{Tt+8*mt+4+r}')
    pack(); k.nop(2)
    for mt in range(2):
        k(mf16(D + 8*mt, C32(mt), Br, None)); k(mf16(D + 8*mt + 4, C32(mt), Bi, None))
    for mt in range(2):
        k(mf16(D + 8*mt, N32(mt), Bi, D + 8*mt)); k(mf16(D + 8*mt + 4, S32(mt), Br, D + 8*mt + 4))
    k.nop(8)
    twiddle(-1); pack()
    for mt in range(2):
        va = V_YW0 if mt == 0 else V_YW1
        k(f'ds_write_b64 v{va}, v[{B+4+2*mt}:{B+4+2*mt+1}]'); k(f'ds_write_b64 v{va}, v[{B+2*mt}:{B+2*mt+1}] offset:4096')
    k('s_waitcnt lgkmcnt(0)'); k('s_barrier')
    if st: st.stamp('transp')
    for nt in range(2):
        va = V_YR0 if nt == 0 else V_YR1
        for ks in range(4):
            r = FB + 4*(nt*4+ks)
            k(f'ds_read_b64_tr_b16 v[{r}:{r+1}], v{va} offset:{ks*1024}'); k(f'ds_read_b64_tr_b16 v[{r+2}:{r+3}], v{va} offset:{4096 + ks*1024}')
    k(f's_lshl_b32 s{S0}, s2, 13'); k(f's_lshl_b32 s{S0+1}, s{S_WV}, 11'); k(f's_add_u32 s{S0}, s{S0}, s{S0+1}'); k(f's_add_u32 s{S0}, s{S0}, {WS_V}')
    for nt in range(2):
        k(f's_waitcnt lgkmcnt({8 if nt == 0 else 0})')
        for ks in range(4):
            f = FB + 4*(nt*4+ks)
            k(mf16(D + 8*nt + 4, E64 + 4*(ks*2+0), f, None if ks == 0 else D + 8*nt + 4))
            k(mf16(D + 8*nt, E64 + 4*(ks*2+1), f, None if ks == 0 else D + 8*nt))
    k.nop(8)
    for nt in range(2):
        o = B + 4*nt
        k(f'v_cvt_pk_bf16_f32 v{o}, v{D+8*nt}, v{D+8*nt+1}'); k(f'v_cvt_pk_bf16_f32 v{o+1}, v{D+8*nt+2}, v{D+8*nt+3}')
        k(f'v_cvt_pk_bf16_f32 v{o+2}, v{D+8*nt+4}, v{D+8*nt+5}'); k(f'v_cvt_pk_bf16_f32 v{o+3}, v{D+8*nt+6}, v{D+8*nt+7}')
        vm.issue(f'buffer_store_dwordx4 v[{o}:{o+3}], v{A_U}, s[{S_WS}:{S_WS+3}], s{S0} offen offset:{nt*256} sc1', 'vst')
RING = 18
HD = 8
G_H = 8
G_TR = 72
G_ACC = 128
G_X = 88
V_DW, V_DV, V_DH, V_TW0, V_TW1, V_TV0, V_TV1, V_RA, V_OO, V_G0, V_G1, V_GP = 200, 201, 202, 203, 204, 205, 206, 207, 208, 209, 210, 211
S_HB, S_W2B, S_VB, S_GB, S_LB = 48, 49, 50, 51, 52
RED_STRIDE = 1056; RED_W = 16*RED_STRIDE
def g2_setup(k):
    L, T0, T1 = V_L, V_G0, V_G1
    k(f'v_lshlrev_b32 v{V_DH}, 4, v{L}')
    k(f's_lshl_b32 s{T}, s{S_RB2}, 2'); k(f's_lshl_b32 s{T+1}, s{S_G2}, 1'); k(f's_add_u32 s{T}, s{T}, s{T+1}')
    k(f's_mul_i32 s{T}, s{T}, 112'); k(f's_mul_i32 s{T+1}, s{S_WV}, 28'); k(f's_add_u32 s{T}, s{T}, s{T+1}')
    k(f's_lshl_b32 s{S_HB}, s{T}, 10'); k(f's_add_u32 s{S_HB}, s{S_HB}, {WS_H}')
    k(f'v_lshrrev_b32 v{T0}, 3, v{L}'); k(f'v_lshlrev_b32 v{V_DW}, 10, v{T0}')
    k(f'v_bfe_u32 v{T0}, v{L}, 4, 1'); k(f'v_bfe_u32 v{T1}, v{L}, 2, 1'); k(f'v_xor_b32 v{T0}, v{T0}, v{T1}')
    k(f'v_lshl_add_u32 v{V_DW}, v{T0}, 6, v{V_DW}'); k(f'v_and_b32 v{T0}, 3, v{L}'); k(f'v_lshl_add_u32 v{V_DW}, v{T0}, 4, v{V_DW}')
    k(f's_mul_i32 s{S_W2B}, s{S_WV}, {28*16*1024}'); k(f's_lshl_b32 s{T}, s{S_CB2}, 7'); k(f's_add_u32 s{S_W2B}, s{S_W2B}, s{T}')
    k(f'v_lshrrev_b32 v{T0}, 4, v{L}'); k(f'v_lshlrev_b32 v{V_DV}, 13, v{T0}')
    k(f'v_and_b32 v{T0}, 1, v{T0}'); k(f'v_lshlrev_b32 v{T0}, 3, v{T0}'); k(f'v_and_b32 v{T1}, 15, v{L}'); k(f'v_xor_b32 v{T0}, v{T0}, v{T1}')
    k(f'v_lshl_add_u32 v{V_DV}, v{T0}, 4, v{V_DV}')
    k(f's_lshl_b32 s{S_VB}, s{S_WV}, 19'); k(f's_lshl_b32 s{T}, s{S_RB2}, 9'); k(f's_add_u32 s{S_VB}, s{S_VB}, s{T}')
    k(f's_lshl_b32 s{T}, s{S_G2}, 8'); k(f's_add_u32 s{S_VB}, s{S_VB}, s{T}'); k(f's_add_u32 s{S_VB}, s{S_VB}, {WS_V}')
    k(f's_lshl_b32 s{S_GB}, s{S_CB2}, 16'); k(f's_lshl_b32 s{T}, s{S_WV}, 14'); k(f's_add_u32 s{S_GB}, s{S_GB}, s{T}'); k(f's_add_u32 s{S_GB}, s{S_GB}, {TAB_G}')
    k(f's_mul_i32 s{S_LB}, s{S_WV}, {RING*2048}')
    k(f'v_lshrrev_b32 v{T0}, 5, v{L}'); k(f'v_lshlrev_b32 v{V_TW0}, 9, v{T0}')
    k(f'v_bfe_u32 v{T0}, v{L}, 2, 2'); k(f'v_lshl_add_u32 v{V_TW0}, v{T0}, 7, v{V_TW0}')
    k(f'v_bfe_u32 v{T0}, v{L}, 3, 1'); k(f'v_lshl_add_u32 v{V_TW0}, v{T0}, 6, v{V_TW0}')
    k(f'v_bfe_u32 v{T0}, v{L}, 4, 1'); k(f'v_lshl_add_u32 v{V_TW0}, v{T0}, 5, v{V_TW0}')
    k(f'v_and_b32 v{T0}, 3, v{L}'); k(f'v_lshl_add_u32 v{V_TW0}, v{T0}, 3, v{V_TW0}')
    k(f'v_add_u32 v{V_TW0}, s{S_LB}, v{V_TW0}'); k(f'v_xor_b32 v{V_TW1}, 64, v{V_TW0}')
    k(f'v_lshrrev_b32 v{T0}, 5, v{L}'); k(f'v_lshlrev_b32 v{V_TV0}, 10, v{T0}')
    k(f'v_bfe_u32 v{T0}, v{L}, 3, 1'); k(f'v_lshl_add_u32 v{V_TV0}, v{T0}, 8, v{V_TV0}'); k(f'v_lshl_add_u32 v{V_TV0}, v{T0}, 7, v{V_TV0}')
    k(f'v_bfe_u32 v{T0}, v{L}, 4, 1'); k(f'v_lshl_add_u32 v{V_TV0}, v{T0}, 6, v{V_TV0}')
    k(f'v_and_b32 v{T0}, 3, v{L}'); k(f'v_lshl_add_u32 v{V_TV0}, v{T0}, 4, v{V_TV0}')
    k(f'v_bfe_u32 v{T0}, v{L}, 2, 1'); k(f'v_lshl_add_u32 v{V_TV0}, v{T0}, 3, v{V_TV0}')
    k(f'v_add_u32 v{V_TV0}, s{S_LB}, v{V_TV0}'); k(f'v_xor_b32 v{V_TV1}, 128, v{V_TV0}')
    k(f's_lshr_b32 s{T}, s{S_WV}, 1'); k(f's_and_b32 s{T+1}, s{S_WV}, 1'); k(f's_lshl_b32 s{T+1}, s{T+1}, 4')
    k(f'v_lshrrev_b32 v{T0}, 3, v{L}'); k(f'v_add_u32 v{T0}, s{T+1}, v{T0}')
    k(f'v_and_b32 v{T1}, 7, v{L}')
    k(f'v_mul_u32_u24 v{V_RA}, {RED_STRIDE}, v{T1}'); k(f'v_lshl_add_u32 v{V_RA}, v{T0}, 4, v{V_RA}')
    k(f's_mul_i32 s{T+2}, s{T}, {8*RED_STRIDE}'); k(f'v_add_u32 v{V_RA}, s{T+2}, v{V_RA}')
    k(f'v_lshlrev_b32 v{V_OO}, 4, v{T1}')
    k(f'v_and_b32 v{T1}, 3, v{T0}'); k(f'v_lshl_add_u32 v{V_OO}, v{T1}, 15, v{V_OO}')
    k(f'v_lshrrev_b32 v{T1}, 3, v{T0}'); k(f'v_lshl_add_u32 v{V_OO}, v{T1}, 11, v{V_OO}')
    k(f'v_bfe_u32 v{T1}, v{T0}, 2, 1'); k(f'v_lshl_add_u32 v{V_OO}, v{T1}, 10, v{V_OO}')
    k(f's_lshl_b32 s{T+2}, s{S_G2}, 1'); k(f's_add_u32 s{T+2}, s{T+2}, s{T}'); k(f's_lshl_b32 s{T+2}, s{T+2}, 13')
    k(f's_lshl_b32 s{T+3}, s{S_RB2}, 17'); k(f's_add_u32 s{T+2}, s{T+2}, s{T+3}')
    k(f's_lshl_b32 s{T+3}, s{S_CB2}, 7'); k(f's_add_u32 s{T+2}, s{T+2}, s{T+3}')
    k(f'v_add_u32 v{V_OO}, s{T+2}, v{V_OO}')
def g2_w2_dma(k, vm, n):
    slot = n % RING
    k(f's_add_u32 m0, s{S_LB}, {slot*2048}'); k(f's_add_u32 s{T}, s{S_W2B}, {16*n*1024}')
    vm.issue(f'buffer_load_dwordx4 v{V_DW}, s[{S_W2}:{S_W2+3}], s{T} offen lds', ('w', n))
    k(f's_add_u32 m0, s{S_LB}, {slot*2048 + 1024}'); k(f's_add_u32 s{T}, s{S_W2B}, {(16*n + 8)*1024}')
    vm.issue(f'buffer_load_dwordx4 v{V_DW}, s[{S_W2}:{S_W2+3}], s{T} offen lds', ('w', n))
def g2_prefetch(k, vm):
    for n in range(RING): g2_w2_dma(k, vm, n)
    for c in range(8):
        k(f's_add_u32 s{T}, s{S_GB}, {c*2048}')
        for e in range(2):
            vm.issue(f'buffer_load_dwordx4 a[{8*c+4*e}:{8*c+4*e+3}], v{V_DH}, s[{S_TAB}:{S_TAB+3}], s{T} offen offset:{e*1024}', 'g')
def g2_main(k, vm, st):
    L, T0, T1 = V_L, V_G0, V_G1
    NF, NS = 28, 36
    hp = [f's_lshl_b32 s{S_B}, s{S_RB2}, 7', f's_add_u32 s{S_B}, s{S_B}, {WS_HF}', f'v_lshlrev_b32 v{V_GP}, 2, v{L}', f'v_and_b32 v{V_GP}, 60, v{V_GP}',
          f'buffer_load_dword v{T0}, v{V_GP}, s[{S_WS}:{S_WS+3}], s{S_B} offen sc1']
    for x in hp[:-1]: k(x)
    vm.issue(hp[-1], 'hp'); vm.wait('hp')
    tag_check(k, 'hf', [T0], hp)
    if st: st.stamp('hf_ok')
    def h_issue(n):
        d = G_H + 8*(n % HD)
        for e in range(2):
            k(f's_add_u32 s{T}, s{S_HB}, {n*1024 + e*112*1024}')
            vm.issue(f'buffer_load_dwordx4 v[{d+4*e}:{d+4*e+3}], v{V_DH}, s[{S_WS}:{S_WS+3}], s{T} offen sc1', ('h', n))
    def v_dma(n):
        c = n - NF; slot = n % RING
        for e in range(2):
            k(f's_add_u32 m0, s{S_LB}, {slot*2048 + e*1024}'); k(f's_add_u32 s{T}, s{S_VB}, {(8*c + 4*e)*8192}')
            vm.issue(f'buffer_load_dwordx4 v{V_DV}, s[{S_WS}:{S_WS+3}], s{T} offen sc1 lds', ('w', n))
    def reads(n):
        slot = n % RING; b = G_TR + 8*(n & 1)
        for t in range(2):
            va = (V_TW0, V_TW1)[t] if n < NF else (V_TV0, V_TV1)[t]
            for part in range(2):
                off = slot*2048 + (part*8*128 if n < NF else part*2*256)
                k(f'ds_read_b64_tr_b16 v[{b+4*t+2*part}:{b+4*t+2*part+1}], v{va} offset:{off}')
    for n in range(HD - 1): h_issue(n)
    for j in range(2):
        vm.issue(f'buffer_load_dwordx4 v[{G_X+4*j}:{G_X+4*j+3}], v{V_OO}, s[{S_X}:{S_X+3}], 0 offen offset:{j*2048}', 'x')
    vp = [f's_lshl_b32 s{S_B}, s{S_WV}, 8', f's_add_u32 s{S_B}, s{S_B}, {WS_VF}', f'v_lshlrev_b32 v{V_GP}, 2, v{L}',
          f'buffer_load_dword v{T1}, v{V_GP}, s[{S_WS}:{S_WS+3}], s{S_B} offen sc1']
    vm.wait(('w', 0)); reads(0)
    for n in range(NS):
        if n + 1 < NS:
            vm.wait(('w', n + 1)); reads(n + 1)
        if n < NF: vm.wait(('h', n))
        else: vm.wait('g')
        k(f's_waitcnt lgkmcnt({4 if n + 1 < NS else 0})')
        b = G_TR + 8*(n & 1)
        for e in range(2):
            for ct in range(2):
                a_ = f'v[{G_ACC+16*(2*e+ct)}:{G_ACC+16*(2*e+ct)+15}]'; c_ = '0' if n == 0 else a_
                if n < NF:
                    d = G_H + 8*(n % HD)
                    k(f'v_mfma_f32_32x32x16_bf16 {a_}, v[{b+4*ct}:{b+4*ct+3}], v[{d+4*e}:{d+4*e+3}], {c_}')
                else:
                    g = 8*(n - NF) + 4*ct
                    k(f'v_mfma_f32_32x32x16_bf16 {a_}, a[{g}:{g+3}], v[{b+4*e}:{b+4*e+3}], {c_}')
        if n + HD - 1 < NF: h_issue(n + HD - 1)
        m = n + RING - 1
        if n >= 1 and m < NF: g2_w2_dma(k, vm, m)
        if n == 4:
            for x in vp[:-1]: k(x)
            vm.issue(vp[-1], 'vp')
        if n == 10:
            vm.wait('vp'); tag_check(k, 'vf', [T1], vp)
            if st: st.stamp('vf_ok')
        if n >= 11 and n - 11 + NF < NS: v_dma(n - 11 + NF)
    if st: st.stamp('kdone')
    k('s_barrier')
    k(f's_mul_i32 s{T}, s{S_WV}, {RED_W}'); k(f'v_lshl_add_u32 v{T0}, v{L}, 4, s{T}')
    k.nop(10)
    for e in range(2):
        for ct in range(2):
            for q in range(4):
                r = G_ACC + 16*(2*e+ct) + 4*q
                k(f'ds_write_b128 v{T0}, v[{r}:{r+3}] offset:{((e*2+ct)*4+q)*RED_STRIDE}')
    k('s_waitcnt lgkmcnt(0)'); k('s_barrier')
    if st: st.stamp('redw')
    for j in range(2):
        for w in range(4):
            r = G_ACC + 32*j + 8*w
            k(f'ds_read_b128 v[{r}:{r+3}], v{V_RA} offset:{w*RED_W + j*128}')
            k(f'ds_read_b128 v[{r+4}:{r+7}], v{V_RA} offset:{w*RED_W + j*128 + 512}')
    vm.wait('x')
    for j in range(2):
        S = G_ACC + 32*j
        for w in range(1, 4):
            k(f's_waitcnt lgkmcnt({min(15, 8*(1-j) + 2*(3-w))})')
            for i in range(8): k(f'v_add_f32 v{S+i}, v{S+i}, v{S+8*w+i}')
        for i in range(4):
            x = G_X + 4*j + i
            k(f'v_lshlrev_b32 v{T0}, 16, v{x}'); k(f'v_and_b32 v{T1}, 0xffff0000, v{x}')
            k(f'v_add_f32 v{S+2*i}, v{S+2*i}, v{T0}'); k(f'v_add_f32 v{S+2*i+1}, v{S+2*i+1}, v{T1}')
            k(f'v_cvt_pk_bf16_f32 v{x}, v{S+2*i}, v{S+2*i+1}')
        vm.issue(f'buffer_store_dwordx4 v[{G_X+4*j}:{G_X+4*j+3}], v{V_OO}, s[{S_OUT}:{S_OUT+3}], 0 offen offset:{j*2048}', 'o')
def build(ts=False):
    global slow_paths
    slow_paths.clear(); slow_id[0] = 0
    k = K()
    st = Stamps(k, ts, 0, vts=V_TS)
    k('s_cmp_ge_u32 s2, 256'); k('s_cbranch_scc1 L_end')
    st.stamp('start')
    prologue(k, st)
    k(f's_cmp_ge_u32 s{S_CB}, 12'); k('s_cbranch_scc1 L_typeB')
    n0, nm0 = st.n, list(st.names)
    sta = st if ts else None
    p1_body(k, False, sta)
    k('s_branch L_common')
    st.n, st.names = n0, list(nm0)
    k.label('L_typeB')
    p1_body(k, True, sta)
    k.label('L_common')
    vm = VM(k)
    k(f'v_mov_b32 v{V_L0B}, v{V_L0}')
    if ts: k(f'v_mov_b32 v{V_TSB}, v{V_TS}'); st.vts = V_TSB
    st.stamp('p1_end')
    p2a_consts(k, vm)
    pl = p2a_poll_lines()
    for x in pl: k(x)
    k('s_waitcnt vmcnt(0)'); vm.q = []
    k('s_barrier')
    flag_store_now(k, [f's_lshl_b32 s{S_F0}, s{S_RB}, 7', f's_lshl_b32 s{S_F1}, s{S_CB}, 2', f's_add_u32 s{S_F0}, s{S_F0}, s{S_F1}', f's_add_u32 s{S_F0}, s{S_F0}, {WS_HF}'], 'L_fl_h')
    st.stamp('hflag')
    tag_check(k, 'p2a', [V_YR0, V_YR1], pl)
    p2a_loads(k, vm)
    g2_setup(k)
    g2_prefetch(k, vm)
    p2a_compute(k, vm, sta)
    vm.wait('vst')
    k('s_barrier')
    flag_store_now(k, [f's_lshl_b32 s{S_F0}, s2, 2', f's_add_u32 s{S_F0}, s{S_F0}, {WS_VF}'], 'L_fl_v')
    st.stamp('vflag')
    g2_main(k, vm, sta)
    k('s_cmp_lg_u32 s2, 0'); k('s_cbranch_scc1 L_noep')
    flag_store_now(k, [f's_mov_b32 s{S_F0}, {WS_EPOCH}'], 'L_fl_e')
    k.label('L_noep')
    st.flush(2, 3)
    k.label('L_end'); k('s_endpgm')
    for sp in slow_paths: k.l += sp.l
    probs = check(k.l, 'fused')
    if probs: print('\n'.join(probs[:10])); raise SystemExit('hazards')
    hdr = f"""; fused LayerNorm + GFNet spectral filter + SwiGLU MLP + residual sum (persistent, one workgroup per CU)
; @launch grid=(256,1,1) block=(256,1,1) lds={LDS_TOTAL}
.amdgcn_target "amdgcn-amd-amdhsa--gfx950"
"""
    out = hdr + kernel_header(NAME) + k.text() + kernel_desc(NAME, 512, sgpr=102, accum=256) + tables_asm()
    if ts: out += '; TSNAMES 0 ' + ' '.join(st.names) + '\n'
    return out
if __name__ == '__main__':
    dst = sys.argv[1]
    OPT.update(a for a in sys.argv[2:])
    s = build(ts='ts' in sys.argv)
    open(dst, 'w').write(s)
    print(len(s), 'bytes ->', dst)
```

```python
import sys
from asmgen import *
from tables import tables_asm, TAB_F, TAB_G, TAB_E64, TAB_E32, TAB_TW, TAB_END
import common as C
from common import VM, Stamps, kernel_header, kernel_desc, S_X, S_W1, S_W3, S_W2, S_WS, S_OUT, S_TAB, S_WR, S_WI
NAME = 'parallel_sum__spectral_gfnet__glu_gated_swiglu__prompt_kernel'
OPT = set()
WS_EPOCH = 0x0
WS_HF = 0x1000
WS_UF = 0x2000
WS_WTF = 0x3000
WS_VF = 0x4000
WS_ST = 0x10000
WS_CS = 0x20000
WS_WT, WS_U, WS_V, WS_H = 0x100000, 0x300000, 0x500000, 0x700000
WS_SIZE = 0x1400000
C.WS_WT, C.WS_U, C.WS_V, C.WS_H = WS_WT, WS_U, WS_V, WS_H
S_WV, S_WR_, S_WC, S_RB, S_CB, S_G, S_NON, S_ROT = 40, 41, 42, 43, 44, 45, 46, 47
S_XO, S_WO0, S_WO1, S_FO, S_HO, S_UO = 48, 49, 50, 51, 52, 53
S_MX, S_MW1 = 54, 55
T = 56
S_RB2, S_G2, S_CB2 = 84, 85, 86
S_SX, S_SW = 87, 88
S_PAR = 89
S_K2, S_CBLK = 90, 91
S_A, S_B, S_C_, S_D = 92, 93, 94, 95
L_X, L_W = 0x0000, 0x10000
L_UT = 0x0000
L_MISC = 0x24000
L_Y = L_MISC
L_WTB = L_MISC
L_AX = L_MISC + 0x2400
L_RS = L_AX + 0x1000
LDS_TOTAL = 0x28000
V_L = 1
V_XA = 2
V_WA = 6
V_FA = 8
V_XD = 9
V_W1D = 13
V_W3D = 15
V_FD = 17
V_C1, V_C2 = 18, 20
V_BX = 24
V_HO, V_UTW, V_UTR, V_UO = 32, 33, 34, 35
V_ONE = 36
V_SR = 40
V_WTD = 48
V_STG = 64
V_CSG = 68
V_A0, V_A1, V_A2, V_A3 = 76, 77, 78, 79
ET = 80
AF = 104
ACC = 128
V_TS = 23
V_L0 = 22
S_F0, S_F1 = 96, 97
S_EP, S_EP2 = 98, 99
S_SPIN = 100
S_DBG = 68
SPIN_MAX = 100000
slow_id = [0]
V_L0T = 42
V_EA = 41
def acc(p, t, e): return ACC + p*64 + t*32 + e*16
def xf(e, kk): return (e*32 + kk)*4
class Sched:
    def __init__(self, k, vm): self.k = k; self.vm = vm; self.q = []
    def add(self, items): self.q += items
    def pop(self, nmax):
        c = 0
        while self.q and c < nmax:
            e = self.q[0]
            if e == 'STEP': return
            self.q.pop(0)
            if isinstance(e, tuple):
                if e[0] == 'vm': self.vm.issue(e[1], e[2])
                elif e[0] == 'call': e[1]()
                elif e[0] == 'grp':
                    for x in e[1]:
                        if isinstance(x, tuple): self.vm.issue(x[1], x[2])
                        else: self.k(x)
                    c += len(e[1]) - 1
            else: self.k(e)
            c += 1
    def newstep(self):
        if self.q and self.q[0] == 'STEP': self.q.pop(0)
    def flush(self):
        while self.q:
            if self.q[0] == 'STEP':
                self.q.pop(0); self.k('s_waitcnt lgkmcnt(0)')
            else: self.pop(1)
slow_paths = []
def tag_check(k, label, regs, reload_lines):
    k(f'v_cmp_ne_u32 vcc, s{S_NON}, v{regs[0]}')
    for r in regs[1:]:
        k(f'v_cmp_ne_u32 s[{T+6}:{T+7}], s{S_NON}, v{r}'); k('s_nop 0'); k(f's_or_b64 vcc, vcc, s[{T+6}:{T+7}]')
    k('s_nop 1')
    k('s_cmp_lg_u64 vcc, 0'); k(f's_cbranch_scc1 L_slow_{label}')
    k.label(f'L_back_{label}')
    sp = K()
    slow_id[0] += 1
    sp.label(f'L_slow_{label}')
    sp(f's_sub_u32 s{S_SPIN}, s{S_SPIN}, 1'); sp(f's_cbranch_scc1 L_tmo_{label}')
    sp('s_sleep 2')
    for l in reload_lines: sp(l)
    sp('s_waitcnt vmcnt(0)')
    sp(f'v_cmp_ne_u32 vcc, s{S_NON}, v{regs[0]}')
    for r in regs[1:]:
        sp(f'v_cmp_ne_u32 s[{T+6}:{T+7}], s{S_NON}, v{r}'); sp('s_nop 0'); sp(f's_or_b64 vcc, vcc, s[{T+6}:{T+7}]')
    sp('s_nop 1')
    sp('s_cmp_lg_u64 vcc, 0'); sp(f's_cbranch_scc1 L_slow_{label}')
    sp(f's_branch L_back_{label}')
    sp.label(f'L_tmo_{label}')
    sp(f's_mov_b32 s{S_SPIN}, 0')
    sp(f'v_mov_b32 v{regs[0]}, {slow_id[0]}'); sp(f'v_mov_b32 v{V_L0T}, {4*slow_id[0]}')
    sp(f'buffer_store_dword v{regs[0]}, v{V_L0T}, s[{S_DBG}:{S_DBG+3}], 0 offen')
    sp(f's_branch L_back_{label}')
    slow_paths.append(sp)
def srd(k, s, lo, hi, size):
    k(f's_mov_b32 s{s}, s{lo}'); k(f's_mov_b32 s{s+1}, s{hi}'); k(f's_mov_b32 s{s+2}, {size}'); k(f's_mov_b32 s{s+3}, 0x20000')
def prologue(k, st):
    L, T0, T1, T2 = V_L, V_A0, V_A1, V_A2
    k('s_load_dwordx16 s[64:79], s[0:1], 0'); k('s_load_dwordx4 s[80:83], s[0:1], 64')
    k(f'v_and_b32 v{L}, 63, v0'); k(f'v_lshrrev_b32 v{T0}, 6, v0'); k('s_nop 0')
    k(f'v_readfirstlane_b32 s{S_WV}, v{T0}')
    k(f's_and_b32 s{T}, s2, 7'); k(f's_lshr_b32 s{T+1}, s2, 3')
    k(f's_and_b32 s{S_WR_}, s{S_WV}, 1'); k(f's_lshr_b32 s{S_WC}, s{S_WV}, 1')
    k(f's_and_b32 s{S_RB}, s{T}, 1'); k(f's_lshl_b32 s{S_RB}, s{S_RB}, 3')
    k(f's_and_b32 s{T+2}, s{T+1}, 7'); k(f's_add_u32 s{S_RB}, s{S_RB}, s{T+2}')
    k(f's_lshr_b32 s{S_G}, s{T}, 1'); k(f's_lshr_b32 s{T+2}, s{T+1}, 3')
    k(f's_mul_i32 s{S_CB}, s{S_G}, 3'); k(f's_add_u32 s{S_CB}, s{S_CB}, s{T+2}'); k(f's_add_u32 s{T+3}, s{S_G}, 12')
    k(f's_cmp_eq_u32 s{T+2}, 3'); k(f's_cselect_b32 s{S_CB}, s{T+3}, s{S_CB}')
    k(f's_lshl_b32 s{T+2}, s{T}, 2'); k(f's_and_b32 s{T+3}, s{T+1}, 3'); k(f's_add_u32 s{T+2}, s{T+2}, s{T+3}')
    k(f's_lshr_b32 s{S_RB2}, s{T+2}, 1'); k(f's_and_b32 s{S_G2}, s{T+2}, 1'); k(f's_lshr_b32 s{S_CB2}, s{T+1}, 2')
    k(f's_lshr_b32 s{S_ROT}, s{S_RB}, 1'); k(f's_and_b32 s{S_PAR}, s{S_RB}, 1')
    k(f's_lshr_b32 s{S_K2}, s2, 2'); k(f's_and_b32 s{S_CBLK}, s2, 3')
    k(f'v_lshrrev_b32 v{T0}, 3, v{L}')
    k(f'v_and_b32 v{T1}, 3, v{T0}'); k(f'v_lshlrev_b32 v{T1}, 15, v{T1}')
    k(f'v_lshrrev_b32 v{T2}, 2, v{T0}'); k(f'v_lshl_add_u32 v{T1}, v{T2}, 10, v{T1}')
    k(f's_lshl_b32 s{T+2}, s{S_WV}, 13'); k(f'v_add_u32 v{T1}, s{T+2}, v{T1}')
    k(f'v_and_b32 v{T2}, 7, v{L}')
    for e in range(4):
        k(f'v_lshrrev_b32 v{V_A3}, 4, v{L}'); k(f'v_add_u32 v{V_A3}, {4*e}, v{V_A3}'); k(f'v_and_b32 v{V_A3}, 7, v{V_A3}')
        k(f'v_xor_b32 v{V_A3}, v{V_A3}, v{T2}'); k(f'v_lshl_add_u32 v{V_XD+e}, v{V_A3}, 4, v{T1}')
        if e: k(f'v_add_u32 v{V_XD+e}, {e*1024}, v{V_XD+e}')
    k(f's_lshl_b32 s{T+2}, s{S_WV}, 4'); k(f'v_add_u32 v{T0}, s{T+2}, v{T0}')
    k(f'v_bfe_u32 v{T1}, v{L}, 4, 1'); k(f'v_bfe_u32 v{T2}, v{L}, 1, 2'); k(f'v_xor_b32 v{T1}, v{T1}, v{T2}')
    k(f'v_mul_u32_u24 v{T0}, 3584, v{T0}'); k(f'v_and_b32 v{T2}, 1, v{L}'); k(f'v_lshl_add_u32 v{T0}, v{T2}, 4, v{T0}')
    k(f'v_lshl_add_u32 v{V_W1D}, v{T1}, 5, v{T0}'); k(f'v_add_u32 v{V_W1D+1}, {8*3584-1024}, v{V_W1D}')
    k(f'v_xor_b32 v{T1}, 2, v{T1}'); k(f'v_lshl_add_u32 v{V_W3D}, v{T1}, 5, v{T0}'); k(f'v_add_u32 v{V_W3D+1}, {8*3584-1024}, v{V_W3D}')
    k(f's_lshl_b32 s{T+2}, s{S_WV}, 12'); k(f'v_lshl_add_u32 v{V_FD}, v{L}, 4, s{T+2}')
    k(f's_lshl_b32 s{S_MX}, s{S_WV}, 12')
    k(f's_lshl_b32 s{S_MW1}, s{S_WV}, 11'); k(f's_add_u32 s{S_MW1}, s{S_MW1}, {L_W}')
    k(f's_lshl_b32 s{S_XO}, s{S_RB}, 17')
    k(f's_lshl_b32 s{S_WO0}, s{S_CB}, 8'); k(f's_add_u32 s{S_WO1}, s{S_WO0}, 128')
    k(f's_lshl_b32 s{T+2}, s{S_G}, 7'); k(f's_add_u32 s{T+2}, s{T+2}, {1536*2}')
    k(f's_cmp_ge_u32 s{S_CB}, 12'); k(f's_cselect_b32 s{S_WO1}, s{T+2}, s{S_WO1}')
    k(f's_lshl_b32 s{S_FO}, s{S_G}, 17'); k(f's_add_u32 s{S_FO}, s{S_FO}, {TAB_F}')
    k(f's_getpc_b64 s[{S_TAB}:{S_TAB+1}]')
    k(f's_add_u32 s{S_TAB}, s{S_TAB}, TABS@rel32@lo+4'); k(f's_addc_u32 s{S_TAB+1}, s{S_TAB+1}, TABS@rel32@hi+12')
    k(f's_mov_b32 s{S_TAB+2}, {TAB_END}'); k(f's_mov_b32 s{S_TAB+3}, 0x20000')
    k('s_waitcnt lgkmcnt(0)')
    k(f's_load_dword s{S_NON}, s[82:83], {WS_EPOCH}')
    srd(k, S_X, 64, 65, 2048*512*2); srd(k, S_W1, 72, 73, 512*1792*2); srd(k, S_W3, 74, 75, 512*1792*2)
def prologue2(k):
    L, T0, T1, T2 = V_L, V_A0, V_A1, V_A2
    srd(k, S_W2, 76, 77, 1792*512*2)
    srd(k, S_OUT, 78, 79, 2048*512*2); srd(k, S_WS, 82, 83, WS_SIZE); srd(k, S_DBG, 80, 81, 256)
    k(f's_mov_b32 s{S_SPIN}, {SPIN_MAX}')
    k(f'v_and_b32 v{T0}, 31, v{L}'); k(f'v_lshrrev_b32 v{T1}, 5, v{L}'); k(f'v_bfe_u32 v{T2}, v{T0}, 1, 3')
    k(f'v_xor_b32 v{T1}, v{T1}, v{T2}'); k(f'v_lshlrev_b32 v{T1}, 4, v{T1}')
    k(f's_lshl_b32 s{T}, s{S_WR_}, 13'); k(f'v_lshl_add_u32 v{T0}, v{T0}, 7, s{T}')
    for ks in range(4):
        k(f'v_xor_b32 v{V_XA+ks}, {ks*32}, v{T1}'); k(f'v_add_u32 v{V_XA+ks}, v{V_XA+ks}, v{T0}')
    k(f'v_bfe_u32 v{T0}, v{L}, 4, 1'); k(f'v_bfe_u32 v{T1}, v{L}, 2, 2')
    k(f'v_lshrrev_b32 v{T2}, 1, v{T1}'); k(f'v_lshl_or_b32 v{T2}, v{T0}, 1, v{T2}')
    k(f'v_lshlrev_b32 v{T0}, 13, v{T0}'); k(f'v_lshl_add_u32 v{T0}, v{T1}, 7, v{T0}')
    k(f'v_lshrrev_b32 v{T1}, 5, v{L}'); k(f'v_lshl_add_u32 v{T0}, v{T1}, 10, v{T0}')
    k(f'v_and_b32 v{T1}, 3, v{L}'); k(f'v_lshl_add_u32 v{T0}, v{T1}, 3, v{T0}'); k(f'v_add_u32 v{T0}, {L_W}, v{T0}')
    k(f's_lshl_b32 s{T}, s{S_WC}, 1')
    for t in range(2):
        k(f's_add_u32 s{T+1}, s{T}, {t}'); k(f'v_xor_b32 v{T1}, s{T+1}, v{T2}'); k(f'v_lshl_add_u32 v{V_WA+t}, v{T1}, 5, v{T0}')
    k(f's_lshl_b32 s{T}, s{S_WC}, 11'); k(f's_add_u32 s{T}, s{T}, {L_W}'); k(f'v_lshl_add_u32 v{V_FA}, v{L}, 4, s{T}')
    k(f's_mul_i32 s{T}, s{S_WR_}, {2*112*1024}'); k(f'v_lshl_add_u32 v{V_HO}, v{L}, 4, s{T}')
    k(f's_mul_i32 s{S_HO}, s{S_RB}, {4*112*1024}'); k(f's_add_u32 s{S_HO}, s{S_HO}, {WS_H}')
    k(f's_lshl_b32 s{T}, s{S_CB}, 3'); k(f's_lshl_b32 s{T+1}, s{S_G}, 2'); k(f's_add_u32 s{T+1}, s{T+1}, 92')
    k(f's_cmp_ge_u32 s{S_CB}, 12'); k(f's_cselect_b32 s{T}, s{T+1}, s{T}')
    k(f's_lshl_b32 s{T+1}, s{S_WC}, 1'); k(f's_add_u32 s{T}, s{T}, s{T+1}'); k(f's_lshl_b32 s{T}, s{T}, 10'); k(f's_add_u32 s{S_HO}, s{S_HO}, s{T}')
    k(f'v_and_b32 v{T0}, 15, v{L}'); k(f'v_mul_u32_u24 v{T0}, 528, v{T0}')
    k(f'v_bfe_u32 v{T1}, v{L}, 4, 1'); k(f'v_lshl_add_u32 v{T0}, v{T1}, 3, v{T0}')
    k(f'v_lshrrev_b32 v{T1}, 5, v{L}'); k(f'v_lshl_add_u32 v{T0}, v{T1}, 4, v{T0}')
    k(f's_mul_i32 s{T}, s{S_WC}, {32*528}'); k(f's_lshl_b32 s{T+1}, s{S_WR_}, 8'); k(f's_add_u32 s{T}, s{T}, s{T+1}')
    k(f'v_add_u32 v{V_UTW}, s{T}, v{T0}')
    k(f'v_lshrrev_b32 v{T0}, 5, v{L}'); k(f'v_mul_u32_u24 v{T0}, 528, v{T0}')
    k(f'v_and_b32 v{T1}, 31, v{L}'); k(f'v_lshl_add_u32 v{T0}, v{T1}, 4, v{T0}')
    k(f's_mul_i32 s{T}, s{S_WV}, {16*528}'); k(f'v_add_u32 v{V_UTR}, s{T}, v{T0}')
    k(f'v_lshrrev_b32 v{T0}, 5, v{L}'); k(f'v_lshlrev_b32 v{T0}, 13, v{T0}'); k(f'v_lshl_add_u32 v{T0}, v{T1}, 4, v{T0}')
    k(f's_lshl_b32 s{T}, s{S_WV}, 17'); k(f'v_add_u32 v{V_UO}, s{T}, v{T0}')
    k(f's_lshl_b32 s{S_UO}, s{S_G}, 19'); k(f's_lshl_b32 s{T}, s{S_RB}, 9'); k(f's_add_u32 s{S_UO}, s{S_UO}, s{T}'); k(f's_add_u32 s{S_UO}, s{S_UO}, {WS_U}')
    k(f'v_cmp_eq_u32 vcc, 0, v{L}'); k(f'v_mov_b32 v{T0}, 0x7fffffff'); k('s_nop 0'); k(f'v_cndmask_b32 v{V_L0}, v{T0}, 0, vcc')
    for i in range(4): k(f'v_mov_b32 v{V_ONE+i}, 0x3f803f80')
    for e in range(2):
        for i in range(1, 4): k(f'v_mov_b32 v{V_BX+4*e+i}, 0')
def side_loads(k, vm):
    L, T0 = V_L, V_A0
    k(f's_lshl_b32 s{T}, s{S_RB}, 7'); k(f's_lshl_b32 s{T+1}, s{S_CB}, 3'); k(f's_add_u32 s{T}, s{T}, s{T+1}')
    k(f's_lshl_b32 s{T+1}, s{S_WV}, 1'); k(f's_add_u32 s{S_A}, s{T}, s{T+1}')
    k(f's_lshl_b32 s{T}, s{S_A}, 10'); k(f'v_lshlrev_b32 v{T0}, 4, v{L}')
    for e in range(2):
        vm.issue(f'buffer_load_dwordx4 v[{V_SR+4*e}:{V_SR+4*e+3}], v{T0}, s[{S_X}:{S_X+3}], s{T} offen offset:{e*1024}', 'srow')
    k(f's_lshl_b32 s{T}, s{S_WV}, 9'); k(f's_add_u32 s{T}, s{T}, s{S_K2}'); k(f's_mul_i32 s{T}, s{T}, 514')
    k(f's_lshl_b32 s{T+1}, s{S_CBLK}, 7'); k(f's_add_u32 s{T}, s{T}, s{T+1}'); k(f's_add_u32 s{T}, s{T}, 2')
    k(f'v_lshlrev_b32 v{V_A1}, 1, v{L}')
    for i in range(8):
        if i: k(f's_add_u32 s{T}, s{T}, {64*514}')
        vm.issue(f'buffer_load_ushort v{V_WTD+i}, v{V_A1}, s[{S_WR}:{S_WR+3}], s{T} offen', 'wtl')
        vm.issue(f'buffer_load_ushort v{V_WTD+8+i}, v{V_A1}, s[{S_WI}:{S_WI+3}], s{T} offen', 'wtl')
def stats_code(k, vm):
    X = [192, 200]; S0, S1, Q0, Q1, A = 208, 209, 210, 211, 212
    vm.wait('srow')
    for i in range(4):
        for e in range(2):
            k(f'v_lshlrev_b32 v{X[e]+2*i}, 16, v{V_SR+4*e+i}'); k(f'v_and_b32 v{X[e]+2*i+1}, 0xffff0000, v{V_SR+4*e+i}')
    S = [S0, S1]; Q = [Q0, Q1]
    for e in range(2): k(f'v_add_f32 v{S[e]}, v{X[e]}, v{X[e]+1}'); k(f'v_mul_f32 v{Q[e]}, v{X[e]}, v{X[e]}')
    for e in range(2): k(f'v_fma_f32 v{Q[e]}, v{X[e]+1}, v{X[e]+1}, v{Q[e]}')
    for i in range(2, 8):
        for e in range(2): k(f'v_add_f32 v{S[e]}, v{S[e]}, v{X[e]+i}'); k(f'v_fma_f32 v{Q[e]}, v{X[e]+i}, v{X[e]+i}, v{Q[e]}')
    k('s_nop 1')
    k(f'v_permlane32_swap_b32 v{S0}, v{S1}'); k(f'v_permlane32_swap_b32 v{Q0}, v{Q1}'); k('s_nop 0')
    k(f'v_add_f32 v{S0}, v{S0}, v{S1}'); k(f'v_add_f32 v{Q0}, v{Q0}, v{Q1}'); k('s_nop 1')
    k(f'v_permlane16_swap_b32 v{S0}, v{Q0}'); k('s_nop 1')
    k(f'v_add_f32 v{S0}, v{S0}, v{Q0}')
    for r in (8, 4, 2, 1):
        k('s_nop 1'); k(f'v_add_f32_dpp v{S0}, v{S0}, v{S0} row_ror:{r} row_mask:0xf bank_mask:0xf')
    k(f'v_mov_b32 v{Q0}, v{S0}'); k('s_nop 1')
    k(f'v_permlane16_swap_b32 v{S0}, v{Q0}'); k('s_nop 1')
    k(f'v_mul_f32 v{S0}, 0x3b000000, v{S0}'); k(f'v_mul_f32 v{Q0}, 0x3b000000, v{Q0}')
    k(f'v_fma_f32 v{Q0}, -v{S0}, v{S0}, v{Q0}'); k(f'v_max_f32 v{Q0}, 0, v{Q0}')
    k(f'v_cvt_pk_bf16_f32 v{S0}, v{S0}, v{Q0}')
    k(f'v_and_b32 v{Q0}, 0xffff0000, v{S0}'); k(f'v_add_f32 v{Q0}, 0x3727c5ac, v{Q0}')
    k(f'v_cvt_pk_bf16_f32 v{Q0}, v{Q0}, v{Q0}'); k(f'v_and_b32 v{Q0}, 0xffff0000, v{Q0}')
    k(f'v_sqrt_f32 v{Q0}, v{Q0}'); k(f'v_mov_b32 v{A}, 0xffff')
    k(f'v_cvt_pk_bf16_f32 v{Q0}, v{Q0}, v{Q0}')
    k(f'v_bfi_b32 v{S1}, v{A}, v{S0}, v{Q0}'); k(f'v_mov_b32 v{Q0}, s{S_NON}')
    k(f'v_and_b32 v{A}, 31, v{V_L}'); k(f'v_cmp_eq_u32 vcc, 0, v{A}'); k(f'v_lshrrev_b32 v{A}, 2, v{V_L}'); k(f'v_mov_b32 v{A+1}, 0x7fffffff')
    k(f's_lshl_b32 s{S_B}, s{S_A}, 3'); k(f'v_cndmask_b32 v{A}, v{A+1}, v{A}, vcc'); k(f's_add_u32 s{S_B}, s{S_B}, {WS_ST}')
    k(f'v_mov_b32 v{S0}, v{S1}'); k(f'v_mov_b32 v{S1}, v{Q0}')
    vm.issue(f'buffer_store_dwordx2 v[{S0}:{S1}], v{A}, s[{S_WS}:{S_WS+3}], s{S_B} offen sc1', 'stst')
def wt_code(k, vm):
    L = V_L
    vm.wait('wtl')
    for i in range(8): k(f'v_lshl_or_b32 v{V_WTD+i}, v{V_WTD+8+i}, 16, v{V_WTD+i}')
    k(f'v_mul_u32_u24 v{V_A0}, 144, v{L}'); k(f's_lshl_b32 s{S_B}, s{S_WV}, 5'); k(f's_add_u32 s{S_B}, s{S_B}, {L_WTB}'); k(f'v_add_u32 v{V_A0}, s{S_B}, v{V_A0}')
    k(f'ds_write_b128 v{V_A0}, v[{V_WTD}:{V_WTD+3}]'); k(f'ds_write_b128 v{V_A0}, v[{V_WTD+4}:{V_WTD+7}] offset:16')
    k(f'v_lshrrev_b32 v{V_A0}, 3, v{L}'); k(f's_lshl_b32 s{S_B}, s{S_WV}, 4'); k(f'v_add_u32 v{V_A0}, s{S_B}, v{V_A0}')
    k(f'v_and_b32 v{V_A1}, 7, v{L}'); k(f'v_lshlrev_b32 v{V_A1}, 4, v{V_A1}')
    k(f'v_mul_u32_u24 v{V_A2}, 144, v{V_A0}'); k(f'v_add_u32 v{V_A2}, v{V_A2}, v{V_A1}'); k(f'v_add_u32 v{V_A2}, {L_WTB}, v{V_A2}')
    k(f'v_lshlrev_b32 v{V_A0}, 13, v{V_A0}'); k(f'v_add_u32 v{V_A0}, v{V_A0}, v{V_A1}'); k(f'v_add_u32 v{V_A1}, {8*8192}, v{V_A0}')
    k(f's_lshl_b32 s{S_B}, s{S_CBLK}, 19'); k(f's_lshl_b32 s{S_C_}, s{S_K2}, 7'); k(f's_add_u32 s{S_B}, s{S_B}, s{S_C_}'); k(f's_add_u32 s{S_B}, s{S_B}, {WS_WT}')
    k('s_waitcnt lgkmcnt(0)'); k('s_barrier')
    k(f'ds_read_b128 v[{V_WTD}:{V_WTD+3}], v{V_A2}'); k(f'ds_read_b128 v[{V_WTD+4}:{V_WTD+7}], v{V_A2} offset:{8*144}')
    k('s_waitcnt lgkmcnt(0)')
    vm.issue(f'buffer_store_dwordx4 v[{V_WTD}:{V_WTD+3}], v{V_A0}, s[{S_WS}:{S_WS+3}], s{S_B} offen sc1', 'wtst')
    vm.issue(f'buffer_store_dwordx4 v[{V_WTD+4}:{V_WTD+7}], v{V_A1}, s[{S_WS}:{S_WS+3}], s{S_B} offen sc1', 'wtst')
class LG:
    def __init__(self, k): self.k = k; self.q = []; self.ever = set()
    def issue(self, text, tag=None): self.k(text); self.q.append(tag); self.ever.add(tag)
    def wait(self, tag):
        idx = [i for i, t in enumerate(self.q) if t == tag]
        if not idx: return
        n = len(self.q) - 1 - idx[-1]
        self.k(f's_waitcnt lgkmcnt({min(n, 15)})')
        self.q = self.q[idx[-1]+1:] if n <= 15 else self.q[len(self.q)-15:]
    def drain(self): self.k('s_waitcnt lgkmcnt(0)'); self.q = []
class Sched2:
    def __init__(self, k, vm, lg): self.k = k; self.vm = vm; self.lg = lg; self.q = []; self.lo = []
    def add(self, items, lo=False): (self.lo if lo else self.q).extend(items)
    def emit(self, e):
        if isinstance(e, tuple):
            if e[0] == 'vm': self.vm.issue(e[1], e[2]); return 1
            if e[0] == 'ds': self.lg.issue(e[1], e[2] if len(e) > 2 else None); return 1
            if e[0] == 'call': e[1](); return e[2] if len(e) > 2 else 1
            if e[0] == 'grp':
                return sum(self.emit(x) for x in e[1])
        self.k(e); return 1
    def pop(self, budget):
        c = 0
        while c < budget and (self.q or self.lo):
            c += self.emit((self.q or self.lo).pop(0))
        return c
    def flush(self):
        while self.q or self.lo: self.emit((self.q or self.lo).pop(0))
def ffn_unit(p, t, e):
    a = acc(p, t, e); E = ET
    out = []
    for half in range(2):
        for r in range(4): out.append(f'v_mul_f32 v{E+r}, v{a+4*half+r}, v{V_C1+e}')
        for r in range(4): out.append(f'v_exp_f32 v{E+r}, v{E+r}')
        for r in range(4): out.append(f'v_mul_f32 v{a+4*half+r}, v{a+4*half+r}, v{a+8+4*half+r}')
        for r in range(4): out.append(f'v_fma_f32 v{E+r}, v{E+r}, v{V_C2+e}, v{V_C2+e}')
        for r in range(4): out.append(f'v_rcp_f32 v{E+r}, v{E+r}')
        if half == 0:
            out.append('s_nop 0')
        else:
            out.append(f's_add_u32 s{S_EP}, s{S_HO}, {(4*p + t)*1024 + e*112*1024}')
        for r in range(4): out.append(f'v_mul_f32 v{a+4*half+r}, v{a+4*half+r}, v{E+r}')
        out.append(f'v_cvt_pk_bf16_f32 v{E+4+2*half}, v{a+4*half}, v{a+4*half+1}')
        out.append(f'v_cvt_pk_bf16_f32 v{E+5+2*half}, v{a+4*half+2}, v{a+4*half+3}')
    out.append(('vm', f'buffer_store_dwordx4 v[{E+4}:{E+7}], v{V_HO}, s[{S_WS}:{S_WS+3}], s{S_EP} offen sc1', 'hst'))
    return out
def p1_body(k, isB, st):
    nm = 'B' if isB else 'A'
    vm = VM(k); lg = LG(k); sc = Sched2(k, vm, lg)
    L = V_L
    def dma_group(i):
        p, s_ = i >> 3, i & 7; slot = i & 3
        it = [f's_add_u32 s{T}, s{S_ROT}, {s_}', f's_and_b32 s{T}, s{T}, 7']
        if i < 8:
            it += [f's_lshl_b32 s{T+1}, s{T}, 7', f's_add_u32 m0, s{S_MX}, {L_X + slot*16384}', f's_add_u32 s{S_SX}, s{S_XO}, s{T+1}']
            for e in range(4):
                it.append(('vm', f'buffer_load_dwordx4 v{V_XD+e}, s[{S_X}:{S_X+3}], s{S_SX} offen offset:{e*1024} lds', ('st', i)))
        if isB and p == 0:
            it += [f's_lshl_b32 s{T+1}, s{T}, 14', f's_add_u32 m0, s{S_MX}, {L_W + slot*16384}', f's_add_u32 s{S_SW}, s{S_FO}, s{T+1}']
            for e in range(4):
                it.append(('vm', f'buffer_load_dwordx4 v{V_FD}, s[{S_TAB}:{S_TAB+3}], s{S_SW} offen offset:{e*1024} lds', ('st', i)))
        else:
            it += [f's_mul_i32 s{T+1}, s{T}, {64*3584}', f's_add_u32 m0, s{S_MW1}, {slot*16384}', f's_add_u32 s{S_SW}, s{S_WO0 if p == 0 else S_WO1}, s{T+1}']
            for e in range(2):
                it.append(('vm', f'buffer_load_dwordx4 v{V_W1D+e}, s[{S_W1}:{S_W1+3}], s{S_SW} offen offset:{e*1024} lds', ('st', i)))
            it += [f's_add_u32 m0, s{S_MW1}, {slot*16384 + 8192}', 's_nop 0']
            for e in range(2):
                it.append(('vm', f'buffer_load_dwordx4 v{V_W3D+e}, s[{S_W3}:{S_W3+3}], s{S_SW} offen offset:{e*1024} lds', ('st', i)))
        return it
    def reads(n):
        i, ks = n >> 2, n & 3
        p = i >> 3; slot = i & 3; b0 = AF + 8*(n % 3)
        out = []
        if p == 0:
            kk = 4*i + ks
            for e in range(2):
                a = xf(e, kk)
                out.append(('ds', f'ds_read_b128 a[{a}:{a+3}], v{V_XA+ks} offset:{slot*16384 + e*4096}', ('fr', n)))
        for t in range(2):
            b = b0 + 4*t
            if isB and p == 0:
                out.append(('ds', f'ds_read_b128 v[{b}:{b+3}], v{V_FA} offset:{slot*16384 + (ks*4+t)*1024}', ('fr', n)))
            else:
                for part in range(2):
                    out.append(('ds', f'ds_read_b64_tr_b16 v[{b+2*part}:{b+2*part+1}], v{V_WA+t} offset:{slot*16384 + (16*ks+4*part)*128}', ('fr', n)))
        return out
    srd(k, S_WR, 66, 67, 2048*257*2); srd(k, S_WI, 68, 69, 2048*257*2)
    side_loads(k, vm)
    for x in dma_group(0) + dma_group(1): sc.emit(x)
    prologue2(k)
    for x in dma_group(2) + dma_group(3): sc.emit(x)
    k('s_waitcnt lgkmcnt(0)')
    k(f's_mul_i32 s{S_NON}, s{S_NON}, 0x19660D'); k(f's_add_u32 s{S_NON}, s{S_NON}, 0x3C6EF35F')
    if st: st.stamp('issued')
    stats_code(k, vm)
    wt_code(k, vm)
    if st: st.stamp('side')
    vm.wait(('st', 0)); k('s_barrier')
    if st: st.stamp('st0')
    for x in reads(0) + reads(1): sc.emit(x)
    ev = {}
    evlo = {}
    def at(n, items, lo=False): (evlo if lo else ev).setdefault(n, []).extend(items)
    def flag_store(off_items, tag):
        lab = f'L_fl_{nm}_{tag}'
        return ('grp', [f's_cmp_lg_u32 s{S_WV}, 0', f's_cbranch_scc1 {lab}'] + off_items +
                [f'v_mov_b32 v{V_SR}, s{S_NON}',
                 ('call', lambda: k(f'buffer_store_dword v{V_SR}, v{V_L0}, s[{S_WS}:{S_WS+3}], s{S_F0} offen sc1')), lab + ':'])
    bar_pre = {}
    bar_post = {}
    bar_pre[6] = ['wtst']
    bar_post[6] = [flag_store([f's_lshl_b32 s{S_F0}, s{S_CBLK}, 8', f's_lshl_b32 s{S_F1}, s{S_K2}, 2', f's_add_u32 s{S_F0}, s{S_F0}, s{S_F1}', f's_add_u32 s{S_F0}, s{S_F0}, {WS_WTF}'], 'wt')]
    CT = ET + 8
    def cs_prod(p):
        if isB and p == 0: return
        n0 = 32*p
        direct.setdefault(n0, []).extend([f's_add_u32 s{S_D}, s{S_WR_}, 1', f's_cmp_eq_u32 s{S_PAR}, {p}', f's_cselect_b32 s{S_D}, s{S_D}, 0'])
        for ks in range(4):
            n = n0 + ks; b0 = AF + 8*(n % 3)
            g = []
            for t in range(2):
                lab = f'L_cs_{nm}_{p}_{ks}_{t}'
                g += [f's_cmp_eq_u32 s{S_D}, {1+t}', f's_cbranch_scc0 {lab}',
                      f'v_mfma_f32_32x32x16_bf16 v[{CT}:{CT+15}], v[{V_ONE}:{V_ONE+3}], v[{b0+4*t}:{b0+4*t+3}], ' + ('0' if ks == 0 else f'v[{CT}:{CT+15}]'), lab + ':']
            cs_at.setdefault(n, []).append(('grp', g))
        lab = f'L_csst_{nm}_{p}'
        at(n0 + 6, [('grp', [f's_cmp_eq_u32 s{S_D}, 0', f's_cbranch_scc1 {lab}',
                             f's_lshl_b32 s{S_B}, s{S_CB}, 3', f's_lshl_b32 s{S_C_}, s{S_WC}, 1', f's_add_u32 s{S_B}, s{S_B}, s{S_C_}', f's_add_u32 s{S_B}, s{S_B}, s{S_WR_}',
                             f's_add_u32 s{S_B}, s{S_B}, {4*p}', f's_lshl_b32 s{S_B}, s{S_B}, 3', f's_add_u32 s{S_B}, s{S_B}, s{S_ROT}', f's_lshl_b32 s{S_B}, s{S_B}, 8', f's_add_u32 s{S_B}, s{S_B}, {WS_CS}',
                             f'v_mov_b32 v{CT+1}, s{S_NON}', f'v_lshlrev_b32 v{V_A0}, 3, v{L}', f'v_cmp_gt_u32 vcc, 32, v{L}', f'v_mov_b32 v{V_A1}, 0x7fffffff', 's_nop 0',
                             f'v_cndmask_b32 v{V_A0}, v{V_A1}, v{V_A0}, vcc',
                             ('call', lambda: k(f'buffer_store_dwordx2 v[{CT}:{CT+1}], v{V_A0}, s[{S_WS}:{S_WS+3}], s{S_B} offen sc1')), lab + ':'])])
    cs_at = {}; direct = {}
    cs_prod(0); cs_prod(1)
    stl = [f'buffer_load_dwordx2 v[{V_STG+2*e}:{V_STG+2*e+1}], v{V_A2+e}, s[{S_WS}:{S_WS+3}], s{S_C_} offen sc1' for e in range(2)]
    staddr = [f'v_and_b32 v{V_A0}, 31, v{L}',
              f'v_and_b32 v{V_A1}, 3, v{V_A0}', f'v_lshlrev_b32 v{V_A2}, 8, v{V_A1}',
              f'v_lshrrev_b32 v{V_A1}, 3, v{V_A0}', f'v_lshl_add_u32 v{V_A2}, v{V_A1}, 4, v{V_A2}',
              f'v_bfe_u32 v{V_A1}, v{V_A0}, 2, 1', f'v_lshl_add_u32 v{V_A2}, v{V_A1}, 3, v{V_A2}',
              f's_lshl_b32 s{S_C_}, s{S_WR_}, 7', f'v_add_u32 v{V_A2}, s{S_C_}, v{V_A2}',
              f'v_add_u32 v{V_A3}, 64, v{V_A2}',
              f's_lshl_b32 s{S_C_}, s{S_RB}, 10', f's_add_u32 s{S_C_}, s{S_C_}, {WS_ST}']
    at(7, staddr + [('vm', l, 'stg') for l in stl])
    def st_check():
        vm.wait('stg')
        tag_check(k, f'st{nm}', [V_STG+1, V_STG+3], staddr + stl)
    stc = [('call', st_check, 8)]
    for e in range(2):
        d = V_STG + 2*e
        stc += [f'v_and_b32 v{d+1}, 0xffff0000, v{d}',
                f'v_and_b32 v{d}, 0xffff, v{d}', f'v_xor_b32 v{d}, 0x8000, v{d}', f'v_lshl_or_b32 v{d}, v{d}, 16, v{d}',
                f'v_mul_f32 v{V_C2+e}, v{d+1}, v{d+1}', f'v_rcp_f32 v{d+1}, v{d+1}', f'v_cmp_gt_u32 vcc, 32, v{L}', 's_nop 0',
                f'v_mul_f32 v{V_C1+e}, 0xbfb8aa3b, v{d+1}', f'v_cndmask_b32 v{V_BX+4*e}, 0, v{d}, vcc']
        if isB:
            stc += [f'v_and_b32 v{V_A0}, 31, v{L}', f'v_lshlrev_b32 v{V_A0}, 2, v{V_A0}', f's_lshl_b32 s{S_C_}, s{S_WR_}, 8', f's_add_u32 s{S_C_}, s{S_C_}, {L_RS + 128*e}',
                    f'v_add_u32 v{V_A0}, s{S_C_}, v{V_A0}', ('ds', f'ds_write_b32 v{V_A0}, v{d+1}')]
    at(12, stc)
    def cs_cons(p):
        if isB and p == 0: return
        n0 = 32*p
        addr = [f'v_and_b32 v{V_A0}, 31, v{L}', f'v_lshlrev_b32 v{V_A0}, 3, v{V_A0}', f'v_lshrrev_b32 v{V_A1}, 5, v{L}', f'v_lshl_add_u32 v{V_A0}, v{V_A1}, 10, v{V_A0}',
                f's_lshl_b32 s{S_B}, s{S_CB}, 3', f's_lshl_b32 s{S_C_}, s{S_WC}, 1', f's_add_u32 s{S_B}, s{S_B}, s{S_C_}', f's_add_u32 s{S_B}, s{S_B}, s{S_WR_}',
                f's_add_u32 s{S_B}, s{S_B}, {4*p}', f's_lshl_b32 s{S_B}, s{S_B}, 11', f's_add_u32 s{S_B}, s{S_B}, {WS_CS}']
        lds = [f'buffer_load_dwordx2 v[{V_CSG+2*i}:{V_CSG+2*i+1}], v{V_A0}, s[{S_WS}:{S_WS+3}], s{S_B} offen offset:{i*256} sc1' for i in range(4)]
        at(n0 + (17 if p == 0 else 13), addr + [('vm', l, f'csg{p}') for l in lds])
        def chk():
            vm.wait(f'csg{p}')
            tag_check(k, f'cs{nm}{p}', [V_CSG+1, V_CSG+3, V_CSG+5, V_CSG+7], addr + lds)
        g = V_CSG
        at(n0 + (21 if p == 0 else 18), [('call', chk, 12),
                     f'v_add_f32 v{g}, v{g}, v{g+2}', f'v_add_f32 v{g+4}, v{g+4}, v{g+6}', f'v_add_f32 v{g}, v{g}, v{g+4}', f'v_mov_b32 v{g+1}, v{g}', 's_nop 1',
                     f'v_permlane32_swap_b32 v{g}, v{g+1}', 's_nop 0', f'v_add_f32 v{g}, v{g}, v{g+1}',
                     f'v_cvt_pk_bf16_f32 v{g+1}, v{g}, v{g}', f'v_and_b32 v{g+1}, 0xffff0000, v{g+1}', f'v_sub_f32 v{g+2}, v{g}, v{g+1}',
                     f'v_cvt_pk_bf16_f32 v{g+4}, v{g+1}, v{g+2}', f'v_cmp_gt_u32 vcc, 32, v{L}', f'v_mov_b32 v{g+5}, 0', f'v_mov_b32 v{g+6}, 0',
                     f'v_cndmask_b32 v{g+4}, 0, v{g+4}, vcc', f'v_mov_b32 v{g+7}, 0',
                     f's_lshl_b32 s{S_C_}, s{S_WC}, 1', f's_add_u32 s{S_C_}, s{S_C_}, s{S_WR_}', f's_lshl_b32 s{S_C_}, s{S_C_}, 10', f's_add_u32 s{S_C_}, s{S_C_}, {L_AX}',
                     f'v_lshl_add_u32 v{V_A0}, v{L}, 4, s{S_C_}', ('ds', f'ds_write_b128 v{V_A0}, v[{g+4}:{g+7}]', f'axw{p}')])
        bar_lg.setdefault(n0 + 26, []).append(f'axw{p}')
        AX = V_WTD
        rd = [f's_lshl_b32 s{S_C_}, s{S_WC}, 11', f's_add_u32 s{S_C_}, s{S_C_}, {L_AX}', f'v_lshl_add_u32 v{V_A0}, v{L}, 4, s{S_C_}',
              ('ds', f'ds_read_b128 v[{AX}:{AX+3}], v{V_A0}'), ('ds', f'ds_read_b128 v[{AX+4}:{AX+7}], v{V_A0} offset:1024', f'axr{p}')]
        at(n0 + 26, rd)
        mm = [('call', lambda: lg.wait(f'axr{p}'))]
        for t in range(2):
            for e in range(2):
                a = acc(p, t, e)
                mm.append(f'v_mfma_f32_32x32x16_bf16 v[{a}:{a+15}], v[{AX+4*t}:{AX+4*t+3}], v[{V_BX+4*e}:{V_BX+4*e+3}], v[{a}:{a+15}]')
        at(n0 + 29, mm)
    bar_lg = {}
    cs_cons(0); cs_cons(1)
    if not isB:
        items = []
        for t in range(2):
            for e in range(2): items += ffn_unit(0, t, e)
        at(33, items, lo=True)
    else:
        items = []
        RS = V_WTD
        for e in range(2):
            items += [f'v_lshrrev_b32 v{V_EA}, 5, v{L}', f'v_lshlrev_b32 v{V_EA}, 4, v{V_EA}', f's_lshl_b32 s{S_EP}, s{S_WR_}, 8', f's_add_u32 s{S_EP}, s{S_EP}, {L_RS + 128*e}',
                      f'v_add_u32 v{V_EA}, s{S_EP}, v{V_EA}']
            for q in range(4): items.append(('ds', f'ds_read_b128 v[{RS+4*q}:{RS+4*q+3}], v{V_EA} offset:{q*32}', f'rs{e}'))
            items.append(('call', lambda e=e: lg.wait(f'rs{e}')))
            for t in range(2):
                a = acc(0, t, e)
                for q in range(4):
                    for r in range(4): items.append(f'v_mul_f32 v{a+4*q+r}, v{a+4*q+r}, v{RS+4*q+r}')
                    E = ET + 2*(q & 3)
                    items.append(f'v_cvt_pk_bf16_f32 v{E}, v{a+4*q}, v{a+4*q+1}'); items.append(f'v_cvt_pk_bf16_f32 v{E+1}, v{a+4*q+2}, v{a+4*q+3}')
                    items.append(('ds', f'ds_write_b64 v{V_UTW}, v[{E}:{E+1}] offset:{L_UT + t*16*528 + e*128 + q*32}', 'utw_last' if (e, t, q) == (1, 1, 3) else 'utw'))
        at(33, items, lo=True)
        UTB = 50
        bar_lg.setdefault(UTB, []).append('utw_last')
        rb = []
        for half in range(2):
            for e in range(4):
                E = ET + 4*e
                rb.append(('ds', f'ds_read_b128 v[{E}:{E+3}], v{V_UTR} offset:{L_UT + (4*half+e)*2*528}', f'utr{half}'))
            rb.append(('call', lambda half=half: lg.wait(f'utr{half}')))
            for e in range(4):
                E = ET + 4*e
                rb.append(f's_add_u32 s{S_EP}, s{S_UO}, {(4*half+e)*2*8192}')
                rb.append(('vm', f'buffer_store_dwordx4 v[{E}:{E+3}], v{V_UO}, s[{S_WS}:{S_WS+3}], s{S_EP} offen sc1', 'ust_last' if (half, e) == (1, 3) else 'ust'))
            rb.append('s_nop 0'); rb.append('s_nop 0')
        at(UTB, rb, lo=True)
        bar_pre[58] = ['ust_last']
        bar_post[58] = [flag_store([f's_lshl_b32 s{S_F0}, s{S_G}, 7', f's_lshl_b32 s{S_F1}, s{S_RB}, 2', f's_add_u32 s{S_F0}, s{S_F0}, s{S_F1}', f's_add_u32 s{S_F0}, s{S_F0}, {WS_UF}'], 'u')]
    NST = 64
    for n in range(NST):
        i, ks = n >> 2, n & 3
        p = i >> 3
        mand = []
        if ks == 2 and i + 1 < 16:
            for tg in bar_pre.get(n, []): assert tg in vm.ever, (n, tg)
            for tg in bar_lg.get(n, []): assert tg in lg.ever, (n, tg)
            vm.wait_many([('st', i + 1)] + bar_pre.get(n, []))
            for tg in bar_lg.get(n, []): lg.wait(tg)
            k('s_barrier')
            for x in bar_post.get(n, []): sc.emit(x)
            if i >= 1 and i + 3 < 16: mand += dma_group(i + 3)
        elif ks == 2:
            assert n not in bar_pre and n not in bar_lg
        rd = reads(n + 2) if n + 2 < NST else []
        if n in ev: sc.add(ev.pop(n))
        if n in evlo: sc.add(evlo.pop(n), lo=True)
        for x in direct.get(n, []): k(x)
        lg.wait(('fr', n))
        if st and n in (8, 16, 24, 32, 40, 48, 56): st.stamp(f'n{n}')
        kk = 4*(i & 7) + ks
        b0 = AF + 8*(n % 3)
        mand = rd + mand
        gap = 0
        for t in range(2):
            for e in range(2):
                a = acc(p, t, e); d = f'v[{a}:{a+15}]'; c = '0' if kk == 0 else d
                x = f'a[{xf(e, kk)}:{xf(e, kk)+3}]'; w = f'v[{b0+4*t}:{b0+4*t+3}]'
                if isB and p == 0: k(f'v_mfma_f32_32x32x16_bf16 {d}, {x}, {w}, {c}')
                else: k(f'v_mfma_f32_32x32x16_bf16 {d}, {w}, {x}, {c}')
                used = 0
                nm_ = (len(mand) + (3 - gap)) // (4 - gap)
                for _ in range(nm_):
                    used += sc.emit(mand.pop(0))
                if gap == 3 and n in cs_at:
                    for x_ in cs_at[n]: used += sc.emit(x_)
                sc.pop(max(0, BUDGET - used))
                gap += 1
        assert not mand
    assert not ev and not evlo, (ev.keys(), evlo.keys())
    if st: st.stamp('mfma_done')
    sc.flush()
    k.nop(9)
    for t in range(2):
        for e in range(2):
            for x in ffn_unit(1, t, e): sc.emit(x)
    lg.drain()
    return vm
BUDGET = 4
def remap_temps(items, lo, new, n):
    import re
    def f(s):
        def r1(m):
            v = int(m.group(1)); return f'v{v - lo + new}' if lo <= v < lo + n else m.group(0)
        def r2(m):
            a, b = int(m.group(1)), int(m.group(2))
            return f'v[{a-lo+new}:{b-lo+new}]' if lo <= a < lo + n else m.group(0)
        s = re.sub(r'v\[(\d+):(\d+)\]', r2, s)
        return re.sub(r'\bv(\d+)\b', r1, s)
    out = []
    for e in items:
        if isinstance(e, str): out.append(f(e))
        elif e[0] in ('vm', 'ds'): out.append((e[0], f(e[1])) + tuple(e[2:]))
        else: out.append(e)
    return out
UF, E64, E32, TW, WT_, D_, T_, B_, FB = 8, 40, 72, 96, 112, 120, 136, 152, 160
A_U, A_W = 2, 3
V_YW0, V_YW1, V_YR0, V_YR1, V_TMP, V_TMP2, V_PL = 192, 193, 194, 195, 196, 197, 198
V_L0B, V_TSB = 199, 212
def mf16(d, a, b, c):
    return f'v_mfma_f32_16x16x32_bf16 v[{d}:{d+3}], v[{a}:{a+3}], v[{b}:{b+3}], ' + ('0' if c is None else f'v[{c}:{c+3}]')
def flag_store_now(k, off_items, lab):
    k(f's_cmp_lg_u32 s{S_WV}, 0'); k(f's_cbranch_scc1 {lab}')
    for x in off_items: k(x)
    k(f'v_mov_b32 v{V_PL}, s{S_NON}')
    k(f'buffer_store_dword v{V_PL}, v{V_L0B}, s[{S_WS}:{S_WS+3}], s{S_F0} offen sc1')
    k.label(lab)
def p2a_consts(k, vm):
    L = V_L; S0 = T
    k(f'v_lshlrev_b32 v{V_TMP}, 4, v{L}')
    k(f's_lshl_b32 s{S0+4}, s{S_WV}, 13'); k(f's_add_u32 s{S0+4}, s{S0+4}, {TAB_E64}'); k(f's_add_u32 s{S0+5}, s{S0+4}, 4096')
    for idx in range(8):
        r = E64 + 4*idx
        vm.issue(f'buffer_load_dwordx4 v[{r}:{r+3}], v{V_TMP}, s[{S_TAB}:{S_TAB+3}], s{S0+4+(idx>>2)} offen offset:{(idx&3)*1024}', 'e64')
    k(f's_lshl_b32 s{S0+3}, s{S_WV}, 12'); k(f's_add_u32 s{S0+3}, s{S0+3}, {TAB_TW}')
    for i in range(4):
        vm.issue(f'buffer_load_dwordx4 v[{TW+4*i}:{TW+4*i+3}], v{V_TMP}, s[{S_TAB}:{S_TAB+3}], s{S0+3} offen offset:{i*1024}', 'tw')
    k(f's_mov_b32 s{S0+4}, {TAB_E32}'); k(f's_mov_b32 s{S0+5}, {TAB_E32+4096}')
    for i in range(6):
        vm.issue(f'buffer_load_dwordx4 v[{E32+4*i}:{E32+4*i+3}], v{V_TMP}, s[{S_TAB}:{S_TAB+3}], s{S0+4+(i>>2)} offen offset:{(i&3)*1024}', 'e32')
def p2a_poll_lines():
    L = V_L
    return [f's_lshr_b32 s{S_B}, s2, 6', f's_lshl_b32 s{S_C_}, s{S_B}, 7', f's_add_u32 s{S_C_}, s{S_C_}, {WS_UF}',
            f's_lshl_b32 s{S_B}, s{S_B}, 8', f's_add_u32 s{S_B}, s{S_B}, {WS_WTF}',
            f'v_lshlrev_b32 v{V_YW0}, 2, v{L}', f'v_and_b32 v{V_YW1}, 60, v{V_YW0}',
            f'buffer_load_dword v{V_YR0}, v{V_YW1}, s[{S_WS}:{S_WS+3}], s{S_C_} offen sc1',
            f'buffer_load_dword v{V_YR1}, v{V_YW0}, s[{S_WS}:{S_WS+3}], s{S_B} offen sc1']
def p2a_loads(k, vm):
    L = V_L; S0 = T
    k(f'v_lshrrev_b32 v{V_TMP}, 4, v{L}'); k(f'v_and_b32 v{V_TMP2}, 15, v{L}')
    k(f'v_lshlrev_b32 v{A_U}, 9, v{V_TMP}'); k(f'v_lshl_add_u32 v{A_U}, v{V_TMP2}, 4, v{A_U}')
    k(f'v_lshlrev_b32 v{A_W}, 7, v{V_TMP2}'); k(f'v_lshl_add_u32 v{A_W}, v{V_TMP}, 4, v{A_W}')
    k(f's_lshl_b32 s{S0}, s2, 13')
    k(f's_add_u32 s{S0+1}, s{S0}, {WS_U}'); k(f's_add_u32 s{S0+2}, s{S0+1}, 4096')
    k(f's_lshl_b32 s{S0+3}, s{S_WV}, 11'); k(f's_add_u32 s{S0+3}, s{S0+3}, s{S0}'); k(f's_add_u32 s{S0+3}, s{S0+3}, {WS_WT}')
    for ks in range(4):
        for mt in range(2):
            r = UF + 4*(mt*4+ks)
            vm.issue(f'buffer_load_dwordx4 v[{r}:{r+3}], v{A_U}, s[{S_WS}:{S_WS+3}], s{S0+1+(ks>>1)} offen offset:{(ks&1)*2048 + mt*256} sc1', 'u')
    for mt in range(2):
        vm.issue(f'buffer_load_dwordx4 v[{WT_+4*mt}:{WT_+4*mt+3}], v{A_W}, s[{S_WS}:{S_WS+3}], s{S0+3} offen offset:{mt*64} sc1', 'wt')
def p2a_compute(k, vm, st):
    L = V_L; S0 = T; D, Tt, B = D_, T_, B_
    k(f'v_and_b32 v{V_TMP2}, 15, v{L}')
    k(f'v_lshlrev_b32 v{V_YW0}, 6, v{V_TMP2}')
    k(f'v_bfe_u32 v{V_TMP}, v{L}, 2, 1'); k(f'v_lshl_add_u32 v{V_YW0}, v{V_TMP}, 5, v{V_YW0}')
    k(f'v_lshrrev_b32 v{V_TMP}, 4, v{L}'); k(f'v_lshl_add_u32 v{V_YW0}, v{V_TMP}, 3, v{V_YW0}')
    k(f's_lshl_b32 s{S0}, s{S_WV}, 10'); k(f's_add_u32 s{S0}, s{S0}, {L_Y}'); k(f'v_add_u32 v{V_YW0}, s{S0}, v{V_YW0}')
    k(f'v_xor_b32 v{V_YW1}, 32, v{V_YW0}')
    k(f'v_lshrrev_b32 v{V_TMP}, 2, v{L}'); k(f'v_lshlrev_b32 v{V_YR0}, 6, v{V_TMP}')
    k(f'v_bfe_u32 v{V_TMP}, v{L}, 4, 1'); k(f'v_lshl_add_u32 v{V_YR0}, v{V_TMP}, 5, v{V_YR0}')
    k(f'v_and_b32 v{V_TMP}, 3, v{L}'); k(f'v_lshl_add_u32 v{V_YR0}, v{V_TMP}, 3, v{V_YR0}')
    k(f'v_add_u32 v{V_YR0}, {L_Y}, v{V_YR0}'); k(f'v_xor_b32 v{V_YR1}, 32, v{V_YR0}')
    vm.wait('u')
    if st: st.stamp('u_ok')
    for ks in range(4):
        for mt in range(2):
            for var in range(2):
                d = D + 4*(mt*2+var)
                k(mf16(d, UF + 4*(mt*4+ks), E64 + 4*(ks*2+var), None if ks == 0 else d))
    k.nop(8)
    def twiddle(sign):
        for mt in range(2):
            for r in range(4):
                R, I = D + 8*mt + r, D + 8*mt + 4 + r; c = TW + 8*mt + r
                k(f'v_mul_f32 v{Tt+8*mt+r}, v{R}, v{c}'); k(f'v_mul_f32 v{Tt+8*mt+4+r}, v{I}, v{c}')
            for r in range(4):
                R, I = D + 8*mt + r, D + 8*mt + 4 + r; s_ = TW + 8*mt + 4 + r
                k(f'v_fma_f32 v{Tt+8*mt+r}, {"" if sign > 0 else "-"}v{I}, v{s_}, v{Tt+8*mt+r}')
                k(f'v_fma_f32 v{Tt+8*mt+4+r}, {"-" if sign > 0 else ""}v{R}, v{s_}, v{Tt+8*mt+4+r}')
    def pack():
        for mt in range(2):
            for part in range(2):
                k(f'v_cvt_pk_bf16_f32 v{B+4*part+2*mt}, v{Tt+8*mt+4*part}, v{Tt+8*mt+4*part+1}')
                k(f'v_cvt_pk_bf16_f32 v{B+4*part+2*mt+1}, v{Tt+8*mt+4*part+2}, v{Tt+8*mt+4*part+3}')
    twiddle(+1); pack(); k.nop(2)
    Br, Bi = B, B + 4
    C32 = lambda mt: E32 + 12*mt; S32 = lambda mt: E32 + 12*mt + 4; N32 = lambda mt: E32 + 12*mt + 8
    for mt in range(2):
        k(mf16(D + 8*mt, C32(mt), Br, None)); k(mf16(D + 8*mt + 4, C32(mt), Bi, None))
    for mt in range(2):
        k(mf16(D + 8*mt, S32(mt), Bi, D + 8*mt)); k(mf16(D + 8*mt + 4, N32(mt), Br, D + 8*mt + 4))
    vm.wait('wt')
    for mt in range(2):
        for r in range(4):
            k(f'v_lshlrev_b32 v{UF+4*mt+r}, 16, v{WT_+4*mt+r}'); k(f'v_and_b32 v{UF+8+4*mt+r}, 0xffff0000, v{WT_+4*mt+r}')
    for mt in range(2):
        for r in range(4):
            R = D + 8*mt + r
            k(f'v_mul_f32 v{Tt+8*mt+r}, v{R}, v{UF+4*mt+r}'); k(f'v_mul_f32 v{Tt+8*mt+4+r}, v{R}, v{UF+8+4*mt+r}')
        for r in range(4):
            I = D + 8*mt + 4 + r
            k(f'v_fma_f32 v{Tt+8*mt+r}, -v{I}, v{UF+8+4*mt+r}, v{Tt+8*mt+r}')
            k(f'v_fma_f32 v{Tt+8*mt+4+r}, v{I}, v{UF+4*mt+r}, v{Tt+8*mt+4+r}')
    pack(); k.nop(2)
    for mt in range(2):
        k(mf16(D + 8*mt, C32(mt), Br, None)); k(mf16(D + 8*mt + 4, C32(mt), Bi, None))
    for mt in range(2):
        k(mf16(D + 8*mt, N32(mt), Bi, D + 8*mt)); k(mf16(D + 8*mt + 4, S32(mt), Br, D + 8*mt + 4))
    k.nop(8)
    twiddle(-1); pack()
    for mt in range(2):
        va = V_YW0 if mt == 0 else V_YW1
        k(f'ds_write_b64 v{va}, v[{B+4+2*mt}:{B+4+2*mt+1}]'); k(f'ds_write_b64 v{va}, v[{B+2*mt}:{B+2*mt+1}] offset:4096')
    k('s_waitcnt lgkmcnt(0)'); k('s_barrier')
    if st: st.stamp('transp')
    for nt in range(2):
        va = V_YR0 if nt == 0 else V_YR1
        for ks in range(4):
            r = FB + 4*(nt*4+ks)
            k(f'ds_read_b64_tr_b16 v[{r}:{r+1}], v{va} offset:{ks*1024}'); k(f'ds_read_b64_tr_b16 v[{r+2}:{r+3}], v{va} offset:{4096 + ks*1024}')
    k(f's_lshl_b32 s{S0}, s2, 13'); k(f's_lshl_b32 s{S0+1}, s{S_WV}, 11'); k(f's_add_u32 s{S0}, s{S0}, s{S0+1}'); k(f's_add_u32 s{S0}, s{S0}, {WS_V}')
    for nt in range(2):
        k(f's_waitcnt lgkmcnt({8 if nt == 0 else 0})')
        for ks in range(4):
            f = FB + 4*(nt*4+ks)
            k(mf16(D + 8*nt + 4, E64 + 4*(ks*2+0), f, None if ks == 0 else D + 8*nt + 4))
            k(mf16(D + 8*nt, E64 + 4*(ks*2+1), f, None if ks == 0 else D + 8*nt))
    k.nop(8)
    for nt in range(2):
        o = B + 4*nt
        k(f'v_cvt_pk_bf16_f32 v{o}, v{D+8*nt}, v{D+8*nt+1}'); k(f'v_cvt_pk_bf16_f32 v{o+1}, v{D+8*nt+2}, v{D+8*nt+3}')
        k(f'v_cvt_pk_bf16_f32 v{o+2}, v{D+8*nt+4}, v{D+8*nt+5}'); k(f'v_cvt_pk_bf16_f32 v{o+3}, v{D+8*nt+6}, v{D+8*nt+7}')
        vm.issue(f'buffer_store_dwordx4 v[{o}:{o+3}], v{A_U}, s[{S_WS}:{S_WS+3}], s{S0} offen offset:{nt*256} sc1', 'vst')
RING = 18
HD = 8
G_H = 8
G_TR = 72
G_ACC = 128
G_X = 88
V_DW, V_DV, V_DH, V_TW0, V_TW1, V_TV0, V_TV1, V_RA, V_OO, V_G0, V_G1, V_GP = 200, 201, 202, 203, 204, 205, 206, 207, 208, 209, 210, 211
S_HB, S_W2B, S_VB, S_GB, S_LB = 48, 49, 50, 51, 52
RED_STRIDE = 1056; RED_W = 16*RED_STRIDE
def g2_setup(k):
    L, T0, T1 = V_L, V_G0, V_G1
    k(f'v_lshlrev_b32 v{V_DH}, 4, v{L}')
    k(f's_lshl_b32 s{T}, s{S_RB2}, 2'); k(f's_lshl_b32 s{T+1}, s{S_G2}, 1'); k(f's_add_u32 s{T}, s{T}, s{T+1}')
    k(f's_mul_i32 s{T}, s{T}, 112'); k(f's_mul_i32 s{T+1}, s{S_WV}, 28'); k(f's_add_u32 s{T}, s{T}, s{T+1}')
    k(f's_lshl_b32 s{S_HB}, s{T}, 10'); k(f's_add_u32 s{S_HB}, s{S_HB}, {WS_H}')
    k(f'v_lshrrev_b32 v{T0}, 3, v{L}'); k(f'v_lshlrev_b32 v{V_DW}, 10, v{T0}')
    k(f'v_bfe_u32 v{T0}, v{L}, 4, 1'); k(f'v_bfe_u32 v{T1}, v{L}, 2, 1'); k(f'v_xor_b32 v{T0}, v{T0}, v{T1}')
    k(f'v_lshl_add_u32 v{V_DW}, v{T0}, 6, v{V_DW}'); k(f'v_and_b32 v{T0}, 3, v{L}'); k(f'v_lshl_add_u32 v{V_DW}, v{T0}, 4, v{V_DW}')
    k(f's_mul_i32 s{S_W2B}, s{S_WV}, {28*16*1024}'); k(f's_lshl_b32 s{T}, s{S_CB2}, 7'); k(f's_add_u32 s{S_W2B}, s{S_W2B}, s{T}')
    k(f'v_lshrrev_b32 v{T0}, 4, v{L}'); k(f'v_lshlrev_b32 v{V_DV}, 13, v{T0}')
    k(f'v_and_b32 v{T0}, 1, v{T0}'); k(f'v_lshlrev_b32 v{T0}, 3, v{T0}'); k(f'v_and_b32 v{T1}, 15, v{L}'); k(f'v_xor_b32 v{T0}, v{T0}, v{T1}')
    k(f'v_lshl_add_u32 v{V_DV}, v{T0}, 4, v{V_DV}')
    k(f's_lshl_b32 s{S_VB}, s{S_WV}, 19'); k(f's_lshl_b32 s{T}, s{S_RB2}, 9'); k(f's_add_u32 s{S_VB}, s{S_VB}, s{T}')
    k(f's_lshl_b32 s{T}, s{S_G2}, 8'); k(f's_add_u32 s{S_VB}, s{S_VB}, s{T}'); k(f's_add_u32 s{S_VB}, s{S_VB}, {WS_V}')
    k(f's_lshl_b32 s{S_GB}, s{S_CB2}, 16'); k(f's_lshl_b32 s{T}, s{S_WV}, 14'); k(f's_add_u32 s{S_GB}, s{S_GB}, s{T}'); k(f's_add_u32 s{S_GB}, s{S_GB}, {TAB_G}')
    k(f's_mul_i32 s{S_LB}, s{S_WV}, {RING*2048}')
    k(f'v_lshrrev_b32 v{T0}, 5, v{L}'); k(f'v_lshlrev_b32 v{V_TW0}, 9, v{T0}')
    k(f'v_bfe_u32 v{T0}, v{L}, 2, 2'); k(f'v_lshl_add_u32 v{V_TW0}, v{T0}, 7, v{V_TW0}')
    k(f'v_bfe_u32 v{T0}, v{L}, 3, 1'); k(f'v_lshl_add_u32 v{V_TW0}, v{T0}, 6, v{V_TW0}')
    k(f'v_bfe_u32 v{T0}, v{L}, 4, 1'); k(f'v_lshl_add_u32 v{V_TW0}, v{T0}, 5, v{V_TW0}')
    k(f'v_and_b32 v{T0}, 3, v{L}'); k(f'v_lshl_add_u32 v{V_TW0}, v{T0}, 3, v{V_TW0}')
    k(f'v_add_u32 v{V_TW0}, s{S_LB}, v{V_TW0}'); k(f'v_xor_b32 v{V_TW1}, 64, v{V_TW0}')
    k(f'v_lshrrev_b32 v{T0}, 5, v{L}'); k(f'v_lshlrev_b32 v{V_TV0}, 10, v{T0}')
    k(f'v_bfe_u32 v{T0}, v{L}, 3, 1'); k(f'v_lshl_add_u32 v{V_TV0}, v{T0}, 8, v{V_TV0}'); k(f'v_lshl_add_u32 v{V_TV0}, v{T0}, 7, v{V_TV0}')
    k(f'v_bfe_u32 v{T0}, v{L}, 4, 1'); k(f'v_lshl_add_u32 v{V_TV0}, v{T0}, 6, v{V_TV0}')
    k(f'v_and_b32 v{T0}, 3, v{L}'); k(f'v_lshl_add_u32 v{V_TV0}, v{T0}, 4, v{V_TV0}')
    k(f'v_bfe_u32 v{T0}, v{L}, 2, 1'); k(f'v_lshl_add_u32 v{V_TV0}, v{T0}, 3, v{V_TV0}')
    k(f'v_add_u32 v{V_TV0}, s{S_LB}, v{V_TV0}'); k(f'v_xor_b32 v{V_TV1}, 128, v{V_TV0}')
    k(f's_lshr_b32 s{T}, s{S_WV}, 1'); k(f's_and_b32 s{T+1}, s{S_WV}, 1'); k(f's_lshl_b32 s{T+1}, s{T+1}, 4')
    k(f'v_lshrrev_b32 v{T0}, 3, v{L}'); k(f'v_add_u32 v{T0}, s{T+1}, v{T0}')
    k(f'v_and_b32 v{T1}, 7, v{L}')
    k(f'v_mul_u32_u24 v{V_RA}, {RED_STRIDE}, v{T1}'); k(f'v_lshl_add_u32 v{V_RA}, v{T0}, 4, v{V_RA}')
    k(f's_mul_i32 s{T+2}, s{T}, {8*RED_STRIDE}'); k(f'v_add_u32 v{V_RA}, s{T+2}, v{V_RA}')
    k(f'v_lshlrev_b32 v{V_OO}, 4, v{T1}')
    k(f'v_and_b32 v{T1}, 3, v{T0}'); k(f'v_lshl_add_u32 v{V_OO}, v{T1}, 15, v{V_OO}')
    k(f'v_lshrrev_b32 v{T1}, 3, v{T0}'); k(f'v_lshl_add_u32 v{V_OO}, v{T1}, 11, v{V_OO}')
    k(f'v_bfe_u32 v{T1}, v{T0}, 2, 1'); k(f'v_lshl_add_u32 v{V_OO}, v{T1}, 10, v{V_OO}')
    k(f's_lshl_b32 s{T+2}, s{S_G2}, 1'); k(f's_add_u32 s{T+2}, s{T+2}, s{T}'); k(f's_lshl_b32 s{T+2}, s{T+2}, 13')
    k(f's_lshl_b32 s{T+3}, s{S_RB2}, 17'); k(f's_add_u32 s{T+2}, s{T+2}, s{T+3}')
    k(f's_lshl_b32 s{T+3}, s{S_CB2}, 7'); k(f's_add_u32 s{T+2}, s{T+2}, s{T+3}')
    k(f'v_add_u32 v{V_OO}, s{T+2}, v{V_OO}')
def g2_w2_dma(k, vm, n):
    slot = n % RING
    k(f's_add_u32 m0, s{S_LB}, {slot*2048}'); k(f's_add_u32 s{T}, s{S_W2B}, {16*n*1024}')
    vm.issue(f'buffer_load_dwordx4 v{V_DW}, s[{S_W2}:{S_W2+3}], s{T} offen lds', ('w', n))
    k(f's_add_u32 m0, s{S_LB}, {slot*2048 + 1024}'); k(f's_add_u32 s{T}, s{S_W2B}, {(16*n + 8)*1024}')
    vm.issue(f'buffer_load_dwordx4 v{V_DW}, s[{S_W2}:{S_W2+3}], s{T} offen lds', ('w', n))
def g2_prefetch(k, vm):
    for n in range(RING): g2_w2_dma(k, vm, n)
    for c in range(8):
        k(f's_add_u32 s{T}, s{S_GB}, {c*2048}')
        for e in range(2):
            vm.issue(f'buffer_load_dwordx4 a[{8*c+4*e}:{8*c+4*e+3}], v{V_DH}, s[{S_TAB}:{S_TAB+3}], s{T} offen offset:{e*1024}', 'g')
def g2_main(k, vm, st):
    L, T0, T1 = V_L, V_G0, V_G1
    NF, NS = 28, 36
    hp = [f's_lshl_b32 s{S_B}, s{S_RB2}, 7', f's_add_u32 s{S_B}, s{S_B}, {WS_HF}', f'v_lshlrev_b32 v{V_GP}, 2, v{L}', f'v_and_b32 v{V_GP}, 60, v{V_GP}',
          f'buffer_load_dword v{T0}, v{V_GP}, s[{S_WS}:{S_WS+3}], s{S_B} offen sc1']
    for x in hp[:-1]: k(x)
    vm.issue(hp[-1], 'hp'); vm.wait('hp')
    tag_check(k, 'hf', [T0], hp)
    if st: st.stamp('hf_ok')
    def h_issue(n):
        d = G_H + 8*(n % HD)
        for e in range(2):
            k(f's_add_u32 s{T}, s{S_HB}, {n*1024 + e*112*1024}')
            vm.issue(f'buffer_load_dwordx4 v[{d+4*e}:{d+4*e+3}], v{V_DH}, s[{S_WS}:{S_WS+3}], s{T} offen sc1', ('h', n))
    def v_dma(n):
        c = n - NF; slot = n % RING
        for e in range(2):
            k(f's_add_u32 m0, s{S_LB}, {slot*2048 + e*1024}'); k(f's_add_u32 s{T}, s{S_VB}, {(8*c + 4*e)*8192}')
            vm.issue(f'buffer_load_dwordx4 v{V_DV}, s[{S_WS}:{S_WS+3}], s{T} offen sc1 lds', ('w', n))
    def reads(n):
        slot = n % RING; b = G_TR + 8*(n & 1)
        for t in range(2):
            va = (V_TW0, V_TW1)[t] if n < NF else (V_TV0, V_TV1)[t]
            for part in range(2):
                off = slot*2048 + (part*8*128 if n < NF else part*2*256)
                k(f'ds_read_b64_tr_b16 v[{b+4*t+2*part}:{b+4*t+2*part+1}], v{va} offset:{off}')
    for n in range(HD - 1): h_issue(n)
    for j in range(2):
        vm.issue(f'buffer_load_dwordx4 v[{G_X+4*j}:{G_X+4*j+3}], v{V_OO}, s[{S_X}:{S_X+3}], 0 offen offset:{j*2048}', 'x')
    vp = [f's_lshl_b32 s{S_B}, s{S_WV}, 8', f's_add_u32 s{S_B}, s{S_B}, {WS_VF}', f'v_lshlrev_b32 v{V_GP}, 2, v{L}',
          f'buffer_load_dword v{T1}, v{V_GP}, s[{S_WS}:{S_WS+3}], s{S_B} offen sc1']
    vm.wait(('w', 0)); reads(0)
    for n in range(NS):
        if n + 1 < NS:
            vm.wait(('w', n + 1)); reads(n + 1)
        if n < NF: vm.wait(('h', n))
        else: vm.wait('g')
        k(f's_waitcnt lgkmcnt({4 if n + 1 < NS else 0})')
        b = G_TR + 8*(n & 1)
        for e in range(2):
            for ct in range(2):
                a_ = f'v[{G_ACC+16*(2*e+ct)}:{G_ACC+16*(2*e+ct)+15}]'; c_ = '0' if n == 0 else a_
                if n < NF:
                    d = G_H + 8*(n % HD)
                    k(f'v_mfma_f32_32x32x16_bf16 {a_}, v[{b+4*ct}:{b+4*ct+3}], v[{d+4*e}:{d+4*e+3}], {c_}')
                else:
                    g = 8*(n - NF) + 4*ct
                    k(f'v_mfma_f32_32x32x16_bf16 {a_}, a[{g}:{g+3}], v[{b+4*e}:{b+4*e+3}], {c_}')
        if n + HD - 1 < NF: h_issue(n + HD - 1)
        m = n + RING - 1
        if n >= 1 and m < NF: g2_w2_dma(k, vm, m)
        if n == 4:
            for x in vp[:-1]: k(x)
            vm.issue(vp[-1], 'vp')
        if n == 10:
            vm.wait('vp'); tag_check(k, 'vf', [T1], vp)
            if st: st.stamp('vf_ok')
        if n >= 11 and n - 11 + NF < NS: v_dma(n - 11 + NF)
    if st: st.stamp('kdone')
    k('s_barrier')
    k(f's_mul_i32 s{T}, s{S_WV}, {RED_W}'); k(f'v_lshl_add_u32 v{T0}, v{L}, 4, s{T}')
    k.nop(10)
    for e in range(2):
        for ct in range(2):
            for q in range(4):
                r = G_ACC + 16*(2*e+ct) + 4*q
                k(f'ds_write_b128 v{T0}, v[{r}:{r+3}] offset:{((e*2+ct)*4+q)*RED_STRIDE}')
    k('s_waitcnt lgkmcnt(0)'); k('s_barrier')
    if st: st.stamp('redw')
    for j in range(2):
        for w in range(4):
            r = G_ACC + 32*j + 8*w
            k(f'ds_read_b128 v[{r}:{r+3}], v{V_RA} offset:{w*RED_W + j*128}')
            k(f'ds_read_b128 v[{r+4}:{r+7}], v{V_RA} offset:{w*RED_W + j*128 + 512}')
    vm.wait('x')
    for j in range(2):
        S = G_ACC + 32*j
        for w in range(1, 4):
            k(f's_waitcnt lgkmcnt({min(15, 8*(1-j) + 2*(3-w))})')
            for i in range(8): k(f'v_add_f32 v{S+i}, v{S+i}, v{S+8*w+i}')
        for i in range(4):
            x = G_X + 4*j + i
            k(f'v_lshlrev_b32 v{T0}, 16, v{x}'); k(f'v_and_b32 v{T1}, 0xffff0000, v{x}')
            k(f'v_add_f32 v{S+2*i}, v{S+2*i}, v{T0}'); k(f'v_add_f32 v{S+2*i+1}, v{S+2*i+1}, v{T1}')
            k(f'v_cvt_pk_bf16_f32 v{x}, v{S+2*i}, v{S+2*i+1}')
        vm.issue(f'buffer_store_dwordx4 v[{G_X+4*j}:{G_X+4*j+3}], v{V_OO}, s[{S_OUT}:{S_OUT+3}], 0 offen offset:{j*2048}', 'o')
def build(ts=False):
    global slow_paths
    slow_paths.clear(); slow_id[0] = 0
    k = K()
    st = Stamps(k, ts, 0, vts=V_TS)
    k('s_cmp_ge_u32 s2, 256'); k('s_cbranch_scc1 L_end')
    st.stamp('start')
    if 'dbgts' in OPT: k('s_memrealtime s[84:85]'); k('s_waitcnt lgkmcnt(0)'); k('s_mov_b32 s101, s84')
    prologue(k, st)
    k(f's_cmp_ge_u32 s{S_CB}, 12'); k('s_cbranch_scc1 L_typeB')
    n0, nm0 = st.n, list(st.names)
    sta = st if ts else None
    p1_body(k, False, sta)
    k('s_branch L_common')
    st.n, st.names = n0, list(nm0)
    k.label('L_typeB')
    p1_body(k, True, sta)
    k.label('L_common')
    vm = VM(k)
    k(f'v_mov_b32 v{V_L0B}, v{V_L0}')
    if ts: k(f'v_mov_b32 v{V_TSB}, v{V_TS}'); st.vts = V_TSB
    st.stamp('p1_end')
    p2a_consts(k, vm)
    pl = p2a_poll_lines()
    for x in pl: k(x)
    k('s_waitcnt vmcnt(0)'); vm.q = []
    k('s_barrier')
    flag_store_now(k, [f's_lshl_b32 s{S_F0}, s{S_RB}, 7', f's_lshl_b32 s{S_F1}, s{S_CB}, 2', f's_add_u32 s{S_F0}, s{S_F0}, s{S_F1}', f's_add_u32 s{S_F0}, s{S_F0}, {WS_HF}'], 'L_fl_h')
    st.stamp('hflag')
    tag_check(k, 'p2a', [V_YR0, V_YR1], pl)
    p2a_loads(k, vm)
    g2_setup(k)
    g2_prefetch(k, vm)
    p2a_compute(k, vm, sta)
    vm.wait('vst')
    k('s_barrier')
    flag_store_now(k, [f's_lshl_b32 s{S_F0}, s2, 2', f's_add_u32 s{S_F0}, s{S_F0}, {WS_VF}'], 'L_fl_v')
    st.stamp('vflag')
    g2_main(k, vm, sta)
    k('s_cmp_lg_u32 s2, 0'); k('s_cbranch_scc1 L_noep')
    flag_store_now(k, [f's_mov_b32 s{S_F0}, {WS_EPOCH}'], 'L_fl_e')
    k.label('L_noep')
    if 'dbgts' in OPT:
        k('s_waitcnt vmcnt(0)'); k('s_memrealtime s[64:65]'); k('s_waitcnt lgkmcnt(0)')
        k('s_not_b32 s101, s101'); k('v_mov_b32 v2, s101'); k('v_mov_b32 v3, s64'); k('v_mov_b32 v4, 48'); k('v_mov_b32 v5, 52')
        k(f'v_cndmask_b32 v4, v4, v4, vcc')
        k('s_mov_b64 exec, 1')
        k(f'buffer_atomic_umax v2, v4, s[{S_DBG}:{S_DBG+3}], 0 offen sc1'); k(f'buffer_atomic_umax v3, v5, s[{S_DBG}:{S_DBG+3}], 0 offen sc1')
        k('s_mov_b64 exec, -1')
    st.flush(2, 3)
    k.label('L_end'); k('s_endpgm')
    for sp in slow_paths: k.l += sp.l
    probs = check(k.l, 'fused')
    if probs: print('\n'.join(probs[:10])); raise SystemExit('hazards')
    hdr = f"""; fused LayerNorm + GFNet spectral filter + SwiGLU MLP + residual sum (persistent, one workgroup per CU)
; @launch grid=(256,1,1) block=(256,1,1) lds={LDS_TOTAL}
.amdgcn_target "amdgcn-amd-amdhsa--gfx950"
"""
    out = hdr + kernel_header(NAME) + k.text() + kernel_desc(NAME, 512, sgpr=102, accum=256) + tables_asm()
    if ts: out += '; TSNAMES 0 ' + ' '.join(st.names) + '\n'
    return out
if __name__ == '__main__':
    dst = sys.argv[1]
    OPT.update(a for a in sys.argv[2:])
    s = build(ts='ts' in sys.argv)
    open(dst, 'w').write(s)
    print(len(s), 'bytes ->', dst)
```

```python
import sys
from asmgen import *
from tables import tables_asm, TAB_F, TAB_G, TAB_E64, TAB_E32, TAB_TW, TAB_END
import common as C
from common import VM, Stamps, kernel_header, kernel_desc, S_X, S_W1, S_W3, S_W2, S_WS, S_OUT, S_TAB, S_WR, S_WI
NAME = 'parallel_sum__spectral_gfnet__glu_gated_swiglu__prompt_kernel'
OPT = set()
WS_EPOCH = 0x0
WS_HF = 0x1000
WS_UF = 0x2000
WS_WTF = 0x3000
WS_VF = 0x4000
WS_ST = 0x10000
WS_CS = 0x20000
WS_WT, WS_U, WS_V, WS_H = 0x100000, 0x300000, 0x500000, 0x700000
WS_SIZE = 0x1400000
C.WS_WT, C.WS_U, C.WS_V, C.WS_H = WS_WT, WS_U, WS_V, WS_H
S_WV, S_WR_, S_WC, S_RB, S_CB, S_G, S_NON, S_ROT = 40, 41, 42, 43, 44, 45, 46, 47
S_XO, S_WO0, S_WO1, S_FO, S_HO, S_UO = 48, 49, 50, 51, 52, 53
S_MX, S_MW1 = 54, 55
T = 56
S_RB2, S_G2, S_CB2 = 84, 85, 86
S_SX, S_SW = 87, 88
S_PAR = 89
S_ST = 101
S_K2, S_CBLK = 90, 91
S_A, S_B, S_C_, S_D = 92, 93, 94, 95
L_X, L_W = 0x0000, 0x10000
L_UT = 0x0000
L_MISC = 0x24000
L_U = L_MISC
L_Y = L_MISC + 0x2000
L_WTB = L_MISC
L_AX = L_MISC + 0x2400
L_RS = L_AX + 0x1000
L_CSW = 0x20000
LDS_TOTAL = 0x28000
V_L = 1
V_XA = 2
V_WA = 6
V_FA = 8
V_XD = 9
V_W1D = 13
V_W3D = 15
V_FD = 17
V_C1, V_C2 = 18, 20
V_BX = 24
V_HO, V_UTW, V_UTR, V_UO = 32, 33, 34, 35
V_ONE = 36
V_SR = 40
V_WTD = 48
V_STG = 64
V_CSG = 68
V_A0, V_A1, V_A2, V_A3 = 76, 77, 78, 79
ET = 80
AF = 104
ACC = 128
V_TS = 23
V_L0 = 22
S_F0, S_F1 = 96, 97
S_EP, S_EP2 = 98, 99
S_SPIN = 100
S_DBG = 68
SPIN_MAX = 100000
slow_id = [0]
V_L0T = 42
V_EA = 41
def acc(p, t, e): return ACC + p*64 + t*32 + e*16
def xf(e, kk): return (e*32 + kk)*4
class Sched:
    def __init__(self, k, vm): self.k = k; self.vm = vm; self.q = []
    def add(self, items): self.q += items
    def pop(self, nmax):
        c = 0
        while self.q and c < nmax:
            e = self.q[0]
            if e == 'STEP': return
            self.q.pop(0)
            if isinstance(e, tuple):
                if e[0] == 'vm': self.vm.issue(e[1], e[2])
                elif e[0] == 'call': e[1]()
                elif e[0] == 'grp':
                    for x in e[1]:
                        if isinstance(x, tuple): self.vm.issue(x[1], x[2])
                        else: self.k(x)
                    c += len(e[1]) - 1
            else: self.k(e)
            c += 1
    def newstep(self):
        if self.q and self.q[0] == 'STEP': self.q.pop(0)
    def flush(self):
        while self.q:
            if self.q[0] == 'STEP':
                self.q.pop(0); self.k('s_waitcnt lgkmcnt(0)')
            else: self.pop(1)
slow_paths = []
def tag_check(k, label, regs, reload_lines):
    k(f'v_cmp_ne_u32 vcc, s{S_NON}, v{regs[0]}')
    for r in regs[1:]:
        k(f'v_cmp_ne_u32 s[{T+6}:{T+7}], s{S_NON}, v{r}'); k('s_nop 0'); k(f's_or_b64 vcc, vcc, s[{T+6}:{T+7}]')
    k('s_nop 1')
    k('s_cmp_lg_u64 vcc, 0'); k(f's_cbranch_scc1 L_slow_{label}')
    k.label(f'L_back_{label}')
    sp = K()
    slow_id[0] += 1
    sp.label(f'L_slow_{label}')
    sp(f's_sub_u32 s{S_SPIN}, s{S_SPIN}, 1'); sp(f's_cbranch_scc1 L_tmo_{label}')
    sp('s_sleep 2')
    for l in reload_lines: sp(l)
    sp('s_waitcnt vmcnt(0)')
    sp(f'v_cmp_ne_u32 vcc, s{S_NON}, v{regs[0]}')
    for r in regs[1:]:
        sp(f'v_cmp_ne_u32 s[{T+6}:{T+7}], s{S_NON}, v{r}'); sp('s_nop 0'); sp(f's_or_b64 vcc, vcc, s[{T+6}:{T+7}]')
    sp('s_nop 1')
    sp('s_cmp_lg_u64 vcc, 0'); sp(f's_cbranch_scc1 L_slow_{label}')
    sp(f's_branch L_back_{label}')
    sp.label(f'L_tmo_{label}')
    sp(f's_mov_b32 s{S_SPIN}, 0')
    sp(f'v_mov_b32 v{regs[0]}, {slow_id[0]}'); sp(f'v_mov_b32 v{V_L0T}, {4*slow_id[0]}')
    sp(f'buffer_store_dword v{regs[0]}, v{V_L0T}, s[{S_DBG}:{S_DBG+3}], 0 offen')
    sp(f's_branch L_back_{label}')
    slow_paths.append(sp)
def srd(k, s, lo, hi, size):
    k(f's_mov_b32 s{s}, s{lo}'); k(f's_mov_b32 s{s+1}, s{hi}'); k(f's_mov_b32 s{s+2}, {size}'); k(f's_mov_b32 s{s+3}, 0x20000')
def prologue(k, st):
    L, T0, T1, T2 = V_L, V_A0, V_A1, V_A2
    k('s_load_dwordx16 s[64:79], s[0:1], 0'); k('s_load_dwordx4 s[80:83], s[0:1], 64')
    k(f'v_and_b32 v{L}, 63, v0'); k(f'v_lshrrev_b32 v{T0}, 6, v0'); k('s_nop 0')
    k(f'v_readfirstlane_b32 s{S_WV}, v{T0}')
    k(f's_and_b32 s{T}, s2, 7'); k(f's_lshr_b32 s{T+1}, s2, 3')
    k(f's_and_b32 s{S_WR_}, s{S_WV}, 1'); k(f's_lshr_b32 s{S_WC}, s{S_WV}, 1')
    k(f's_and_b32 s{S_RB}, s{T}, 1'); k(f's_lshl_b32 s{S_RB}, s{S_RB}, 3')
    k(f's_and_b32 s{T+2}, s{T+1}, 7'); k(f's_add_u32 s{S_RB}, s{S_RB}, s{T+2}')
    k(f's_lshr_b32 s{S_G}, s{T}, 1'); k(f's_lshr_b32 s{T+2}, s{T+1}, 3')
    k(f's_mul_i32 s{S_CB}, s{S_G}, 3'); k(f's_add_u32 s{S_CB}, s{S_CB}, s{T+2}'); k(f's_add_u32 s{T+3}, s{S_G}, 12')
    k(f's_cmp_eq_u32 s{T+2}, 3'); k(f's_cselect_b32 s{S_CB}, s{T+3}, s{S_CB}')
    k(f's_lshl_b32 s{T+2}, s{T}, 2'); k(f's_and_b32 s{T+3}, s{T+1}, 3'); k(f's_add_u32 s{T+2}, s{T+2}, s{T+3}')
    k(f's_lshr_b32 s{S_RB2}, s{T+2}, 1'); k(f's_and_b32 s{S_G2}, s{T+2}, 1'); k(f's_lshr_b32 s{S_CB2}, s{T+1}, 2')
    k(f's_lshr_b32 s{S_ROT}, s{S_RB}, 1'); k(f's_lshr_b32 s{T+2}, s{T+1}, 3'); k(f's_lshl_b32 s{T+2}, s{T+2}, 1'); k(f's_add_u32 s{S_ROT}, s{S_ROT}, s{T+2}')
    k(f's_and_b32 s{S_ROT}, s{S_ROT}, 7'); k(f's_and_b32 s{S_PAR}, s{S_RB}, 1')
    k(f's_lshr_b32 s{S_K2}, s2, 2'); k(f's_and_b32 s{S_CBLK}, s2, 3')
    k(f'v_lshrrev_b32 v{T0}, 3, v{L}')
    k(f'v_and_b32 v{T1}, 3, v{T0}'); k(f'v_lshlrev_b32 v{T1}, 15, v{T1}')
    k(f'v_lshrrev_b32 v{T2}, 2, v{T0}'); k(f'v_lshl_add_u32 v{T1}, v{T2}, 10, v{T1}')
    k(f's_lshl_b32 s{T+2}, s{S_WV}, 13'); k(f'v_add_u32 v{T1}, s{T+2}, v{T1}')
    k(f'v_and_b32 v{T2}, 7, v{L}')
    for e in range(4):
        k(f'v_lshrrev_b32 v{V_A3}, 4, v{L}'); k(f'v_add_u32 v{V_A3}, {4*e}, v{V_A3}'); k(f'v_and_b32 v{V_A3}, 7, v{V_A3}')
        k(f'v_xor_b32 v{V_A3}, v{V_A3}, v{T2}'); k(f'v_lshl_add_u32 v{V_XD+e}, v{V_A3}, 4, v{T1}')
        if e: k(f'v_add_u32 v{V_XD+e}, {e*1024}, v{V_XD+e}')
    k(f's_lshl_b32 s{T+2}, s{S_WV}, 4'); k(f'v_add_u32 v{T0}, s{T+2}, v{T0}')
    k(f'v_bfe_u32 v{T1}, v{L}, 4, 1'); k(f'v_bfe_u32 v{T2}, v{L}, 1, 2'); k(f'v_xor_b32 v{T1}, v{T1}, v{T2}')
    k(f'v_mul_u32_u24 v{T0}, 3584, v{T0}'); k(f'v_and_b32 v{T2}, 1, v{L}'); k(f'v_lshl_add_u32 v{T0}, v{T2}, 4, v{T0}')
    k(f'v_lshl_add_u32 v{V_W1D}, v{T1}, 5, v{T0}'); k(f'v_add_u32 v{V_W1D+1}, {8*3584-1024}, v{V_W1D}')
    k(f'v_xor_b32 v{T1}, 2, v{T1}'); k(f'v_lshl_add_u32 v{V_W3D}, v{T1}, 5, v{T0}'); k(f'v_add_u32 v{V_W3D+1}, {8*3584-1024}, v{V_W3D}')
    k(f's_lshl_b32 s{T+2}, s{S_WV}, 12'); k(f'v_lshl_add_u32 v{V_FD}, v{L}, 4, s{T+2}')
    k(f's_lshl_b32 s{S_MX}, s{S_WV}, 12')
    k(f's_lshl_b32 s{S_MW1}, s{S_WV}, 11'); k(f's_add_u32 s{S_MW1}, s{S_MW1}, {L_W}')
    k(f's_lshl_b32 s{S_XO}, s{S_RB}, 17')
    k(f's_lshl_b32 s{S_WO0}, s{S_CB}, 8'); k(f's_add_u32 s{S_WO1}, s{S_WO0}, 128')
    k(f's_lshl_b32 s{T+2}, s{S_G}, 7'); k(f's_add_u32 s{T+2}, s{T+2}, {1536*2}')
    k(f's_cmp_ge_u32 s{S_CB}, 12'); k(f's_cselect_b32 s{S_WO1}, s{T+2}, s{S_WO1}')
    k(f's_lshl_b32 s{S_FO}, s{S_G}, 17'); k(f's_add_u32 s{S_FO}, s{S_FO}, {TAB_F}')
    k(f's_getpc_b64 s[{S_TAB}:{S_TAB+1}]')
    k(f's_add_u32 s{S_TAB}, s{S_TAB}, TABS@rel32@lo+4'); k(f's_addc_u32 s{S_TAB+1}, s{S_TAB+1}, TABS@rel32@hi+12')
    k(f's_mov_b32 s{S_TAB+2}, {TAB_END}'); k(f's_mov_b32 s{S_TAB+3}, 0x20000')
    k('s_waitcnt lgkmcnt(0)')
    k(f's_load_dword s{S_NON}, s[82:83], {WS_EPOCH}')
    srd(k, S_X, 64, 65, 2048*512*2); srd(k, S_W1, 72, 73, 512*1792*2); srd(k, S_W3, 74, 75, 512*1792*2)
def prologue2(k):
    L, T0, T1, T2 = V_L, V_A0, V_A1, V_A2
    srd(k, S_W2, 76, 77, 1792*512*2)
    srd(k, S_OUT, 78, 79, 2048*512*2); srd(k, S_WS, 82, 83, WS_SIZE); srd(k, S_DBG, 80, 81, 256)
    k(f's_mov_b32 s{S_SPIN}, {SPIN_MAX}')
    k(f'v_and_b32 v{T0}, 31, v{L}'); k(f'v_lshrrev_b32 v{T1}, 5, v{L}'); k(f'v_bfe_u32 v{T2}, v{T0}, 1, 3')
    k(f'v_xor_b32 v{T1}, v{T1}, v{T2}'); k(f'v_lshlrev_b32 v{T1}, 4, v{T1}')
    k(f's_lshl_b32 s{T}, s{S_WR_}, 13'); k(f'v_lshl_add_u32 v{T0}, v{T0}, 7, s{T}')
    for ks in range(4):
        k(f'v_xor_b32 v{V_XA+ks}, {ks*32}, v{T1}'); k(f'v_add_u32 v{V_XA+ks}, v{V_XA+ks}, v{T0}')
    k(f'v_bfe_u32 v{T0}, v{L}, 4, 1'); k(f'v_bfe_u32 v{T1}, v{L}, 2, 2')
    k(f'v_lshrrev_b32 v{T2}, 1, v{T1}'); k(f'v_lshl_or_b32 v{T2}, v{T0}, 1, v{T2}')
    k(f'v_lshlrev_b32 v{T0}, 13, v{T0}'); k(f'v_lshl_add_u32 v{T0}, v{T1}, 7, v{T0}')
    k(f'v_lshrrev_b32 v{T1}, 5, v{L}'); k(f'v_lshl_add_u32 v{T0}, v{T1}, 10, v{T0}')
    k(f'v_and_b32 v{T1}, 3, v{L}'); k(f'v_lshl_add_u32 v{T0}, v{T1}, 3, v{T0}'); k(f'v_add_u32 v{T0}, {L_W}, v{T0}')
    k(f's_lshl_b32 s{T}, s{S_WC}, 1')
    for t in range(2):
        k(f's_add_u32 s{T+1}, s{T}, {t}'); k(f'v_xor_b32 v{T1}, s{T+1}, v{T2}'); k(f'v_lshl_add_u32 v{V_WA+t}, v{T1}, 5, v{T0}')
    k(f's_lshl_b32 s{T}, s{S_WC}, 11'); k(f's_add_u32 s{T}, s{T}, {L_W}'); k(f'v_lshl_add_u32 v{V_FA}, v{L}, 4, s{T}')
    k(f's_mul_i32 s{T}, s{S_WR_}, {2*112*1024}'); k(f'v_lshl_add_u32 v{V_HO}, v{L}, 4, s{T}')
    k(f's_mul_i32 s{S_HO}, s{S_RB}, {4*112*1024}'); k(f's_add_u32 s{S_HO}, s{S_HO}, {WS_H}')
    k(f's_mul_i32 s{T}, s{S_G}, 28'); k(f's_lshr_b32 s{T+1}, s2, 6'); k(f's_lshl_b32 s{T+1}, s{T+1}, 2'); k(f's_add_u32 s{T}, s{T}, s{T+1}')
    k(f's_lshl_b32 s{T+1}, s{S_WC}, 1'); k(f's_add_u32 s{T}, s{T}, s{T+1}'); k(f's_lshl_b32 s{T}, s{T}, 10'); k(f's_add_u32 s{S_HO}, s{S_HO}, s{T}')
    k(f'v_and_b32 v{T0}, 15, v{L}'); k(f'v_mul_u32_u24 v{T0}, 528, v{T0}')
    k(f'v_bfe_u32 v{T1}, v{L}, 4, 1'); k(f'v_lshl_add_u32 v{T0}, v{T1}, 3, v{T0}')
    k(f'v_lshrrev_b32 v{T1}, 5, v{L}'); k(f'v_lshl_add_u32 v{T0}, v{T1}, 4, v{T0}')
    k(f's_mul_i32 s{T}, s{S_WC}, {32*528}'); k(f's_lshl_b32 s{T+1}, s{S_WR_}, 8'); k(f's_add_u32 s{T}, s{T}, s{T+1}')
    k(f'v_add_u32 v{V_UTW}, s{T}, v{T0}')
    k(f'v_lshrrev_b32 v{T0}, 5, v{L}'); k(f'v_mul_u32_u24 v{T0}, 528, v{T0}')
    k(f'v_and_b32 v{T1}, 31, v{L}'); k(f'v_lshl_add_u32 v{T0}, v{T1}, 4, v{T0}')
    k(f's_mul_i32 s{T}, s{S_WV}, {16*528}'); k(f'v_add_u32 v{V_UTR}, s{T}, v{T0}')
    k(f'v_lshrrev_b32 v{T0}, 5, v{L}'); k(f'v_lshlrev_b32 v{T0}, 13, v{T0}'); k(f'v_lshl_add_u32 v{T0}, v{T1}, 4, v{T0}')
    k(f's_lshl_b32 s{T}, s{S_WV}, 17'); k(f'v_add_u32 v{V_UO}, s{T}, v{T0}')
    k(f's_lshl_b32 s{S_UO}, s{S_G}, 19'); k(f's_lshl_b32 s{T}, s{S_RB}, 9'); k(f's_add_u32 s{S_UO}, s{S_UO}, s{T}'); k(f's_add_u32 s{S_UO}, s{S_UO}, {WS_U}')
    k(f'v_cmp_eq_u32 vcc, 0, v{L}'); k(f'v_mov_b32 v{T0}, 0x7fffffff'); k('s_nop 0'); k(f'v_cndmask_b32 v{V_L0}, v{T0}, 0, vcc')
    for i in range(4): k(f'v_mov_b32 v{V_ONE+i}, 0x3f803f80')
    for e in range(2):
        for i in range(1, 4): k(f'v_mov_b32 v{V_BX+4*e+i}, 0')
def side_loads(k, vm):
    L, T0 = V_L, V_A0
    k(f's_lshl_b32 s{T}, s{S_RB}, 7'); k(f's_lshl_b32 s{T+1}, s{S_CB}, 3'); k(f's_add_u32 s{T}, s{T}, s{T+1}')
    k(f's_lshl_b32 s{T+1}, s{S_WV}, 1'); k(f's_add_u32 s{S_A}, s{T}, s{T+1}')
    k(f's_lshl_b32 s{T}, s{S_A}, 10'); k(f'v_lshlrev_b32 v{T0}, 4, v{L}')
    for e in range(2):
        vm.issue(f'buffer_load_dwordx4 v[{V_SR+4*e}:{V_SR+4*e+3}], v{T0}, s[{S_X}:{S_X+3}], s{T} offen offset:{e*1024}', 'srow')
    k(f's_lshl_b32 s{T}, s{S_WV}, 9'); k(f's_add_u32 s{T}, s{T}, s{S_K2}'); k(f's_mul_i32 s{T}, s{T}, 514')
    k(f's_lshl_b32 s{T+1}, s{S_CBLK}, 7'); k(f's_add_u32 s{T}, s{T}, s{T+1}'); k(f's_add_u32 s{T}, s{T}, 2')
    k(f'v_lshrrev_b32 v{V_A1}, 3, v{L}'); k(f'v_mul_u32_u24 v{V_A1}, {64*514}, v{V_A1}'); k(f'v_and_b32 v{V_A2}, 7, v{L}'); k(f'v_lshl_add_u32 v{V_A1}, v{V_A2}, 4, v{V_A1}')
    vm.issue(f'buffer_load_dwordx4 v[{V_WTD}:{V_WTD+3}], v{V_A1}, s[{S_WR}:{S_WR+3}], s{T} offen', 'wtl')
    vm.issue(f'buffer_load_dwordx4 v[{V_WTD+4}:{V_WTD+7}], v{V_A1}, s[{S_WI}:{S_WI+3}], s{T} offen', 'wtl')
def stats_code(k, vm):
    X = [192, 200]; S0, S1, Q0, Q1, A = 208, 209, 210, 211, 212
    vm.wait('srow')
    for i in range(4):
        for e in range(2):
            k(f'v_lshlrev_b32 v{X[e]+2*i}, 16, v{V_SR+4*e+i}'); k(f'v_and_b32 v{X[e]+2*i+1}, 0xffff0000, v{V_SR+4*e+i}')
    S = [S0, S1]; Q = [Q0, Q1]
    for e in range(2): k(f'v_add_f32 v{S[e]}, v{X[e]}, v{X[e]+1}'); k(f'v_mul_f32 v{Q[e]}, v{X[e]}, v{X[e]}')
    for e in range(2): k(f'v_fma_f32 v{Q[e]}, v{X[e]+1}, v{X[e]+1}, v{Q[e]}')
    for i in range(2, 8):
        for e in range(2): k(f'v_add_f32 v{S[e]}, v{S[e]}, v{X[e]+i}'); k(f'v_fma_f32 v{Q[e]}, v{X[e]+i}, v{X[e]+i}, v{Q[e]}')
    k('s_nop 1')
    k(f'v_permlane32_swap_b32 v{S0}, v{S1}'); k(f'v_permlane32_swap_b32 v{Q0}, v{Q1}'); k('s_nop 0')
    k(f'v_add_f32 v{S0}, v{S0}, v{S1}'); k(f'v_add_f32 v{Q0}, v{Q0}, v{Q1}'); k('s_nop 1')
    k(f'v_permlane16_swap_b32 v{S0}, v{Q0}'); k('s_nop 1')
    k(f'v_add_f32 v{S0}, v{S0}, v{Q0}')
    for r in (8, 4, 2, 1):
        k('s_nop 1'); k(f'v_add_f32_dpp v{S0}, v{S0}, v{S0} row_ror:{r} row_mask:0xf bank_mask:0xf')
    k(f'v_mov_b32 v{Q0}, v{S0}'); k('s_nop 1')
    k(f'v_permlane16_swap_b32 v{S0}, v{Q0}'); k('s_nop 1')
    k(f'v_mul_f32 v{S0}, 0x3b000000, v{S0}'); k(f'v_mul_f32 v{Q0}, 0x3b000000, v{Q0}')
    k(f'v_fma_f32 v{Q0}, -v{S0}, v{S0}, v{Q0}'); k(f'v_max_f32 v{Q0}, 0, v{Q0}')
    k(f'v_cvt_pk_bf16_f32 v{S0}, v{S0}, v{Q0}')
    k(f'v_and_b32 v{Q0}, 0xffff0000, v{S0}'); k(f'v_add_f32 v{Q0}, 0x3727c5ac, v{Q0}')
    k(f'v_cvt_pk_bf16_f32 v{Q0}, v{Q0}, v{Q0}'); k(f'v_and_b32 v{Q0}, 0xffff0000, v{Q0}')
    k(f'v_sqrt_f32 v{Q0}, v{Q0}'); k(f'v_mov_b32 v{A}, 0xffff')
    k(f'v_cvt_pk_bf16_f32 v{Q0}, v{Q0}, v{Q0}')
    k(f'v_bfi_b32 v{S1}, v{A}, v{S0}, v{Q0}'); k(f'v_mov_b32 v{Q0}, s{S_NON}')
    k(f'v_and_b32 v{A}, 31, v{V_L}'); k(f'v_cmp_eq_u32 vcc, 0, v{A}'); k(f'v_lshrrev_b32 v{A}, 2, v{V_L}'); k(f'v_mov_b32 v{A+1}, 0x7fffffff')
    k(f's_lshl_b32 s{S_B}, s{S_A}, 3'); k(f'v_cndmask_b32 v{A}, v{A+1}, v{A}, vcc'); k(f's_add_u32 s{S_B}, s{S_B}, {WS_ST}')
    k(f'v_mov_b32 v{S0}, v{S1}'); k(f'v_mov_b32 v{S1}, v{Q0}')
    vm.issue(f'buffer_store_dwordx2 v[{S0}:{S1}], v{A}, s[{S_WS}:{S_WS+3}], s{S_B} offen sc1', 'stst')
def wt_code(k, vm):
    L = V_L; O = V_WTD + 8
    k(f'v_and_b32 v{V_A0}, 7, v{L}'); k(f'v_lshrrev_b32 v{V_A1}, 3, v{L}')
    k(f's_lshl_b32 s{S_B}, s{S_WV}, 1'); k(f'v_lshrrev_b32 v{V_A2}, 2, v{V_A1}'); k(f'v_add_u32 v{V_A2}, s{S_B}, v{V_A2}')
    k(f'v_xor_b32 v{V_A2}, v{V_A2}, v{V_A0}'); k(f'v_lshlrev_b32 v{V_A2}, 4, v{V_A2}')
    k(f'v_and_b32 v{V_A1}, 3, v{V_A1}'); k(f'v_lshl_add_u32 v{V_A2}, v{V_A1}, 2, v{V_A2}')
    k(f'v_mul_u32_u24 v{V_A0}, {8*144}, v{V_A0}'); k(f'v_add_u32 v{V_A2}, v{V_A2}, v{V_A0}'); k(f'v_add_u32 v{V_A2}, {L_WTB}, v{V_A2}')
    k(f's_mov_b32 s{S_B}, 0x05040100'); k(f's_mov_b32 s{S_C_}, 0x07060302')
    vm.wait('wtl')
    for j in range(4):
        k(f'v_perm_b32 v{O+2*j}, v{V_WTD+4+j}, v{V_WTD+j}, s{S_B}'); k(f'v_perm_b32 v{O+2*j+1}, v{V_WTD+4+j}, v{V_WTD+j}, s{S_C_}')
    for i in range(8): k(f'ds_write_b32 v{V_A2}, v{O+i} offset:{i*144}')
    k(f'v_lshrrev_b32 v{V_A0}, 3, v{L}'); k(f's_lshl_b32 s{S_B}, s{S_WV}, 4'); k(f'v_add_u32 v{V_A0}, s{S_B}, v{V_A0}')
    k(f'v_and_b32 v{V_A1}, 7, v{L}'); k(f's_lshl_b32 s{S_C_}, s{S_WV}, 1')
    k(f'v_xor_b32 v{V_A2}, s{S_C_}, v{V_A1}'); k(f'v_lshlrev_b32 v{V_A2}, 4, v{V_A2}')
    k(f'v_mul_u32_u24 v{V_A3}, 144, v{V_A0}'); k(f'v_add_u32 v{V_A3}, {L_WTB}, v{V_A3}'); k(f'v_add_u32 v{V_STG}, v{V_A3}, v{V_A2}')
    k(f'v_xor_b32 v{V_A2}, 16, v{V_A2}'); k(f'v_add_u32 v{V_STG+1}, v{V_A3}, v{V_A2}')
    k(f'v_lshlrev_b32 v{V_A0}, 13, v{V_A0}'); k(f'v_lshl_add_u32 v{V_A0}, v{V_A1}, 4, v{V_A0}'); k(f'v_add_u32 v{V_A1}, {8*8192}, v{V_A0}')
    k(f's_lshl_b32 s{S_B}, s{S_CBLK}, 19'); k(f's_lshl_b32 s{S_C_}, s{S_K2}, 7'); k(f's_add_u32 s{S_B}, s{S_B}, s{S_C_}'); k(f's_add_u32 s{S_B}, s{S_B}, {WS_WT}')
    k('s_waitcnt lgkmcnt(0)'); k('s_barrier')
    k(f'ds_read_b128 v[{V_WTD}:{V_WTD+3}], v{V_STG}'); k(f'ds_read_b128 v[{V_WTD+4}:{V_WTD+7}], v{V_STG+1} offset:{8*144}')
    k('s_waitcnt lgkmcnt(0)')
    vm.issue(f'buffer_store_dwordx4 v[{V_WTD}:{V_WTD+3}], v{V_A0}, s[{S_WS}:{S_WS+3}], s{S_B} offen sc1', 'wtst')
    vm.issue(f'buffer_store_dwordx4 v[{V_WTD+4}:{V_WTD+7}], v{V_A1}, s[{S_WS}:{S_WS+3}], s{S_B} offen sc1', 'wtst')
class LG:
    def __init__(self, k): self.k = k; self.q = []; self.ever = set()
    def issue(self, text, tag=None): self.k(text); self.q.append(tag); self.ever.add(tag)
    def wait(self, tag):
        idx = [i for i, t in enumerate(self.q) if t == tag]
        if not idx: return
        n = len(self.q) - 1 - idx[-1]
        self.k(f's_waitcnt lgkmcnt({min(n, 15)})')
        self.q = self.q[idx[-1]+1:] if n <= 15 else self.q[len(self.q)-15:]
    def drain(self): self.k('s_waitcnt lgkmcnt(0)'); self.q = []
class Sched2:
    def __init__(self, k, vm, lg): self.k = k; self.vm = vm; self.lg = lg; self.q = []; self.lo = []
    def add(self, items, lo=False): (self.lo if lo else self.q).extend(items)
    def emit(self, e):
        if isinstance(e, tuple):
            if e[0] == 'vm': self.vm.issue(e[1], e[2]); return 1
            if e[0] == 'ds': self.lg.issue(e[1], e[2] if len(e) > 2 else None); return 1
            if e[0] == 'call': e[1](); return e[2] if len(e) > 2 else 1
            if e[0] == 'grp':
                return sum(self.emit(x) for x in e[1])
        self.k(e); return 1
    def pop(self, budget):
        c = 0
        while c < budget and (self.q or self.lo):
            c += self.emit((self.q or self.lo).pop(0))
        return c
    def flush(self):
        while self.q or self.lo: self.emit((self.q or self.lo).pop(0))
def ffn_unit(p, t, e):
    a = acc(p, t, e); E = ET
    out = []
    for half in range(2):
        for r in range(4): out.append(f'v_mul_f32 v{E+r}, v{a+4*half+r}, v{V_C1+e}')
        for r in range(4): out.append(f'v_exp_f32 v{E+r}, v{E+r}')
        for r in range(4): out.append(f'v_mul_f32 v{a+4*half+r}, v{a+4*half+r}, v{a+8+4*half+r}')
        for r in range(4): out.append(f'v_fma_f32 v{E+r}, v{E+r}, v{V_C2+e}, v{V_C2+e}')
        for r in range(4): out.append(f'v_rcp_f32 v{E+r}, v{E+r}')
        if half == 0:
            out.append('s_nop 0')
        else:
            out.append(f's_add_u32 s{S_EP}, s{S_HO}, {(12*p + t)*1024 + e*112*1024}')
        for r in range(4): out.append(f'v_mul_f32 v{a+4*half+r}, v{a+4*half+r}, v{E+r}')
        out.append(f'v_cvt_pk_bf16_f32 v{E+4+2*half}, v{a+4*half}, v{a+4*half+1}')
        out.append(f'v_cvt_pk_bf16_f32 v{E+5+2*half}, v{a+4*half+2}, v{a+4*half+3}')
    out.append(('vm', f'buffer_store_dwordx4 v[{E+4}:{E+7}], v{V_HO}, s[{S_WS}:{S_WS+3}], s{S_EP} offen sc1', f'hst{p}'))
    return out
def p1_body(k, isB, st):
    nm = 'B' if isB else 'A'
    vm = VM(k); lg = LG(k); sc = Sched2(k, vm, lg)
    L = V_L
    def dma_group(i):
        p, s_ = i >> 3, i & 7; slot = i & 3
        ch = []
        pre = [f's_add_u32 s{S_ST}, s{S_ROT}, {s_}', f's_and_b32 s{S_ST}, s{S_ST}, 7']
        if i < 8:
            pre += [f's_lshl_b32 s{S_SX}, s{S_ST}, 7', f's_add_u32 m0, s{S_MX}, {L_X + slot*16384}', f's_add_u32 s{S_SX}, s{S_XO}, s{S_SX}']
            for e in range(4):
                ch.append(('grp', pre + [('vm', f'buffer_load_dwordx4 v{V_XD+e}, s[{S_X}:{S_X+3}], s{S_SX} offen offset:{e*1024} lds', ('st', i))])); pre = []
        if isB and p == 0:
            pre += [f's_lshl_b32 s{S_SW}, s{S_ST}, 14', f's_add_u32 m0, s{S_MX}, {L_W + slot*16384}', f's_add_u32 s{S_SW}, s{S_FO}, s{S_SW}']
            for e in range(4):
                ch.append(('grp', pre + [('vm', f'buffer_load_dwordx4 v{V_FD}, s[{S_TAB}:{S_TAB+3}], s{S_SW} offen offset:{e*1024} lds', ('st', i))])); pre = []
        else:
            pre += [f's_mul_i32 s{S_SW}, s{S_ST}, {64*3584}', f's_add_u32 m0, s{S_MW1}, {slot*16384}', f's_add_u32 s{S_SW}, s{S_WO0 if p == 0 else S_WO1}, s{S_SW}']
            for e in range(2):
                ch.append(('grp', pre + [('vm', f'buffer_load_dwordx4 v{V_W1D+e}, s[{S_W1}:{S_W1+3}], s{S_SW} offen offset:{e*1024} lds', ('st', i))])); pre = []
            pre = [f's_add_u32 m0, s{S_MW1}, {slot*16384 + 8192}', 's_nop 0']
            for e in range(2):
                ch.append(('grp', pre + [('vm', f'buffer_load_dwordx4 v{V_W3D+e}, s[{S_W3}:{S_W3+3}], s{S_SW} offen offset:{e*1024} lds', ('st', i))])); pre = []
        return ch
    def reads(n):
        i, ks = n >> 2, n & 3
        p = i >> 3; slot = i & 3; b0 = AF + 8*(n % 3)
        out = []
        if p == 0:
            kk = 4*i + ks
            for e in range(2):
                a = xf(e, kk)
                out.append(('ds', f'ds_read_b128 a[{a}:{a+3}], v{V_XA+ks} offset:{slot*16384 + e*4096}', ('fr', n)))
        for t in range(2):
            b = b0 + 4*t
            if isB and p == 0:
                out.append(('ds', f'ds_read_b128 v[{b}:{b+3}], v{V_FA} offset:{slot*16384 + (ks*4+t)*1024}', ('fr', n)))
            else:
                for part in range(2):
                    out.append(('ds', f'ds_read_b64_tr_b16 v[{b+2*part}:{b+2*part+1}], v{V_WA+t} offset:{slot*16384 + (16*ks+4*part)*128}', ('fr', n)))
        return out
    srd(k, S_WR, 66, 67, 2048*257*2); srd(k, S_WI, 68, 69, 2048*257*2)
    if st: st.stamp('karg')
    for x in dma_group(0): sc.emit(x)
    if st and 'fine' in OPT: st.stamp('iss0')
    side_loads(k, vm)
    if st and 'fine' in OPT: st.stamp('isss')
    if 'late1' not in OPT:
        for x in dma_group(1): sc.emit(x)
    if st: st.stamp('iss01')
    prologue2(k)
    k('s_waitcnt lgkmcnt(0)')
    k(f's_mul_i32 s{S_NON}, s{S_NON}, 0x19660D'); k(f's_add_u32 s{S_NON}, s{S_NON}, 0x3C6EF35F')
    if st: st.stamp('setup')
    stats_code(k, vm)
    if st and 'fine' in OPT: st.stamp('stats')
    if 'late1' in OPT:
        for x in dma_group(1): sc.emit(x)
    for x in dma_group(2): sc.emit(x)
    wt_code(k, vm)
    if st: st.stamp('side')
    for x in dma_group(3): sc.emit(x)
    vm.wait(('st', 0)); k('s_barrier')
    if st: st.stamp('st0')
    for x in reads(0) + reads(1): sc.emit(x)
    ev = {}
    evlo = {}
    def at(n, items, lo=False): (evlo if lo else ev).setdefault(n, []).extend(items)
    def flag_store(off_items, tag):
        lab = f'L_fl_{nm}_{tag}'
        return ('grp', [f's_cmp_lg_u32 s{S_WV}, 0', f's_cbranch_scc1 {lab}'] + off_items +
                [f'v_mov_b32 v{V_SR}, s{S_NON}',
                 ('call', lambda: k(f'buffer_store_dword v{V_SR}, v{V_L0}, s[{S_WS}:{S_WS+3}], s{S_F0} offen sc1')), lab + ':'])
    bar_pre = {}
    bar_post = {}
    bar_pre[6] = ['wtst']
    bar_post[6] = [flag_store([f's_lshl_b32 s{S_F0}, s{S_CBLK}, 8', f's_lshl_b32 s{S_F1}, s{S_K2}, 2', f's_add_u32 s{S_F0}, s{S_F0}, s{S_F1}', f's_add_u32 s{S_F0}, s{S_F0}, {WS_WTF}'], 'wt')]
    CT = ET + 8
    cs_at = {}; direct = {}
    def cs_store(p, lab):
        return ('grp', [f's_cmp_eq_u32 s{S_D}, 0', f's_cbranch_scc1 {lab}',
                        f's_lshl_b32 s{S_B}, s{S_CB}, 3', f's_lshl_b32 s{S_C_}, s{S_WC}, 1', f's_add_u32 s{S_B}, s{S_B}, s{S_C_}', f's_add_u32 s{S_B}, s{S_B}, s{S_WR_}',
                        f's_add_u32 s{S_B}, s{S_B}, {4*p}', f's_lshl_b32 s{S_B}, s{S_B}, 3', f's_add_u32 s{S_B}, s{S_B}, s{S_ROT}', f's_lshl_b32 s{S_B}, s{S_B}, 8', f's_add_u32 s{S_B}, s{S_B}, {WS_CS}',
                        f'v_mov_b32 v{CT+1}, s{S_NON}', f'v_lshlrev_b32 v{V_A0}, 3, v{L}', f'v_cmp_gt_u32 vcc, 32, v{L}', f'v_mov_b32 v{V_A1}, 0x7fffffff', 's_nop 0',
                        f'v_cndmask_b32 v{V_A0}, v{V_A1}, v{V_A0}, vcc',
                        ('call', lambda: k(f'buffer_store_dwordx2 v[{CT}:{CT+1}], v{V_A0}, s[{S_WS}:{S_WS+3}], s{S_B} offen sc1')), lab + ':'])
    if not isB:
        direct.setdefault(0, []).extend([f's_add_u32 s{S_D}, s{S_WR_}, 1', f's_cmp_eq_u32 s{S_PAR}, 0', f's_cselect_b32 s{S_D}, s{S_D}, 0'])
        for ks in range(4):
            b0 = AF + 8*(ks % 3); g = []
            for t in range(2):
                lab = f'L_cs_{nm}_{ks}_{t}'
                g += [f's_cmp_eq_u32 s{S_D}, {1+t}', f's_cbranch_scc0 {lab}',
                      f'v_mfma_f32_32x32x16_bf16 v[{CT}:{CT+15}], v[{V_ONE}:{V_ONE+3}], v[{b0+4*t}:{b0+4*t+3}], ' + ('0' if ks == 0 else f'v[{CT}:{CT+15}]'), lab + ':']
            cs_at.setdefault(ks, []).append(('grp', g))
        at(6, [cs_store(0, f'L_csst_{nm}_0')])
    lab = f'L_cs1d_{nm}'
    g = [f's_cmp_eq_u32 s{S_PAR}, 0', f's_cbranch_scc1 {lab}', f's_mul_i32 s{S_B}, s{S_ROT}, {64*3584}', f's_add_u32 s{S_B}, s{S_B}, s{S_WO1}',
         f's_lshl_b32 s{S_C_}, s{S_WV}, 11', f's_add_u32 m0, s{S_C_}, {L_CSW}', 's_nop 0']
    for e in range(2): g.append(('call', lambda e=e: k(f'buffer_load_dwordx4 v{V_W1D+e}, s[{S_W1}:{S_W1+3}], s{S_B} offen offset:{e*1024} lds')))
    g += [f's_add_u32 m0, s{S_C_}, {L_CSW + 8192}', 's_nop 0']
    for e in range(2): g.append(('call', lambda e=e: k(f'buffer_load_dwordx4 v{V_W3D+e}, s[{S_W3}:{S_W3+3}], s{S_B} offen offset:{e*1024} lds')))
    g.append(lab + ':')
    pre_dma4 = [('grp', g)]
    lab = f'L_cs1c_{nm}'
    CF = V_CSG
    g = [f's_cmp_eq_u32 s{S_PAR}, 0', f's_cselect_b32 s{S_D}, 0, 1', f's_cbranch_scc1 {lab}',
         f'v_mov_b32 v{V_A0}, v{V_WA}', f's_cmp_eq_u32 s{S_WR_}, 0', f's_cbranch_scc1 {lab}a', f'v_mov_b32 v{V_A0}, v{V_WA+1}', lab + 'a:',
         f'v_add_u32 v{V_A0}, {L_CSW - L_W}, v{V_A0}']
    for ks in range(4):
        b = CF + 4*(ks & 1)
        for part in range(2):
            g.append(f'ds_read_b64_tr_b16 v[{b+2*part}:{b+2*part+1}], v{V_A0} offset:{(16*ks+4*part)*128}')
        if ks & 1:
            g.append('s_waitcnt lgkmcnt(0)')
            for kk_ in (ks - 1, ks):
                b2 = CF + 4*(kk_ & 1)
                g.append(f'v_mfma_f32_32x32x16_bf16 v[{CT}:{CT+15}], v[{V_ONE}:{V_ONE+3}], v[{b2}:{b2+3}], ' + ('0' if kk_ == 0 else f'v[{CT}:{CT+15}]'))
    g.append(lab + ':')
    at(14, [('grp', g)])
    at(18, [cs_store(1, f'L_csst_{nm}_1')])
    stl = [f'buffer_load_dwordx2 v[{V_STG+2*e}:{V_STG+2*e+1}], v{V_A2+e}, s[{S_WS}:{S_WS+3}], s{S_C_} offen sc1' for e in range(2)]
    staddr = [f'v_and_b32 v{V_A0}, 31, v{L}',
              f'v_and_b32 v{V_A1}, 3, v{V_A0}', f'v_lshlrev_b32 v{V_A2}, 8, v{V_A1}',
              f'v_lshrrev_b32 v{V_A1}, 3, v{V_A0}', f'v_lshl_add_u32 v{V_A2}, v{V_A1}, 4, v{V_A2}',
              f'v_bfe_u32 v{V_A1}, v{V_A0}, 2, 1', f'v_lshl_add_u32 v{V_A2}, v{V_A1}, 3, v{V_A2}',
              f's_lshl_b32 s{S_C_}, s{S_WR_}, 7', f'v_add_u32 v{V_A2}, s{S_C_}, v{V_A2}',
              f'v_add_u32 v{V_A3}, 64, v{V_A2}',
              f's_lshl_b32 s{S_C_}, s{S_RB}, 10', f's_add_u32 s{S_C_}, s{S_C_}, {WS_ST}']
    at(9, staddr + [('vm', l, 'stg') for l in stl])
    def st_check():
        vm.wait('stg')
        tag_check(k, f'st{nm}', [V_STG+1, V_STG+3], staddr + stl)
    stc = [('call', st_check, 8)]
    for e in range(2):
        d = V_STG + 2*e
        stc += [f'v_and_b32 v{d+1}, 0xffff0000, v{d}',
                f'v_and_b32 v{d}, 0xffff, v{d}', f'v_xor_b32 v{d}, 0x8000, v{d}', f'v_lshl_or_b32 v{d}, v{d}, 16, v{d}',
                f'v_mul_f32 v{V_C2+e}, v{d+1}, v{d+1}', f'v_rcp_f32 v{d+1}, v{d+1}', f'v_cmp_gt_u32 vcc, 32, v{L}', 's_nop 0',
                f'v_mul_f32 v{V_C1+e}, 0xbfb8aa3b, v{d+1}', f'v_cndmask_b32 v{V_BX+4*e}, 0, v{d}, vcc']
        if isB:
            stc += [f'v_and_b32 v{V_A0}, 31, v{L}', f'v_lshlrev_b32 v{V_A0}, 2, v{V_A0}', f's_lshl_b32 s{S_C_}, s{S_WR_}, 8', f's_add_u32 s{S_C_}, s{S_C_}, {L_RS + 128*e}',
                    f'v_add_u32 v{V_A0}, s{S_C_}, v{V_A0}', ('ds', f'ds_write_b32 v{V_A0}, v{d+1}')]
    at(18, stc)
    def cs_cons(p):
        if isB and p == 0: return
        n0 = 32*p
        addr = [f'v_and_b32 v{V_A0}, 31, v{L}', f'v_lshlrev_b32 v{V_A0}, 3, v{V_A0}', f'v_lshrrev_b32 v{V_A1}, 5, v{L}', f'v_lshl_add_u32 v{V_A0}, v{V_A1}, 10, v{V_A0}',
                f's_lshl_b32 s{S_B}, s{S_CB}, 3', f's_lshl_b32 s{S_C_}, s{S_WC}, 1', f's_add_u32 s{S_B}, s{S_B}, s{S_C_}', f's_add_u32 s{S_B}, s{S_B}, s{S_WR_}',
                f's_add_u32 s{S_B}, s{S_B}, {4*p}', f's_lshl_b32 s{S_B}, s{S_B}, 11', f's_add_u32 s{S_B}, s{S_B}, {WS_CS}']
        lds = [f'buffer_load_dwordx2 v[{V_CSG+2*i}:{V_CSG+2*i+1}], v{V_A0}, s[{S_WS}:{S_WS+3}], s{S_B} offen offset:{i*256} sc1' for i in range(4)]
        at((14 if p == 0 else 34), addr + [('vm', l, f'csg{p}') for l in lds])
        def chk():
            vm.wait(f'csg{p}')
            tag_check(k, f'cs{nm}{p}', [V_CSG+1, V_CSG+3, V_CSG+5, V_CSG+7], addr + lds)
        g = V_CSG
        at((26 if p == 0 else 46), [('call', chk, 12),
                     f'v_add_f32 v{g}, v{g}, v{g+2}', f'v_add_f32 v{g+4}, v{g+4}, v{g+6}', f'v_add_f32 v{g}, v{g}, v{g+4}', f'v_mov_b32 v{g+1}, v{g}', 's_nop 1',
                     f'v_permlane32_swap_b32 v{g}, v{g+1}', 's_nop 0', f'v_add_f32 v{g}, v{g}, v{g+1}',
                     f'v_cvt_pk_bf16_f32 v{g+1}, v{g}, v{g}', f'v_and_b32 v{g+1}, 0xffff0000, v{g+1}', f'v_sub_f32 v{g+2}, v{g}, v{g+1}',
                     f'v_cvt_pk_bf16_f32 v{g+4}, v{g+1}, v{g+2}', f'v_cmp_gt_u32 vcc, 32, v{L}', f'v_mov_b32 v{g+5}, 0', f'v_mov_b32 v{g+6}, 0',
                     f'v_cndmask_b32 v{g+4}, 0, v{g+4}, vcc', f'v_mov_b32 v{g+7}, 0',
                     f's_lshl_b32 s{S_C_}, s{S_WC}, 1', f's_add_u32 s{S_C_}, s{S_C_}, s{S_WR_}', f's_lshl_b32 s{S_C_}, s{S_C_}, 10', f's_add_u32 s{S_C_}, s{S_C_}, {L_AX}',
                     f'v_lshl_add_u32 v{V_A0}, v{L}, 4, s{S_C_}', ('ds', f'ds_write_b128 v{V_A0}, v[{g+4}:{g+7}]', f'axw{p}')])
        nb = 30 if p == 0 else 50
        bar_lg.setdefault(nb, []).append(f'axw{p}')
        AX = V_WTD
        rd = [f's_lshl_b32 s{S_C_}, s{S_WC}, 11', f's_add_u32 s{S_C_}, s{S_C_}, {L_AX}', f'v_lshl_add_u32 v{V_A0}, v{L}, 4, s{S_C_}',
              ('ds', f'ds_read_b128 v[{AX}:{AX+3}], v{V_A0}'), ('ds', f'ds_read_b128 v[{AX+4}:{AX+7}], v{V_A0} offset:1024', f'axr{p}')]
        at(nb, rd)
        mm = [('call', lambda: lg.wait(f'axr{p}'))]
        for t in range(2):
            for e in range(2):
                a = acc(p, t, e)
                mm.append(f'v_mfma_f32_32x32x16_bf16 v[{a}:{a+15}], v[{AX+4*t}:{AX+4*t+3}], v[{V_BX+4*e}:{V_BX+4*e+3}], v[{a}:{a+15}]')
        at(nb + 2, mm)
    bar_lg = {}
    cs_cons(0); cs_cons(1)
    if not isB:
        items = []
        for t in range(2):
            for e in range(2): items += ffn_unit(0, t, e)
        at(35, items, lo=True)
    else:
        items = []
        RS = V_WTD
        for e in range(2):
            items += [f'v_lshrrev_b32 v{V_EA}, 5, v{L}', f'v_lshlrev_b32 v{V_EA}, 4, v{V_EA}', f's_lshl_b32 s{S_EP}, s{S_WR_}, 8', f's_add_u32 s{S_EP}, s{S_EP}, {L_RS + 128*e}',
                      f'v_add_u32 v{V_EA}, s{S_EP}, v{V_EA}']
            for q in range(4): items.append(('ds', f'ds_read_b128 v[{RS+4*q}:{RS+4*q+3}], v{V_EA} offset:{q*32}', f'rs{e}'))
            items.append(('call', lambda e=e: lg.wait(f'rs{e}')))
            for t in range(2):
                a = acc(0, t, e)
                for q in range(4):
                    for r in range(4): items.append(f'v_mul_f32 v{a+4*q+r}, v{a+4*q+r}, v{RS+4*q+r}')
                    E = ET + 2*(q & 3)
                    items.append(f'v_cvt_pk_bf16_f32 v{E}, v{a+4*q}, v{a+4*q+1}'); items.append(f'v_cvt_pk_bf16_f32 v{E+1}, v{a+4*q+2}, v{a+4*q+3}')
                    items.append(('ds', f'ds_write_b64 v{V_UTW}, v[{E}:{E+1}] offset:{L_UT + t*16*528 + e*128 + q*32}', 'utw_last' if (e, t, q) == (1, 1, 3) else 'utw'))
        at(33, items, lo=True)
        UTB = 46
        bar_lg.setdefault(UTB, []).append('utw_last')
        rb = []
        for half in range(2):
            for e in range(4):
                E = ET + 4*e
                rb.append(('ds', f'ds_read_b128 v[{E}:{E+3}], v{V_UTR} offset:{L_UT + (4*half+e)*2*528}', f'utr{half}'))
            rb.append(('call', lambda half=half: lg.wait(f'utr{half}')))
            for e in range(4):
                E = ET + 4*e
                rb.append(f's_add_u32 s{S_EP}, s{S_UO}, {(4*half+e)*2*8192}')
                rb.append(('vm', f'buffer_store_dwordx4 v[{E}:{E+3}], v{V_UO}, s[{S_WS}:{S_WS+3}], s{S_EP} offen sc1', 'ust_last' if (half, e) == (1, 3) else 'ust'))
            rb.append('s_nop 0'); rb.append('s_nop 0')
        at(UTB, rb, lo=True)
        bar_pre[62] = ['ust_last']
        bar_post[62] = [flag_store([f's_lshl_b32 s{S_F0}, s{S_G}, 7', f's_lshl_b32 s{S_F1}, s{S_RB}, 2', f's_add_u32 s{S_F0}, s{S_F0}, s{S_F1}', f's_add_u32 s{S_F0}, s{S_F0}, {WS_UF}'], 'u')]
    NST = 64
    dmaq = []; dstep = [2]; dcnt = [0]
    BARGAP = 1; PF0 = 50 if isB else 46
    pf = tail_prefetch_items()
    for n in range(NST):
        i, ks = n >> 2, n & 3
        p = i >> 3
        mand = []
        dobar = (ks == 2 and i + 1 < 16) or n == 62
        def barrier_now():
            for tg in bar_pre.get(n, []): assert tg in vm.ever, (n, tg)
            for tg in bar_lg.get(n, []): assert tg in lg.ever, (n, tg)
            vm.wait_many(([('st', i + 1)] if i + 1 < 16 else []) + bar_pre.get(n, []))
            for tg in bar_lg.get(n, []): lg.wait(tg)
            lg.wait(('fr', n + 1))
            if 'nobar' not in OPT: k('s_barrier')
            for x in bar_post.get(n, []): sc.emit(x)
            if n == 2:
                for x in pre_dma4: sc.emit(x)
            if i + 4 < 16 and 'nodma' not in OPT:
                assert not dmaq
                dmaq.extend(dma_group(i + 4)); dstep[0] = 16 // len(dmaq); dcnt[0] = 0
        rd = reads(n + 2) if (n + 2 < NST and 'noreads' not in OPT) else []
        if n in ev and not dobar: sc.add(ev.pop(n))
        if n in evlo and not dobar:
            x_ = evlo.pop(n)
            if 'noepi' not in OPT or isB: sc.add(x_, lo=True)
        for x in direct.get(n, []): k(x)
        lg.wait(('fr', n))
        if st and n in (() if 'g2ts' in OPT else (32,) if 'tailts' in OPT else (16, 32, 48) if 'fine' in OPT else (8, 16, 24, 32, 40, 48, 56)): st.stamp(f'n{n}')
        kk = 4*(i & 7) + ks
        b0 = AF + 8*(n % 3)
        mand = rd + mand
        gap = 0
        for t in range(2):
            for e in range(2):
                a = acc(p, t, e); d = f'v[{a}:{a+15}]'; c = '0' if kk == 0 else d
                x = f'a[{xf(e, kk)}:{xf(e, kk)+3}]'; w = f'v[{b0+4*t}:{b0+4*t+3}]'
                if isB and p == 0: k(f'v_mfma_f32_32x32x16_bf16 {d}, {x}, {w}, {c}')
                else: k(f'v_mfma_f32_32x32x16_bf16 {d}, {w}, {x}, {c}')
                used = 0
                if dobar and gap == BARGAP:
                    barrier_now(); used += 3
                    if n in ev: sc.add(ev.pop(n))
                    if n in evlo:
                        x_ = evlo.pop(n)
                        if 'noepi' not in OPT or isB: sc.add(x_, lo=True)
                if not (dobar and gap < BARGAP):
                    g0 = BARGAP if dobar else 0
                    nm_ = (len(mand) + (3 - gap)) // (4 - gap)
                    for _ in range(nm_):
                        used += sc.emit(mand.pop(0))
                if dmaq and dcnt[0] % dstep[0] == 0: used += sc.emit(dmaq.pop(0))
                elif pf and not dmaq and n >= PF0 and (4*n + gap) % 2 == 1 and pf[0][0] != 'skip': used += sc.emit(pf.pop(0))
                dcnt[0] += 1
                if gap == 3 and n in cs_at:
                    for x_ in cs_at[n]: used += sc.emit(x_)
                sc.pop(max(0, (BUDGET + (1 if (isB and 32 < n < 46) else 0)) - used))
                gap += 1
        assert not mand
    assert not ev and not evlo, (ev.keys(), evlo.keys())
    sc.flush()
    for x in pf: sc.emit(x)
    lg.drain()
    return vm
BUDGET = 4
def remap_temps(items, lo, new, n):
    import re
    def f(s):
        def r1(m):
            v = int(m.group(1)); return f'v{v - lo + new}' if lo <= v < lo + n else m.group(0)
        def r2(m):
            a, b = int(m.group(1)), int(m.group(2))
            return f'v[{a-lo+new}:{b-lo+new}]' if lo <= a < lo + n else m.group(0)
        s = re.sub(r'v\[(\d+):(\d+)\]', r2, s)
        return re.sub(r'\bv(\d+)\b', r1, s)
    out = []
    for e in items:
        if isinstance(e, str): out.append(f(e))
        elif e[0] in ('vm', 'ds'): out.append((e[0], f(e[1])) + tuple(e[2:]))
        else: out.append(e)
    return out
A_E64, A_E32, A_H = 0, 32, 96
NH = 20
V_L16, V_DW, V_PL = 43, 44, 45
V_DW1 = 2
V_L16H = 47
TW, UFR, WT_, D_, T_, B_, WU = 128, 144, 176, 192, 208, 224, 232
V_UA, V_VA, V_YW0, V_YW1, V_YR0, V_YR1, V_P0, V_P1 = 24, 25, 26, 27, 28, 29, 30, 31
V_TW0, V_TW1, V_TV0, V_TV1, V_DV, V_RA, V_OO, V_GP, V_G0, V_G1 = 2, 3, 4, 5, 6, 7, 8, 9, 10, 11
G_D = 12
G_PH = 16
G_TR, G_X, G_T, G_ACC, G_G = 96, 112, 120, 128, 192
S_HB, S_W2B, S_VB, S_LB, S_PA, S_PB, S_VS = 72, 73, 74, 75, 76, 77, 78
S_R2, S_PC = 79, 80
S_WOF, S_W2C, S_HOF = 81, 82, 83
V_DV1 = 18
RING = 18
SL = [16, 17, 5, 6, 7, 0, 1, 2, 3, 4, 8, 9, 10, 11, 12, 13, 14, 15]
def slot_addr(n): return SL[n % RING]*8192
RED_STRIDE = 1056; RED_W = 16*RED_STRIDE
def mf16(d, a, b, c, aa='v', ab='v'):
    return f'v_mfma_f32_16x16x32_bf16 v[{d}:{d+3}], {aa}[{a}:{a+3}], {ab}[{b}:{b+3}], ' + ('0' if c is None else f'v[{c}:{c+3}]')
def flag_store_now(k, off_items, lab):
    k(f's_cmp_lg_u32 s{S_WV}, 0'); k(f's_cbranch_scc1 {lab}')
    for x in off_items: k(x)
    k(f'v_mov_b32 v{V_PL}, s{S_NON}')
    k(f'buffer_store_dword v{V_PL}, v{V_L0}, s[{S_WS}:{S_WS+3}], s{S_F0} offen sc1')
    k.label(lab)
def w2_row(n):
    if n < 12: return S_W2B, (8*(n >> 2) + (n & 3))*16384
    if n < 24: return S_W2B, (8*((n - 12) >> 2) + 4 + (n & 3))*16384
    return S_W2C, (96 + n - 24)*16384
def w2_dma_chunks(n):
    a = slot_addr(n); b, o = w2_row(n)
    return [('grp', [f's_add_u32 m0, s{S_LB}, {a}', f's_add_u32 s{S_WOF}, s{b}, {o}', ('vm', f'buffer_load_dwordx4 v{V_DW}, s[{S_W2}:{S_W2+3}], s{S_WOF} offen lds', ('w', n))]),
            ('grp', [('vm', f'buffer_load_dwordx4 v{V_DW+V_DW1}, s[{S_W2}:{S_W2+3}], s{S_WOF} offen offset:1024 lds', ('w', n))])]
def tail_prefetch_items():
    L = V_L; T0, T1 = V_P0, V_P1
    it = []
    T0, T1 = 46, 47
    pre = [f'v_lshlrev_b32 v{V_L16}, 4, v{L}',
           f'v_lshrrev_b32 v{T0}, 3, v{L}', f'v_lshlrev_b32 v{V_DW}, 10, v{T0}',
           f'v_bfe_u32 v{T0}, v{L}, 4, 1', f'v_bfe_u32 v{T1}, v{L}, 2, 1', f'v_xor_b32 v{T0}, v{T0}, v{T1}',
           f'v_lshl_add_u32 v{V_DW}, v{T0}, 6, v{V_DW}', f'v_and_b32 v{T0}, 3, v{L}', f'v_lshl_add_u32 v{V_DW}, v{T0}, 4, v{V_DW}',
           f'v_add_u32 v{V_DW+V_DW1}, {8192-1024}, v{V_DW}', f'v_add_u32 v{V_L16H}, {112*1024}, v{V_L16}',
           f's_mul_i32 s{S_W2B}, s{S_WV}, {24*16384}', f's_lshl_b32 s{S_PA}, s{S_CB2}, 7', f's_add_u32 s{S_W2B}, s{S_W2B}, s{S_PA}',
           f's_lshl_b32 s{S_W2C}, s{S_WV}, 16', f's_add_u32 s{S_W2C}, s{S_W2C}, s{S_PA}',
           f's_lshl_b32 s{S_LB}, s{S_WV}, 11',
           f's_lshl_b32 s{S_PB}, s{S_WV}, 13', f's_add_u32 s{S_PB}, s{S_PB}, {TAB_E64}']
    for idx in range(8):
        r = A_E64 + 4*idx
        g = pre + ([f's_add_u32 s{S_PB}, s{S_PB}, 4096'] if idx == 4 else [])
        it.append(('grp', g + [('vm', f'buffer_load_dwordx4 a[{r}:{r+3}], v{V_L16}, s[{S_TAB}:{S_TAB+3}], s{S_PB} offen offset:{(idx&3)*1024}', 'pre')])); pre = []
    for i in range(6):
        r = A_E32 + 4*i
        g = [f's_mov_b32 s{S_PB}, {TAB_E32 + (i>>2)*4096}'] if (i & 3) == 0 else []
        it.append(('grp', g + [('vm', f'buffer_load_dwordx4 a[{r}:{r+3}], v{V_L16}, s[{S_TAB}:{S_TAB+3}], s{S_PB} offen offset:{(i&3)*1024}', 'pre')]))
    for i in range(4):
        g = [f's_lshl_b32 s{S_PB}, s{S_WV}, 12', f's_add_u32 s{S_PB}, s{S_PB}, {TAB_TW}'] if i == 0 else []
        it.append(('grp', g + [('vm', f'buffer_load_dwordx4 v[{TW+4*i}:{TW+4*i+3}], v{V_L16}, s[{S_TAB}:{S_TAB+3}], s{S_PB} offen offset:{i*1024}', 'pre')]))
    for n in range(5): it += w2_dma_chunks(n)
    return it
def p2a_poll_lines():
    L = V_L
    return [f's_lshr_b32 s{S_B}, s2, 6', f's_lshl_b32 s{S_C_}, s{S_B}, 7', f's_add_u32 s{S_C_}, s{S_C_}, {WS_UF}',
            f's_lshl_b32 s{S_B}, s{S_B}, 8', f's_add_u32 s{S_B}, s{S_B}, {WS_WTF}',
            f'v_lshlrev_b32 v{V_P0}, 2, v{L}', f'v_and_b32 v{V_P1}, 60, v{V_P0}',
            f'buffer_load_dword v{V_YR0}, v{V_P1}, s[{S_WS}:{S_WS+3}], s{S_C_} offen sc1',
            f'buffer_load_dword v{V_YR1}, v{V_P0}, s[{S_WS}:{S_WS+3}], s{S_B} offen sc1']
class Pacer:
    def __init__(self, k, sc, every): self.k = k; self.sc = sc; self.every = every; self.c = 0; self.q = []
    def __call__(self, s):
        self.k(s); self.tick()
    def tick(self, n=1):
        self.c += n
        if self.c >= self.every and self.q:
            self.c = 0; self.sc.emit(self.q.pop(0))
    def flush(self):
        while self.q: self.sc.emit(self.q.pop(0))
def g2_addr_items():
    L, T0, T1 = V_L, V_G0, V_G1
    o = []
    k = o.append
    k(f's_lshl_b32 s{T}, s{S_RB2}, 2'); k(f's_lshl_b32 s{T+1}, s{S_G2}, 1'); k(f's_add_u32 s{T}, s{T}, s{T+1}')
    k(f's_mul_i32 s{T}, s{T}, 112'); k(f's_mul_i32 s{T+1}, s{S_WV}, 28'); k(f's_add_u32 s{T}, s{T}, s{T+1}')
    k(f's_lshl_b32 s{S_HB}, s{T}, 10'); k(f's_add_u32 s{S_HB}, s{S_HB}, {WS_H}')
    k(f'v_lshrrev_b32 v{T0}, 4, v{L}'); k(f'v_lshlrev_b32 v{V_DV}, 13, v{T0}')
    k(f'v_and_b32 v{T0}, 1, v{T0}'); k(f'v_lshlrev_b32 v{T0}, 3, v{T0}'); k(f'v_and_b32 v{T1}, 15, v{L}'); k(f'v_xor_b32 v{T0}, v{T0}, v{T1}')
    k(f'v_lshl_add_u32 v{V_DV}, v{T0}, 4, v{V_DV}'); k(f'v_add_u32 v{V_DV1}, {4*8192-1024}, v{V_DV}')
    k(f's_lshl_b32 s{S_VB}, s{S_WV}, 19'); k(f's_lshl_b32 s{T}, s{S_RB2}, 9'); k(f's_add_u32 s{S_VB}, s{S_VB}, s{T}')
    k(f's_lshl_b32 s{T}, s{S_G2}, 8'); k(f's_add_u32 s{S_VB}, s{S_VB}, s{T}'); k(f's_add_u32 s{S_VB}, s{S_VB}, {WS_V}')
    k(f'v_lshrrev_b32 v{T0}, 5, v{L}'); k(f'v_lshlrev_b32 v{V_TW0}, 9, v{T0}')
    k(f'v_bfe_u32 v{T0}, v{L}, 2, 2'); k(f'v_lshl_add_u32 v{V_TW0}, v{T0}, 7, v{V_TW0}')
    k(f'v_bfe_u32 v{T0}, v{L}, 3, 1'); k(f'v_lshl_add_u32 v{V_TW0}, v{T0}, 6, v{V_TW0}')
    k(f'v_bfe_u32 v{T0}, v{L}, 4, 1'); k(f'v_lshl_add_u32 v{V_TW0}, v{T0}, 5, v{V_TW0}')
    k(f'v_and_b32 v{T0}, 3, v{L}'); k(f'v_lshl_add_u32 v{V_TW0}, v{T0}, 3, v{V_TW0}')
    k(f'v_add_u32 v{V_TW0}, s{S_LB}, v{V_TW0}'); k(f'v_xor_b32 v{V_TW1}, 64, v{V_TW0}')
    k(f'v_lshrrev_b32 v{T0}, 5, v{L}'); k(f'v_lshlrev_b32 v{V_TV0}, 10, v{T0}')
    k(f'v_bfe_u32 v{T0}, v{L}, 3, 1'); k(f'v_lshl_add_u32 v{V_TV0}, v{T0}, 8, v{V_TV0}'); k(f'v_lshl_add_u32 v{V_TV0}, v{T0}, 7, v{V_TV0}')
    k(f'v_bfe_u32 v{T0}, v{L}, 4, 1'); k(f'v_lshl_add_u32 v{V_TV0}, v{T0}, 6, v{V_TV0}')
    k(f'v_and_b32 v{T0}, 3, v{L}'); k(f'v_lshl_add_u32 v{V_TV0}, v{T0}, 4, v{V_TV0}')
    k(f'v_bfe_u32 v{T0}, v{L}, 2, 1'); k(f'v_lshl_add_u32 v{V_TV0}, v{T0}, 3, v{V_TV0}')
    k(f'v_add_u32 v{V_TV0}, s{S_LB}, v{V_TV0}'); k(f'v_xor_b32 v{V_TV1}, 128, v{V_TV0}')
    k(f's_lshr_b32 s{T}, s{S_WV}, 1'); k(f's_and_b32 s{T+1}, s{S_WV}, 1'); k(f's_lshl_b32 s{T+1}, s{T+1}, 4')
    k(f'v_lshrrev_b32 v{T0}, 3, v{L}'); k(f'v_add_u32 v{T0}, s{T+1}, v{T0}')
    k(f'v_and_b32 v{T1}, 7, v{L}')
    k(f'v_mul_u32_u24 v{V_RA}, {RED_STRIDE}, v{T1}'); k(f'v_lshl_add_u32 v{V_RA}, v{T0}, 4, v{V_RA}')
    k(f's_mul_i32 s{T+2}, s{T}, {8*RED_STRIDE}'); k(f'v_add_u32 v{V_RA}, s{T+2}, v{V_RA}')
    k(f'v_lshlrev_b32 v{V_OO}, 4, v{T1}')
    k(f'v_and_b32 v{T1}, 3, v{T0}'); k(f'v_lshl_add_u32 v{V_OO}, v{T1}, 15, v{V_OO}')
    k(f'v_lshrrev_b32 v{T1}, 3, v{T0}'); k(f'v_lshl_add_u32 v{V_OO}, v{T1}, 11, v{V_OO}')
    k(f'v_bfe_u32 v{T1}, v{T0}, 2, 1'); k(f'v_lshl_add_u32 v{V_OO}, v{T1}, 10, v{V_OO}')
    k(f's_lshl_b32 s{T+2}, s{S_G2}, 1'); k(f's_add_u32 s{T+2}, s{T+2}, s{T}'); k(f's_lshl_b32 s{T+2}, s{T+2}, 13')
    k(f's_lshl_b32 s{T+3}, s{S_RB2}, 17'); k(f's_add_u32 s{T+2}, s{T+2}, s{T+3}')
    k(f's_lshl_b32 s{T+3}, s{S_CB2}, 7'); k(f's_add_u32 s{T+2}, s{T+2}, s{T+3}')
    k(f'v_add_u32 v{V_OO}, s{T+2}, v{V_OO}')
    k(f'v_and_b32 v{T0}, 31, v{L}'); k(f's_lshl_b32 s{T}, s{S_CB2}, 6'); k(f'v_add_u32 v{T0}, s{T}, v{T0}')
    k(f'v_cvt_f32_u32 v{G_D}, v{T0}'); k(f'v_add_u32 v{T0}, 32, v{T0}'); k(f'v_cvt_f32_u32 v{G_D+1}, v{T0}')
    k(f'v_lshrrev_b32 v{T1}, 5, v{L}'); k(f'v_lshlrev_b32 v{T1}, 2, v{T1}'); k(f's_lshl_b32 s{T}, s{S_WV}, 6'); k(f's_add_u32 s{T}, s{T}, 1')
    k(f'v_add_u32 v{T1}, s{T}, v{T1}'); k(f'v_cvt_f32_u32 v{T1}, v{T1}')
    for ct in range(2):
        k(f'v_mul_f32 v{G_D+ct}, 0x3b000000, v{G_D+ct}')
        k(f'v_mul_f32 v{G_D+2+ct}, 0x40a00000, v{G_D+ct}')
        k(f'v_mul_f32 v{G_PH+ct}, v{T1}, v{G_D+ct}')
    return o
def g_gen_items():
    o = []
    for c in range(8):
        for j in range(4):
            for ct in range(2):
                t = G_T + 2*ct
                o.append(f'v_cos_f32 v{t}, v{G_PH+ct}'); o.append(f'v_sin_f32 v{t+1}, v{G_PH+ct}')
            for ct in range(2):
                if not (c == 7 and j == 3):
                    o.append(f'v_add_f32 v{G_PH+ct}, v{G_PH+ct}, v{G_D + (2 if j == 3 else 0) + ct}')
            for ct in range(2):
                t = G_T + 2*ct
                o.append(f'v_cvt_pk_bf16_f32 v{G_G + 8*c + 4*ct + j}, v{t}, -v{t+1}')
    return o
def h_chunks(n):
    d = A_H + 8*(n % NH)
    return [('grp', [f's_add_u32 s{S_HOF}, s{S_HB}, {n*1024}', ('vm', f'buffer_load_dwordx4 a[{d}:{d+3}], v{V_L16}, s[{S_WS}:{S_WS+3}], s{S_HOF} offen sc1', ('h', n))]),
            ('grp', [('vm', f'buffer_load_dwordx4 a[{d+4}:{d+7}], v{V_L16H}, s[{S_WS}:{S_WS+3}], s{S_HOF} offen sc1', ('h', n))])]
def v_chunks(n):
    c = n - 28; a = slot_addr(n)
    return [('grp', [f's_add_u32 m0, s{S_LB}, {a}', f's_add_u32 s{S_PA}, s{S_VB}, {8*c*8192}',
                     ('vm', f'buffer_load_dwordx4 v{V_DV}, s[{S_WS}:{S_WS+3}], s{S_PA} offen sc1 lds', ('w', n))]),
            ('grp', [('vm', f'buffer_load_dwordx4 v{V_DV1}, s[{S_WS}:{S_WS+3}], s{S_PA} offen offset:1024 sc1 lds', ('w', n))])]
def tail(k, st, ts):
    L = V_L
    vm = VM(k); lg = LG(k); sc = Sched2(k, vm, lg)
    vm.q = ['pre']; vm.ever.add('pre')
    for n in range(5): pass
    def wait_w(n):
        if n < 5: vm.wait('pre')
        else:
            assert ('w', n) in vm.ever, n
            vm.wait(('w', n))
    if st: st.stamp('mfma_done')
    units = [ffn_unit(1, t, e) for t in range(2) for e in range(2)]
    P = Pacer(k, sc, 12)
    def run_unit(u):
        for x in u:
            if isinstance(x, str): P(x)
            else: sc.emit(x); P.tick()
    k.nop(6)
    hf_off = lambda p: [f's_lshl_b32 s{S_F0}, s{S_RB}, 7', f's_lshl_b32 s{S_F1}, s{S_CB}, 2', f's_add_u32 s{S_F0}, s{S_F0}, s{S_F1}', f's_add_u32 s{S_F0}, s{S_F0}, {WS_HF + 64*p}']
    run_unit(units[0]); run_unit(units[1])
    vm.wait('pre'); k('s_barrier')
    flag_store_now(k, hf_off(0), 'L_fl_h0')
    if st and 'tailts' in OPT: st.stamp('h0flag')
    for n in range(5, 10): P.q += w2_dma_chunks(n)
    run_unit(units[2])
    pl = p2a_poll_lines()
    for x in pl[:-2]: k(x)
    vm.issue(pl[-2], 'pp'); vm.issue(pl[-1], 'pp')
    run_unit(units[3])
    P.flush()
    if st: st.stamp('p1_end')
    vm.wait('pp')
    tag_check(k, 'p2a', [V_YR0, V_YR1], pl)
    if st and 'tailts' in OPT: st.stamp('uf_ok')
    k(f's_lshl_b32 s{T}, s2, 13'); k(f's_lshl_b32 s{T+1}, s{S_WV}, 11'); k(f's_add_u32 s{T+2}, s{T}, s{T+1}')
    k(f's_add_u32 m0, s{T+1}, {L_U}'); k(f's_add_u32 s{T+3}, s{T+2}, {WS_U}')
    for e in range(2):
        vm.issue(f'buffer_load_dwordx4 v{V_L16}, s[{S_WS}:{S_WS+3}], s{T+3} offen offset:{e*1024} sc1 lds', 'u')
    k(f'v_and_b32 v{V_P0}, 15, v{L}'); k(f'v_lshrrev_b32 v{V_P1}, 4, v{L}')
    k(f'v_lshlrev_b32 v{V_VA}, 7, v{V_P0}'); k(f'v_lshl_add_u32 v{V_VA}, v{V_P1}, 4, v{V_VA}')
    k(f's_add_u32 s{T+3}, s{T+2}, {WS_WT}')
    for mt in range(2):
        vm.issue(f'buffer_load_dwordx4 v[{WT_+4*mt}:{WT_+4*mt+3}], v{V_VA}, s[{S_WS}:{S_WS+3}], s{T+3} offen offset:{mt*64} sc1', 'wt')
    k(f'v_lshlrev_b32 v{V_VA}, 9, v{V_P1}'); k(f'v_lshl_add_u32 v{V_VA}, v{V_P0}, 4, v{V_VA}')
    k(f'v_add_u32 v{V_UA}, {L_U}, v{V_VA}')
    hp = lambda p: [f's_lshl_b32 s{S_B}, s{S_RB2}, 7', f's_add_u32 s{S_B}, s{S_B}, {WS_HF + 64*p}', f'v_lshlrev_b32 v{V_GP}, 2, v{L}',
                    f'v_min_u32 v{V_GP}, {44 if p == 0 else 60}, v{V_GP}',
                    f'buffer_load_dword v{V_G_HP}, v{V_GP}, s[{S_WS}:{S_WS+3}], s{S_B} offen sc1']
    ga = g2_addr_items()
    for x in ga[:len(ga)//2]: k(x)
    vm.wait('u'); k('s_barrier')
    flag_store_now(k, hf_off(1), 'L_fl_h1')
    for x in hp(0)[:-1]: k(x)
    vm.issue(hp(0)[-1], 'hp0')
    if st: st.stamp('hflag')
    for ks in range(4):
        for mt in range(2):
            r = UFR + 4*(mt*4+ks)
            lg.issue(f'ds_read_b128 v[{r}:{r+3}], v{V_UA} offset:{ks*2048 + mt*256}', ('uf', ks))
    P = Pacer(k, sc, PACE_P2A)
    for n in range(10, 12): P.q += w2_dma_chunks(n)
    kk = P
    D, Tt, B = D_, T_, B_
    kk(f'v_and_b32 v{V_P0}, 15, v{L}'); kk(f'v_lshlrev_b32 v{V_YW0}, 6, v{V_P0}')
    kk(f'v_bfe_u32 v{V_P0}, v{L}, 2, 1'); kk(f'v_lshl_add_u32 v{V_YW0}, v{V_P0}, 5, v{V_YW0}')
    kk(f'v_lshrrev_b32 v{V_P0}, 4, v{L}'); kk(f'v_lshl_add_u32 v{V_YW0}, v{V_P0}, 3, v{V_YW0}')
    k(f's_lshl_b32 s{T}, s{S_WV}, 10'); k(f's_add_u32 s{T}, s{T}, {L_Y}'); kk(f'v_add_u32 v{V_YW0}, s{T}, v{V_YW0}')
    kk(f'v_xor_b32 v{V_YW1}, 32, v{V_YW0}')
    kk(f'v_lshrrev_b32 v{V_P0}, 2, v{L}'); kk(f'v_lshlrev_b32 v{V_YR0}, 6, v{V_P0}')
    kk(f'v_bfe_u32 v{V_P0}, v{L}, 4, 1'); kk(f'v_lshl_add_u32 v{V_YR0}, v{V_P0}, 5, v{V_YR0}')
    kk(f'v_and_b32 v{V_P0}, 3, v{L}'); kk(f'v_lshl_add_u32 v{V_YR0}, v{V_P0}, 3, v{V_YR0}')
    kk(f'v_add_u32 v{V_YR0}, {L_Y}, v{V_YR0}'); kk(f'v_xor_b32 v{V_YR1}, 32, v{V_YR0}')
    for ks in range(4):
        lg.wait(('uf', ks))
        for mt in range(2):
            for var in range(2):
                d = D + 4*(mt*2+var)
                kk(mf16(d, UFR + 4*(mt*4+ks), A_E64 + 4*(ks*2+var), None if ks == 0 else d, 'v', 'a'))
    if st and 'tailts' in OPT: st.stamp('s1')
    P.flush()
    vm.wait('hp0')
    tag_check(k, 'hf0', [V_G_HP], hp(0))
    if st: st.stamp('hf0_ok')
    for n in range(12): P.q += h_chunks(n)
    for n in range(12, RING): P.q += w2_dma_chunks(n)
    P.every = PACE_H; P.c = 0
    k.nop(2)
    def twiddle(sign):
        for mt in range(2):
            for r in range(4):
                R, I = D + 8*mt + r, D + 8*mt + 4 + r; c = TW + 8*mt + r
                kk(f'v_mul_f32 v{Tt+8*mt+r}, v{R}, v{c}'); kk(f'v_mul_f32 v{Tt+8*mt+4+r}, v{I}, v{c}')
            for r in range(4):
                R, I = D + 8*mt + r, D + 8*mt + 4 + r; s_ = TW + 8*mt + 4 + r
                kk(f'v_fma_f32 v{Tt+8*mt+r}, {"" if sign > 0 else "-"}v{I}, v{s_}, v{Tt+8*mt+r}')
                kk(f'v_fma_f32 v{Tt+8*mt+4+r}, {"-" if sign > 0 else ""}v{R}, v{s_}, v{Tt+8*mt+4+r}')
    def pack():
        for mt in range(2):
            for part in range(2):
                kk(f'v_cvt_pk_bf16_f32 v{B+4*part+2*mt}, v{Tt+8*mt+4*part}, v{Tt+8*mt+4*part+1}')
                kk(f'v_cvt_pk_bf16_f32 v{B+4*part+2*mt+1}, v{Tt+8*mt+4*part+2}, v{Tt+8*mt+4*part+3}')
    twiddle(+1); pack(); k.nop(2)
    Br, Bi = B, B + 4
    C32 = lambda mt: A_E32 + 12*mt; S32 = lambda mt: A_E32 + 12*mt + 4; N32 = lambda mt: A_E32 + 12*mt + 8
    for mt in range(2):
        kk(mf16(D + 8*mt, C32(mt), Br, None, 'a')); kk(mf16(D + 8*mt + 4, C32(mt), Bi, None, 'a'))
    for mt in range(2):
        kk(mf16(D + 8*mt, S32(mt), Bi, D + 8*mt, 'a')); kk(mf16(D + 8*mt + 4, N32(mt), Br, D + 8*mt + 4, 'a'))
    vm.wait('wt')
    for mt in range(2):
        for r in range(4):
            kk(f'v_lshlrev_b32 v{WU+4*mt+r}, 16, v{WT_+4*mt+r}'); kk(f'v_and_b32 v{WU+8+4*mt+r}, 0xffff0000, v{WT_+4*mt+r}')
    for mt in range(2):
        for r in range(4):
            R = D + 8*mt + r
            kk(f'v_mul_f32 v{Tt+8*mt+r}, v{R}, v{WU+4*mt+r}'); kk(f'v_mul_f32 v{Tt+8*mt+4+r}, v{R}, v{WU+8+4*mt+r}')
        for r in range(4):
            I = D + 8*mt + 4 + r
            kk(f'v_fma_f32 v{Tt+8*mt+r}, -v{I}, v{WU+8+4*mt+r}, v{Tt+8*mt+r}')
            kk(f'v_fma_f32 v{Tt+8*mt+4+r}, v{I}, v{WU+4*mt+r}, v{Tt+8*mt+4+r}')
    pack(); k.nop(2)
    for mt in range(2):
        kk(mf16(D + 8*mt, C32(mt), Br, None, 'a')); kk(mf16(D + 8*mt + 4, C32(mt), Bi, None, 'a'))
    for mt in range(2):
        kk(mf16(D + 8*mt, N32(mt), Bi, D + 8*mt, 'a')); kk(mf16(D + 8*mt + 4, S32(mt), Br, D + 8*mt + 4, 'a'))
    for x in ga[len(ga)//2:]: kk(x)
    twiddle(-1); pack()
    for mt in range(2):
        va = V_YW0 if mt == 0 else V_YW1
        lg.issue(f'ds_write_b64 v{va}, v[{B+4+2*mt}:{B+4+2*mt+1}]'); lg.issue(f'ds_write_b64 v{va}, v[{B+2*mt}:{B+2*mt+1}] offset:4096')
    lg.drain(); k('s_barrier')
    FB = UFR
    for nt in range(2):
        va = V_YR0 if nt == 0 else V_YR1
        for ks in range(4):
            r = FB + 4*(nt*4+ks)
            lg.issue(f'ds_read_b64_tr_b16 v[{r}:{r+1}], v{va} offset:{ks*1024}'); P.tick()
            lg.issue(f'ds_read_b64_tr_b16 v[{r+2}:{r+3}], v{va} offset:{4096 + ks*1024}', ('yb', nt)); P.tick()
    k(f's_mov_b32 s{S_VS}, 0x36000000'); k('s_cmp_eq_u32 s2, 255'); k(f's_cselect_b32 s{S_VS}, 0x35800000, s{S_VS}')
    k(f's_lshl_b32 s{T}, s2, 13'); k(f's_lshl_b32 s{T+1}, s{S_WV}, 11'); k(f's_add_u32 s{T}, s{T}, s{T+1}'); k(f's_add_u32 s{T+4}, s{T}, {WS_V}')
    for nt in range(2):
        lg.wait(('yb', nt))
        for ks in range(4):
            f = FB + 4*(nt*4+ks)
            kk(mf16(D + 8*nt + 4, A_E64 + 4*(ks*2+0), f, None if ks == 0 else D + 8*nt + 4, 'a'))
            kk(mf16(D + 8*nt, A_E64 + 4*(ks*2+1), f, None if ks == 0 else D + 8*nt, 'a'))
    k.nop(4)
    for nt in range(2):
        if nt == 0: k.nop(4)
        for i in range(8): kk(f'v_mul_f32 v{D+8*nt+i}, s{S_VS}, v{D+8*nt+i}')
        o = B + 4*nt
        kk(f'v_cvt_pk_bf16_f32 v{o}, v{D+8*nt}, v{D+8*nt+1}'); kk(f'v_cvt_pk_bf16_f32 v{o+1}, v{D+8*nt+2}, v{D+8*nt+3}')
        kk(f'v_cvt_pk_bf16_f32 v{o+2}, v{D+8*nt+4}, v{D+8*nt+5}'); kk(f'v_cvt_pk_bf16_f32 v{o+3}, v{D+8*nt+6}, v{D+8*nt+7}')
        vm.issue(f'buffer_store_dwordx4 v[{o}:{o+3}], v{V_VA}, s[{S_WS}:{S_WS+3}], s{T+4} offen offset:{nt*256} sc1', 'vst')
    while len(P.q) > 12: sc.emit(P.q.pop(0))
    carry = P.q; P.q = []
    for x in hp(1)[:-1]: k(x)
    vm.issue(hp(1)[-1], 'hp1')
    if st: st.stamp('p2a_end')
    NF, NS = 28, 36
    T0, T1 = V_G0, V_G1
    hq = []; wq = list(carry)
    xq = [('grp', [('vm', f'buffer_load_dwordx4 v[{G_X+4*j}:{G_X+4*j+3}], v{V_OO}, s[{S_X}:{S_X+3}], 0 offen offset:{j*2048}', 'x') for j in range(2)])]
    hnext = [12]; vready = []; h1ok = [False]
    gq = g_gen_items()
    def reads(n):
        a = slot_addr(n); b = G_TR + 8*(n & 1); o = []
        for t in range(2):
            va = (V_TW0, V_TW1)[t] if n < NF else (V_TV0, V_TV1)[t]
            for part in range(2):
                off = (part*8*128 if n < NF else part*2*256)
                o.append((va, a + off, b + 4*t + 2*part))
        return o
    def emit_read(n, r):
        va, off, b = r
        if off >= 65536:
            lg.issue(f'ds_read_b64_tr_b16 v[{b}:{b+1}], v{va+V_HI} offset:{off - 65536}', ('tr', n))
        else:
            lg.issue(f'ds_read_b64_tr_b16 v[{b}:{b+1}], v{va} offset:{off}', ('tr', n))
    for va in (V_TW0, V_TW1, V_TV0, V_TV1): k(f'v_add_u32 v{va+V_HI}, 0x10000, v{va}')
    for va in (V_TW0, V_TW1, V_TV0, V_TV1): k(f'v_add_u32 v{va+V_HI2}, 0x20000, v{va}')
    def emit_read(n, r):
        va, off, b = r
        hi = off >> 16
        lg.issue(f'ds_read_b64_tr_b16 v[{b}:{b+1}], v{va + (0, V_HI, V_HI2)[hi]} offset:{off & 0xffff}', ('tr', n))
    vp = [f's_lshl_b32 s{S_B}, s{S_WV}, 8', f's_add_u32 s{S_B}, s{S_B}, {WS_VF}', f'v_lshlrev_b32 v{V_GP}, 2, v{L}',
          f'buffer_load_dword v{T1}, v{V_GP}, s[{S_WS}:{S_WS+3}], s{S_B} offen sc1']
    wait_w(0)
    for r in reads(0): emit_read(0, r)
    for n in range(NS):
        rd = []
        if n + 1 < NS:
            wait_w(n + 1); rd = reads(n + 1)
        if n < NF:
            assert ('h', n) in vm.ever, n
            vm.wait(('h', n))
        lg.wait(('tr', n))
        b = G_TR + 8*(n & 1)
        if n == H1CHK:
            vm.wait('hp1'); tag_check(k, 'hf1', [V_G_HP], hp(1)); h1ok[0] = True
            if st: st.stamp('hf1_ok')
            while hnext[0] <= n + HLOOK and hnext[0] < n + NH: hq += h_chunks(hnext[0]); hnext[0] += 1
        if n == 2:
            vm.wait('vst'); k('s_barrier')
            flag_store_now(k, [f's_lshl_b32 s{S_F0}, s2, 2', f's_add_u32 s{S_F0}, s{S_F0}, {WS_VF}'], 'L_fl_v')
            if st: st.stamp('vflag')
        if st and 'g2ts' in OPT and n in (1, 3, 5, 7, 9, 13, 17, 21, 25, 28, 32): st.stamp(f'g{n}')
        if n == VCHK:
            assert 'vp' in vm.ever
            vm.wait('vp'); tag_check(k, 'vf', [T1], vp)
            if st: st.stamp('vf_ok')
        gap = 0
        for e in range(2):
            for ct in range(2):
                a_ = f'v[{G_ACC+16*(2*e+ct)}:{G_ACC+16*(2*e+ct)+15}]'; c_ = '0' if n == 0 else a_
                if n < NF:
                    d = A_H + 8*(n % NH)
                    k(f'v_mfma_f32_32x32x16_bf16 {a_}, v[{b+4*ct}:{b+4*ct+3}], a[{d+4*e}:{d+4*e+3}], {c_}')
                else:
                    g = G_G + 8*(n - NF) + 4*ct
                    k(f'v_mfma_f32_32x32x16_bf16 {a_}, v[{g}:{g+3}], v[{b+4*e}:{b+4*e+3}], {c_}')
                if rd: emit_read(n + 1, rd.pop(0))
                if gap in (0, 2):
                    if hq: sc.emit(hq.pop(0))
                    elif xq and n >= 20: sc.emit(xq.pop(0))
                elif wq and (len(wq) >= 6 or len(wq) % 2 == 1 or (n + gap) % 2 == 0 or n >= 11): sc.emit(wq.pop(0))
                for _ in range(GPACE):
                    if gq: k(gq.pop(0))
                gap += 1
        m = n + RING - 1
        if n >= 1 and m < NF: wq += w2_dma_chunks(m)
        if n >= 1 and NF <= m < NS: vready.append(m)
        if n >= VCHK:
            while vready: wq += v_chunks(vready.pop(0))
        while h1ok[0] and hnext[0] < NF and hnext[0] <= n + 1 + HLOOK and hnext[0] < n + 1 + NH:
            hq += h_chunks(hnext[0]); hnext[0] += 1
        if n == VCHK - 4:
            hq.insert(0, ('grp', vp[:-1] + [('vm', vp[-1], 'vp')]))
    assert not gq and not hq and not wq and not xq, (len(gq), len(hq), len(wq), len(xq))
    if st: st.stamp('kdone')
    k('s_barrier')
    k(f's_mul_i32 s{T}, s{S_WV}, {RED_W}'); k(f'v_lshl_add_u32 v{T0}, v{L}, 4, s{T}')
    k.nop(10)
    for e in range(2):
        for ct in range(2):
            for q in range(4):
                r = G_ACC + 16*(2*e+ct) + 4*q
                k(f'ds_write_b128 v{T0}, v[{r}:{r+3}] offset:{((e*2+ct)*4+q)*RED_STRIDE}')
    k('s_waitcnt lgkmcnt(0)'); k('s_barrier')
    if st: st.stamp('redw')
    for j in range(2):
        for w in range(4):
            r = G_ACC + 32*j + 8*w
            k(f'ds_read_b128 v[{r}:{r+3}], v{V_RA} offset:{w*RED_W + j*128}')
            k(f'ds_read_b128 v[{r+4}:{r+7}], v{V_RA} offset:{w*RED_W + j*128 + 512}')
    vm.wait('x')
    for j in range(2):
        S = G_ACC + 32*j
        for w in range(1, 4):
            k(f's_waitcnt lgkmcnt({min(15, 8*(1-j) + 2*(3-w))})')
            for i in range(8): k(f'v_add_f32 v{S+i}, v{S+i}, v{S+8*w+i}')
        for i in range(4):
            x = G_X + 4*j + i
            k(f'v_lshlrev_b32 v{T0}, 16, v{x}'); k(f'v_and_b32 v{T1}, 0xffff0000, v{x}')
            k(f'v_add_f32 v{S+2*i}, v{S+2*i}, v{T0}'); k(f'v_add_f32 v{S+2*i+1}, v{S+2*i+1}, v{T1}')
            k(f'v_cvt_pk_bf16_f32 v{x}, v{S+2*i}, v{S+2*i+1}')
        vm.issue(f'buffer_store_dwordx4 v[{G_X+4*j}:{G_X+4*j+3}], v{V_OO}, s[{S_OUT}:{S_OUT+3}], 0 offen offset:{j*2048}', 'o')
V_G_HP = 20
V_HI, V_HI2 = 30, 34
PACE_P2A, PACE_H, GPACE, VCHK, HLOOK, H1CHK = 8, 7, 3, 17, 14, 3
def build(ts=False):
    global slow_paths
    slow_paths.clear(); slow_id[0] = 0
    k = K()
    st = Stamps(k, ts, 0, vts=V_TS)
    k('s_cmp_ge_u32 s2, 256'); k('s_cbranch_scc1 L_end')
    st.stamp('start')
    prologue(k, st)
    k(f's_cmp_ge_u32 s{S_CB}, 12'); k('s_cbranch_scc1 L_typeB')
    n0, nm0 = st.n, list(st.names)
    sta = st if ts else None
    p1_body(k, False, sta)
    k('s_branch L_common')
    st.n, st.names = n0, list(nm0)
    k.label('L_typeB')
    p1_body(k, True, sta)
    k.label('L_common')
    tail(k, sta, ts)
    k('s_cmp_lg_u32 s2, 0'); k('s_cbranch_scc1 L_noep')
    flag_store_now(k, [f's_mov_b32 s{S_F0}, {WS_EPOCH}'], 'L_fl_e')
    k.label('L_noep')
    if 'dbgts' in OPT:
        k('s_waitcnt vmcnt(0)'); k('s_memrealtime s[64:65]'); k('s_waitcnt lgkmcnt(0)')
        k('s_not_b32 s101, s101'); k('v_mov_b32 v2, s101'); k('v_mov_b32 v3, s64'); k('v_mov_b32 v4, 48'); k('v_mov_b32 v5, 52')
        k(f'v_cndmask_b32 v4, v4, v4, vcc')
        k('s_mov_b64 exec, 1')
        k(f'buffer_atomic_umax v2, v4, s[{S_DBG}:{S_DBG+3}], 0 offen sc1'); k(f'buffer_atomic_umax v3, v5, s[{S_DBG}:{S_DBG+3}], 0 offen sc1')
        k('s_mov_b64 exec, -1')
    st.flush(2, 3)
    k.label('L_end'); k('s_endpgm')
    for sp in slow_paths: k.l += sp.l
    probs = check(k.l, 'fused')
    if probs: print('\n'.join(probs[:10])); raise SystemExit('hazards')
    hdr = f"""; fused LayerNorm + GFNet spectral filter + SwiGLU MLP + residual sum (persistent, one workgroup per CU)
; @launch grid=(256,1,1) block=(256,1,1) lds={LDS_TOTAL}
.amdgcn_target "amdgcn-amd-amdhsa--gfx950"
"""
    out = hdr + kernel_header(NAME) + k.text() + kernel_desc(NAME, 512, sgpr=102, accum=256) + tables_asm()
    if ts: out += '; TSNAMES 0 ' + ' '.join(st.names) + '\n'
    return out
if __name__ == '__main__':
    dst = sys.argv[1]
    OPT.update(a for a in sys.argv[2:])
    s = build(ts='ts' in sys.argv)
    open(dst, 'w').write(s)
    print(len(s), 'bytes ->', dst)
```

```python
import sys
from asmgen import *
from tables import tables_asm, TAB_F, TAB_G, TAB_E64, TAB_E32, TAB_TW, TAB_END
import common as C
from common import VM, Stamps, kernel_header, kernel_desc, S_X, S_W1, S_W3, S_W2, S_WS, S_OUT, S_TAB, S_WR, S_WI
NAME = 'parallel_sum__spectral_gfnet__glu_gated_swiglu__prompt_kernel'
OPT = set()
WS_EPOCH = 0x0
WS_HF = 0x1000
WS_UF = 0x2000
WS_WTF = 0x3000
WS_VF = 0x4000
WS_ST = 0x10000
WS_CS = 0x20000
WS_WT, WS_U, WS_V, WS_H = 0x100000, 0x340000, 0x580000, 0x800000
CSTR = 8192 + 512
WSTR = 8192 + 128
C.CSTR, C.WSTR = CSTR, WSTR
WS_SIZE = 0x1400000
C.WS_WT, C.WS_U, C.WS_V, C.WS_H = WS_WT, WS_U, WS_V, WS_H
S_WV, S_WR_, S_WC, S_RB, S_CB, S_G, S_NON, S_ROT = 40, 41, 42, 43, 44, 45, 46, 47
S_XO, S_WO0, S_WO1, S_FO, S_HO, S_UO = 48, 49, 50, 51, 52, 53
S_MX, S_MW1 = 54, 55
T = 56
S_RB2, S_G2, S_CB2 = 84, 85, 86
S_SX, S_SW = 87, 88
S_PAR = 89
S_ST = 101
S_K2, S_CBLK = 90, 91
S_A, S_B, S_C_, S_D = 92, 93, 94, 95
L_X, L_W = 0x0000, 0x10000
L_UT = 0x0000
L_MISC = 0x24000
L_U = L_MISC
L_Y = L_MISC + 0x2000
L_WTB = L_MISC
L_AX = L_MISC + 0x2400
L_RS = L_AX + 0x1000
L_CSW = 0x20000
LDS_TOTAL = 0x28000
V_L = 1
V_XA = 2
V_WA = 6
V_FA = 8
V_XD = 9
V_W1D = 13
V_W3D = 15
V_FD = 17
V_C1, V_C2 = 18, 20
V_BX = 24
V_HO, V_UTW, V_UTR, V_UO = 32, 33, 34, 35
V_ONE = 36
V_SR = 40
V_WTD = 48
V_STG = 64
V_CSG = 68
V_A0, V_A1, V_A2, V_A3 = 76, 77, 78, 79
ET = 80
AF = 104
ACC = 128
V_TS = 23
V_L0 = 22
S_F0, S_F1 = 96, 97
S_EP, S_EP2 = 98, 99
S_SPIN = 100
V_TCH = 46
S_DBG = 68
S_CD = 72
TOUCH_AT = 11
TOUCH1_AT = 7
TOUCH_STEP = 4
SPIN_MAX = 100000
slow_id = [0]
V_L0T = 42
V_EA = 41
def acc(p, t, e): return ACC + p*64 + t*32 + e*16
def xf(e, kk): return (e*32 + kk)*4
class Sched:
    def __init__(self, k, vm): self.k = k; self.vm = vm; self.q = []
    def add(self, items): self.q += items
    def pop(self, nmax):
        c = 0
        while self.q and c < nmax:
            e = self.q[0]
            if e == 'STEP': return
            self.q.pop(0)
            if isinstance(e, tuple):
                if e[0] == 'vm': self.vm.issue(e[1], e[2])
                elif e[0] == 'call': e[1]()
                elif e[0] == 'grp':
                    for x in e[1]:
                        if isinstance(x, tuple): self.vm.issue(x[1], x[2])
                        else: self.k(x)
                    c += len(e[1]) - 1
            else: self.k(e)
            c += 1
    def newstep(self):
        if self.q and self.q[0] == 'STEP': self.q.pop(0)
    def flush(self):
        while self.q:
            if self.q[0] == 'STEP':
                self.q.pop(0); self.k('s_waitcnt lgkmcnt(0)')
            else: self.pop(1)
slow_paths = []
def tag_check(k, label, regs, reload_lines):
    k(f'v_cmp_ne_u32 vcc, s{S_NON}, v{regs[0]}')
    for r in regs[1:]:
        k(f'v_cmp_ne_u32 s[{T+6}:{T+7}], s{S_NON}, v{r}'); k('s_nop 0'); k(f's_or_b64 vcc, vcc, s[{T+6}:{T+7}]')
    k('s_nop 1')
    k('s_cmp_lg_u64 vcc, 0'); k(f's_cbranch_scc1 L_slow_{label}')
    k.label(f'L_back_{label}')
    sp = K()
    slow_id[0] += 1
    sp.label(f'L_slow_{label}')
    sp(f's_sub_u32 s{S_SPIN}, s{S_SPIN}, 1'); sp(f's_cbranch_scc1 L_tmo_{label}')
    sp('s_sleep 2')
    for l in reload_lines: sp(l)
    sp('s_waitcnt vmcnt(0)')
    sp(f'v_cmp_ne_u32 vcc, s{S_NON}, v{regs[0]}')
    for r in regs[1:]:
        sp(f'v_cmp_ne_u32 s[{T+6}:{T+7}], s{S_NON}, v{r}'); sp('s_nop 0'); sp(f's_or_b64 vcc, vcc, s[{T+6}:{T+7}]')
    sp('s_nop 1')
    sp('s_cmp_lg_u64 vcc, 0'); sp(f's_cbranch_scc1 L_slow_{label}')
    sp(f's_branch L_back_{label}')
    sp.label(f'L_tmo_{label}')
    sp(f's_mov_b32 s{S_SPIN}, 0')
    sp(f'v_mov_b32 v{regs[0]}, {slow_id[0]}'); sp(f'v_mov_b32 v{V_L0T}, {4*slow_id[0]}')
    sp(f'buffer_store_dword v{regs[0]}, v{V_L0T}, s[{S_DBG}:{S_DBG+3}], 0 offen')
    sp(f's_branch L_back_{label}')
    slow_paths.append(sp)
def srd(k, s, lo, hi, size):
    k(f's_mov_b32 s{s}, s{lo}'); k(f's_mov_b32 s{s+1}, s{hi}'); k(f's_mov_b32 s{s+2}, {size}'); k(f's_mov_b32 s{s+3}, 0x20000')
def prologue(k, st):
    L, T0, T1, T2 = V_L, V_A0, V_A1, V_A2
    k('s_load_dwordx16 s[64:79], s[0:1], 0'); k('s_load_dwordx4 s[80:83], s[0:1], 64')
    k(f'v_and_b32 v{L}, 63, v0'); k(f'v_lshrrev_b32 v{T0}, 6, v0'); k('s_nop 0')
    k(f'v_readfirstlane_b32 s{S_WV}, v{T0}')
    k(f's_and_b32 s{T}, s2, 7'); k(f's_lshr_b32 s{T+1}, s2, 3')
    k(f's_and_b32 s{S_WR_}, s{S_WV}, 1'); k(f's_lshr_b32 s{S_WC}, s{S_WV}, 1')
    k(f's_and_b32 s{S_RB}, s{T}, 1'); k(f's_lshl_b32 s{S_RB}, s{S_RB}, 3')
    k(f's_and_b32 s{T+2}, s{T+1}, 7'); k(f's_add_u32 s{S_RB}, s{S_RB}, s{T+2}')
    k(f's_lshr_b32 s{S_G}, s{T}, 1'); k(f's_lshr_b32 s{T+2}, s{T+1}, 3')
    k(f's_mul_i32 s{S_CB}, s{S_G}, 3'); k(f's_add_u32 s{S_CB}, s{S_CB}, s{T+2}'); k(f's_add_u32 s{T+3}, s{S_G}, 12')
    k(f's_cmp_eq_u32 s{T+2}, 3'); k(f's_cselect_b32 s{S_CB}, s{T+3}, s{S_CB}')
    k(f's_lshl_b32 s{T+2}, s{T}, 2'); k(f's_and_b32 s{T+3}, s{T+1}, 3'); k(f's_add_u32 s{T+2}, s{T+2}, s{T+3}')
    k(f's_lshr_b32 s{S_RB2}, s{T+2}, 1'); k(f's_and_b32 s{S_G2}, s{T+2}, 1'); k(f's_lshr_b32 s{S_CB2}, s{T+1}, 2')
    k(f's_lshr_b32 s{S_ROT}, s{S_RB}, 1'); k(f's_lshr_b32 s{T+2}, s{T+1}, 3'); k(f's_lshl_b32 s{T+2}, s{T+2}, 1'); k(f's_add_u32 s{S_ROT}, s{S_ROT}, s{T+2}')
    k(f's_and_b32 s{S_ROT}, s{S_ROT}, 7'); k(f's_and_b32 s{S_PAR}, s{S_RB}, 1')
    k(f's_lshr_b32 s{S_K2}, s2, 2'); k(f's_and_b32 s{S_CBLK}, s2, 3')
    k(f'v_lshrrev_b32 v{T0}, 3, v{L}')
    k(f'v_and_b32 v{T1}, 3, v{T0}'); k(f'v_lshlrev_b32 v{T1}, 15, v{T1}')
    k(f'v_lshrrev_b32 v{T2}, 2, v{T0}'); k(f'v_lshl_add_u32 v{T1}, v{T2}, 10, v{T1}')
    k(f's_lshl_b32 s{T+2}, s{S_WV}, 13'); k(f'v_add_u32 v{T1}, s{T+2}, v{T1}')
    k(f'v_and_b32 v{T2}, 7, v{L}')
    for e in range(4):
        k(f'v_lshrrev_b32 v{V_A3}, 4, v{L}'); k(f'v_add_u32 v{V_A3}, {4*e}, v{V_A3}'); k(f'v_and_b32 v{V_A3}, 7, v{V_A3}')
        k(f'v_xor_b32 v{V_A3}, v{V_A3}, v{T2}'); k(f'v_lshl_add_u32 v{V_XD+e}, v{V_A3}, 4, v{T1}')
        if e: k(f'v_add_u32 v{V_XD+e}, {e*1024}, v{V_XD+e}')
    k(f's_lshl_b32 s{T+2}, s{S_WV}, 4'); k(f'v_add_u32 v{T0}, s{T+2}, v{T0}')
    k(f'v_bfe_u32 v{T1}, v{L}, 4, 1'); k(f'v_bfe_u32 v{T2}, v{L}, 1, 2'); k(f'v_xor_b32 v{T1}, v{T1}, v{T2}')
    k(f'v_mul_u32_u24 v{T0}, 3584, v{T0}'); k(f'v_and_b32 v{T2}, 1, v{L}'); k(f'v_lshl_add_u32 v{T0}, v{T2}, 4, v{T0}')
    k(f'v_lshl_add_u32 v{V_W1D}, v{T1}, 5, v{T0}'); k(f'v_add_u32 v{V_W1D+1}, {8*3584-1024}, v{V_W1D}')
    k(f'v_xor_b32 v{T1}, 2, v{T1}'); k(f'v_lshl_add_u32 v{V_W3D}, v{T1}, 5, v{T0}'); k(f'v_add_u32 v{V_W3D+1}, {8*3584-1024}, v{V_W3D}')
    k(f's_lshl_b32 s{T+2}, s{S_WV}, 12'); k(f'v_lshl_add_u32 v{V_FD}, v{L}, 4, s{T+2}')
    k(f's_lshl_b32 s{S_MX}, s{S_WV}, 12')
    k(f's_lshl_b32 s{S_MW1}, s{S_WV}, 11'); k(f's_add_u32 s{S_MW1}, s{S_MW1}, {L_W}')
    k(f's_lshl_b32 s{S_XO}, s{S_RB}, 17')
    k(f's_lshl_b32 s{S_WO0}, s{S_CB}, 8'); k(f's_add_u32 s{S_WO1}, s{S_WO0}, 128')
    k(f's_lshl_b32 s{T+2}, s{S_G}, 7'); k(f's_add_u32 s{T+2}, s{T+2}, {1536*2}')
    k(f's_cmp_ge_u32 s{S_CB}, 12'); k(f's_cselect_b32 s{S_WO1}, s{T+2}, s{S_WO1}')
    k(f's_lshl_b32 s{S_FO}, s{S_G}, 17'); k(f's_add_u32 s{S_FO}, s{S_FO}, {TAB_F}')
    k(f's_getpc_b64 s[{S_TAB}:{S_TAB+1}]')
    k(f's_add_u32 s{S_TAB}, s{S_TAB}, TABS@rel32@lo+4'); k(f's_addc_u32 s{S_TAB+1}, s{S_TAB+1}, TABS@rel32@hi+12')
    k(f's_mov_b32 s{S_TAB+2}, {TAB_END}'); k(f's_mov_b32 s{S_TAB+3}, 0x20000')
    k('s_waitcnt lgkmcnt(0)')
    k(f's_load_dword s{S_NON}, s[82:83], {WS_EPOCH}')
    srd(k, S_X, 64, 65, 2048*512*2); srd(k, S_W1, 72, 73, 512*1792*2); srd(k, S_W3, 74, 75, 512*1792*2)
def prologue2(k):
    L, T0, T1, T2 = V_L, V_A0, V_A1, V_A2
    srd(k, S_W2, 76, 77, 1792*512*2)
    srd(k, S_OUT, 78, 79, 2048*512*2); srd(k, S_WS, 82, 83, WS_SIZE); srd(k, S_DBG, 80, 81, 256)
    k(f's_mov_b32 s{S_SPIN}, {SPIN_MAX}')
    k(f'v_and_b32 v{T0}, 31, v{L}'); k(f'v_lshrrev_b32 v{T1}, 5, v{L}'); k(f'v_bfe_u32 v{T2}, v{T0}, 1, 3')
    k(f'v_xor_b32 v{T1}, v{T1}, v{T2}'); k(f'v_lshlrev_b32 v{T1}, 4, v{T1}')
    k(f's_lshl_b32 s{T}, s{S_WR_}, 13'); k(f'v_lshl_add_u32 v{T0}, v{T0}, 7, s{T}')
    for ks in range(4):
        k(f'v_xor_b32 v{V_XA+ks}, {ks*32}, v{T1}'); k(f'v_add_u32 v{V_XA+ks}, v{V_XA+ks}, v{T0}')
    k(f'v_bfe_u32 v{T0}, v{L}, 4, 1'); k(f'v_bfe_u32 v{T1}, v{L}, 2, 2')
    k(f'v_lshrrev_b32 v{T2}, 1, v{T1}'); k(f'v_lshl_or_b32 v{T2}, v{T0}, 1, v{T2}')
    k(f'v_lshlrev_b32 v{T0}, 13, v{T0}'); k(f'v_lshl_add_u32 v{T0}, v{T1}, 7, v{T0}')
    k(f'v_lshrrev_b32 v{T1}, 5, v{L}'); k(f'v_lshl_add_u32 v{T0}, v{T1}, 10, v{T0}')
    k(f'v_and_b32 v{T1}, 3, v{L}'); k(f'v_lshl_add_u32 v{T0}, v{T1}, 3, v{T0}'); k(f'v_add_u32 v{T0}, {L_W}, v{T0}')
    k(f's_lshl_b32 s{T}, s{S_WC}, 1')
    for t in range(2):
        k(f's_add_u32 s{T+1}, s{T}, {t}'); k(f'v_xor_b32 v{T1}, s{T+1}, v{T2}'); k(f'v_lshl_add_u32 v{V_WA+t}, v{T1}, 5, v{T0}')
    k(f's_lshl_b32 s{T}, s{S_WC}, 11'); k(f's_add_u32 s{T}, s{T}, {L_W}'); k(f'v_lshl_add_u32 v{V_FA}, v{L}, 4, s{T}')
    k(f's_mul_i32 s{T}, s{S_WR_}, {2*112*1024}'); k(f'v_lshl_add_u32 v{V_HO}, v{L}, 4, s{T}')
    k(f's_mul_i32 s{S_HO}, s{S_RB}, {4*112*1024}'); k(f's_add_u32 s{S_HO}, s{S_HO}, {WS_H}')
    k(f's_mul_i32 s{T}, s{S_G}, 28'); k(f's_lshr_b32 s{T+1}, s2, 6'); k(f's_lshl_b32 s{T+1}, s{T+1}, 2'); k(f's_add_u32 s{T}, s{T}, s{T+1}')
    k(f's_lshl_b32 s{T+1}, s{S_WC}, 1'); k(f's_add_u32 s{T}, s{T}, s{T+1}'); k(f's_lshl_b32 s{T}, s{T}, 10'); k(f's_add_u32 s{S_HO}, s{S_HO}, s{T}')
    k(f'v_and_b32 v{T0}, 15, v{L}'); k(f'v_mul_u32_u24 v{T0}, 528, v{T0}')
    k(f'v_bfe_u32 v{T1}, v{L}, 4, 1'); k(f'v_lshl_add_u32 v{T0}, v{T1}, 3, v{T0}')
    k(f'v_lshrrev_b32 v{T1}, 5, v{L}'); k(f'v_lshl_add_u32 v{T0}, v{T1}, 4, v{T0}')
    k(f's_mul_i32 s{T}, s{S_WC}, {32*528}'); k(f's_lshl_b32 s{T+1}, s{S_WR_}, 8'); k(f's_add_u32 s{T}, s{T}, s{T+1}')
    k(f'v_add_u32 v{V_UTW}, s{T}, v{T0}')
    k(f'v_lshrrev_b32 v{T0}, 5, v{L}'); k(f'v_mul_u32_u24 v{T0}, 528, v{T0}')
    k(f'v_and_b32 v{T1}, 31, v{L}'); k(f'v_lshl_add_u32 v{T0}, v{T1}, 4, v{T0}')
    k(f's_mul_i32 s{T}, s{S_WV}, {16*528}'); k(f'v_add_u32 v{V_UTR}, s{T}, v{T0}')
    k(f'v_lshrrev_b32 v{T0}, 5, v{L}'); k(f'v_mul_u32_u24 v{T0}, {CSTR}, v{T0}'); k(f'v_lshl_add_u32 v{T0}, v{T1}, 4, v{T0}')
    k(f's_mul_i32 s{T}, s{S_WV}, {16*CSTR}'); k(f'v_add_u32 v{V_UO}, s{T}, v{T0}')
    k(f's_mul_i32 s{S_UO}, s{S_G}, {64*CSTR}'); k(f's_lshl_b32 s{T}, s{S_RB}, 9'); k(f's_add_u32 s{S_UO}, s{S_UO}, s{T}'); k(f's_add_u32 s{S_UO}, s{S_UO}, {WS_U}')
    k(f'v_cmp_eq_u32 vcc, 0, v{L}'); k(f'v_mov_b32 v{T0}, 0x7fffffff'); k('s_nop 0'); k(f'v_cndmask_b32 v{V_L0}, v{T0}, 0, vcc')
    for i in range(4): k(f'v_mov_b32 v{V_ONE+i}, 0x3f803f80')
    for e in range(2):
        for i in range(1, 4): k(f'v_mov_b32 v{V_BX+4*e+i}, 0')
def side_loads(k, vm):
    L, T0 = V_L, V_A0
    k(f's_lshl_b32 s{T}, s{S_RB}, 7'); k(f's_lshl_b32 s{T+1}, s{S_CB}, 3'); k(f's_add_u32 s{T}, s{T}, s{T+1}')
    k(f's_lshl_b32 s{T+1}, s{S_WV}, 1'); k(f's_add_u32 s{S_A}, s{T}, s{T+1}')
    k(f's_lshl_b32 s{T}, s{S_A}, 10'); k(f'v_lshlrev_b32 v{T0}, 4, v{L}')
    for e in range(2):
        vm.issue(f'buffer_load_dwordx4 v[{V_SR+4*e}:{V_SR+4*e+3}], v{T0}, s[{S_X}:{S_X+3}], s{T} offen offset:{e*1024}', 'srow')
    k(f's_lshl_b32 s{T}, s{S_WV}, 9'); k(f's_add_u32 s{T}, s{T}, s{S_K2}'); k(f's_mul_i32 s{T}, s{T}, 514')
    k(f's_lshl_b32 s{T+1}, s{S_CBLK}, 7'); k(f's_add_u32 s{T}, s{T}, s{T+1}'); k(f's_add_u32 s{T}, s{T}, 2')
    k(f'v_lshrrev_b32 v{V_A1}, 3, v{L}'); k(f'v_mul_u32_u24 v{V_A1}, {64*514}, v{V_A1}'); k(f'v_and_b32 v{V_A2}, 7, v{L}'); k(f'v_lshl_add_u32 v{V_A1}, v{V_A2}, 4, v{V_A1}')
    vm.issue(f'buffer_load_dwordx4 v[{V_WTD}:{V_WTD+3}], v{V_A1}, s[{S_WR}:{S_WR+3}], s{T} offen', 'wtl')
    vm.issue(f'buffer_load_dwordx4 v[{V_WTD+4}:{V_WTD+7}], v{V_A1}, s[{S_WI}:{S_WI+3}], s{T} offen', 'wtl')
def stats_code(k, vm):
    X = [192, 200]; S0, S1, Q0, Q1, A = 208, 209, 210, 211, 212
    vm.wait('srow')
    for i in range(4):
        for e in range(2):
            k(f'v_lshlrev_b32 v{X[e]+2*i}, 16, v{V_SR+4*e+i}'); k(f'v_and_b32 v{X[e]+2*i+1}, 0xffff0000, v{V_SR+4*e+i}')
    S = [S0, S1]; Q = [Q0, Q1]
    for e in range(2): k(f'v_add_f32 v{S[e]}, v{X[e]}, v{X[e]+1}'); k(f'v_mul_f32 v{Q[e]}, v{X[e]}, v{X[e]}')
    for e in range(2): k(f'v_fma_f32 v{Q[e]}, v{X[e]+1}, v{X[e]+1}, v{Q[e]}')
    for i in range(2, 8):
        for e in range(2): k(f'v_add_f32 v{S[e]}, v{S[e]}, v{X[e]+i}'); k(f'v_fma_f32 v{Q[e]}, v{X[e]+i}, v{X[e]+i}, v{Q[e]}')
    k('s_nop 1')
    k(f'v_permlane32_swap_b32 v{S0}, v{S1}'); k(f'v_permlane32_swap_b32 v{Q0}, v{Q1}'); k('s_nop 0')
    k(f'v_add_f32 v{S0}, v{S0}, v{S1}'); k(f'v_add_f32 v{Q0}, v{Q0}, v{Q1}'); k('s_nop 1')
    k(f'v_permlane16_swap_b32 v{S0}, v{Q0}'); k('s_nop 1')
    k(f'v_add_f32 v{S0}, v{S0}, v{Q0}')
    for r in (8, 4, 2, 1):
        k('s_nop 1'); k(f'v_add_f32_dpp v{S0}, v{S0}, v{S0} row_ror:{r} row_mask:0xf bank_mask:0xf')
    k(f'v_mov_b32 v{Q0}, v{S0}'); k('s_nop 1')
    k(f'v_permlane16_swap_b32 v{S0}, v{Q0}'); k('s_nop 1')
    k(f'v_mul_f32 v{S0}, 0x3b000000, v{S0}'); k(f'v_mul_f32 v{Q0}, 0x3b000000, v{Q0}')
    k(f'v_fma_f32 v{Q0}, -v{S0}, v{S0}, v{Q0}'); k(f'v_max_f32 v{Q0}, 0, v{Q0}')
    k(f'v_cvt_pk_bf16_f32 v{S0}, v{S0}, v{Q0}')
    k(f'v_and_b32 v{Q0}, 0xffff0000, v{S0}'); k(f'v_add_f32 v{Q0}, 0x3727c5ac, v{Q0}')
    k(f'v_cvt_pk_bf16_f32 v{Q0}, v{Q0}, v{Q0}'); k(f'v_and_b32 v{Q0}, 0xffff0000, v{Q0}')
    k(f'v_sqrt_f32 v{Q0}, v{Q0}'); k(f'v_mov_b32 v{A}, 0xffff')
    k(f'v_cvt_pk_bf16_f32 v{Q0}, v{Q0}, v{Q0}')
    k(f'v_bfi_b32 v{S1}, v{A}, v{S0}, v{Q0}'); k(f'v_mov_b32 v{Q0}, s{S_NON}')
    k(f'v_and_b32 v{A}, 31, v{V_L}'); k(f'v_cmp_eq_u32 vcc, 0, v{A}'); k(f'v_lshrrev_b32 v{A}, 2, v{V_L}'); k(f'v_mov_b32 v{A+1}, 0x7fffffff')
    k(f's_lshl_b32 s{S_B}, s{S_A}, 3'); k(f'v_cndmask_b32 v{A}, v{A+1}, v{A}, vcc'); k(f's_add_u32 s{S_B}, s{S_B}, {WS_ST}')
    k(f'v_mov_b32 v{S0}, v{S1}'); k(f'v_mov_b32 v{S1}, v{Q0}')
    vm.issue(f'buffer_store_dwordx2 v[{S0}:{S1}], v{A}, s[{S_WS}:{S_WS+3}], s{S_B} offen sc1', 'stst')
def wt_code(k, vm):
    L = V_L; O = V_WTD + 8
    k(f'v_and_b32 v{V_A0}, 7, v{L}'); k(f'v_lshrrev_b32 v{V_A1}, 3, v{L}')
    k(f's_lshl_b32 s{S_B}, s{S_WV}, 1'); k(f'v_lshrrev_b32 v{V_A2}, 2, v{V_A1}'); k(f'v_add_u32 v{V_A2}, s{S_B}, v{V_A2}')
    k(f'v_xor_b32 v{V_A2}, v{V_A2}, v{V_A0}'); k(f'v_lshlrev_b32 v{V_A2}, 4, v{V_A2}')
    k(f'v_and_b32 v{V_A1}, 3, v{V_A1}'); k(f'v_lshl_add_u32 v{V_A2}, v{V_A1}, 2, v{V_A2}')
    k(f'v_mul_u32_u24 v{V_A0}, {8*144}, v{V_A0}'); k(f'v_add_u32 v{V_A2}, v{V_A2}, v{V_A0}'); k(f'v_add_u32 v{V_A2}, {L_WTB}, v{V_A2}')
    k(f's_mov_b32 s{S_B}, 0x05040100'); k(f's_mov_b32 s{S_C_}, 0x07060302')
    vm.wait('wtl')
    for j in range(4):
        k(f'v_perm_b32 v{O+2*j}, v{V_WTD+4+j}, v{V_WTD+j}, s{S_B}'); k(f'v_perm_b32 v{O+2*j+1}, v{V_WTD+4+j}, v{V_WTD+j}, s{S_C_}')
    for i in range(8): k(f'ds_write_b32 v{V_A2}, v{O+i} offset:{i*144}')
    k(f'v_lshrrev_b32 v{V_A0}, 3, v{L}'); k(f's_lshl_b32 s{S_B}, s{S_WV}, 4'); k(f'v_add_u32 v{V_A0}, s{S_B}, v{V_A0}')
    k(f'v_and_b32 v{V_A1}, 7, v{L}'); k(f's_lshl_b32 s{S_C_}, s{S_WV}, 1')
    k(f'v_xor_b32 v{V_A2}, s{S_C_}, v{V_A1}'); k(f'v_lshlrev_b32 v{V_A2}, 4, v{V_A2}')
    k(f'v_mul_u32_u24 v{V_A3}, 144, v{V_A0}'); k(f'v_add_u32 v{V_A3}, {L_WTB}, v{V_A3}'); k(f'v_add_u32 v{V_STG}, v{V_A3}, v{V_A2}')
    k(f'v_xor_b32 v{V_A2}, 16, v{V_A2}'); k(f'v_add_u32 v{V_STG+1}, v{V_A3}, v{V_A2}')
    k(f'v_mul_u32_u24 v{V_A0}, {WSTR}, v{V_A0}'); k(f'v_lshl_add_u32 v{V_A0}, v{V_A1}, 4, v{V_A0}'); k(f'v_add_u32 v{V_A1}, {8*WSTR}, v{V_A0}')
    k(f's_mul_i32 s{S_B}, s{S_CBLK}, {64*WSTR}'); k(f's_lshl_b32 s{S_C_}, s{S_K2}, 7'); k(f's_add_u32 s{S_B}, s{S_B}, s{S_C_}'); k(f's_add_u32 s{S_B}, s{S_B}, {WS_WT}')
    k('s_waitcnt lgkmcnt(0)'); k('s_barrier')
    k(f'ds_read_b128 v[{V_WTD}:{V_WTD+3}], v{V_STG}'); k(f'ds_read_b128 v[{V_WTD+4}:{V_WTD+7}], v{V_STG+1} offset:{8*144}')
    k('s_waitcnt lgkmcnt(0)')
    vm.issue(f'buffer_store_dwordx4 v[{V_WTD}:{V_WTD+3}], v{V_A0}, s[{S_WS}:{S_WS+3}], s{S_B} offen sc1', 'wtst')
    vm.issue(f'buffer_store_dwordx4 v[{V_WTD+4}:{V_WTD+7}], v{V_A1}, s[{S_WS}:{S_WS+3}], s{S_B} offen sc1', 'wtst')
class LG:
    def __init__(self, k): self.k = k; self.q = []; self.ever = set()
    def issue(self, text, tag=None): self.k(text); self.q.append(tag); self.ever.add(tag)
    def wait(self, tag):
        idx = [i for i, t in enumerate(self.q) if t == tag]
        if not idx: return
        n = len(self.q) - 1 - idx[-1]
        self.k(f's_waitcnt lgkmcnt({min(n, 15)})')
        self.q = self.q[idx[-1]+1:] if n <= 15 else self.q[len(self.q)-15:]
    def drain(self): self.k('s_waitcnt lgkmcnt(0)'); self.q = []
class Sched2:
    def __init__(self, k, vm, lg): self.k = k; self.vm = vm; self.lg = lg; self.q = []; self.lo = []
    def add(self, items, lo=False): (self.lo if lo else self.q).extend(items)
    def emit(self, e):
        if isinstance(e, tuple):
            if e[0] == 'vm': self.vm.issue(e[1], e[2]); return 1
            if e[0] == 'ds': self.lg.issue(e[1], e[2] if len(e) > 2 else None); return 1
            if e[0] == 'call': e[1](); return e[2] if len(e) > 2 else 1
            if e[0] == 'grp':
                return sum(self.emit(x) for x in e[1])
        self.k(e); return 1
    def pop(self, budget):
        c = 0
        while c < budget and (self.q or self.lo):
            c += self.emit((self.q or self.lo).pop(0))
        return c
    def flush(self):
        while self.q or self.lo: self.emit((self.q or self.lo).pop(0))
def ffn_unit(p, t, e):
    a = acc(p, t, e); E = ET
    out = []
    for half in range(2):
        for r in range(4): out.append(f'v_mul_f32 v{E+r}, v{a+4*half+r}, v{V_C1+e}')
        for r in range(4): out.append(f'v_exp_f32 v{E+r}, v{E+r}')
        for r in range(4): out.append(f'v_mul_f32 v{a+4*half+r}, v{a+4*half+r}, v{a+8+4*half+r}')
        for r in range(4): out.append(f'v_fma_f32 v{E+r}, v{E+r}, v{V_C2+e}, v{V_C2+e}')
        for r in range(4): out.append(f'v_rcp_f32 v{E+r}, v{E+r}')
        if half == 0:
            out.append('s_nop 0')
        else:
            out.append(f's_add_u32 s{S_EP}, s{S_HO}, {(12*p + t)*1024 + e*112*1024}')
        for r in range(4): out.append(f'v_mul_f32 v{a+4*half+r}, v{a+4*half+r}, v{E+r}')
        out.append(f'v_cvt_pk_bf16_f32 v{E+4+2*half}, v{a+4*half}, v{a+4*half+1}')
        out.append(f'v_cvt_pk_bf16_f32 v{E+5+2*half}, v{a+4*half+2}, v{a+4*half+3}')
    out.append(('vm', f'buffer_store_dwordx4 v[{E+4}:{E+7}], v{V_HO}, s[{S_WS}:{S_WS+3}], s{S_EP} offen sc1', f'hst{p}'))
    return out
def p1_body(k, isB, st):
    nm = 'B' if isB else 'A'
    vm = VM(k); lg = LG(k); sc = Sched2(k, vm, lg)
    L = V_L
    def dma_group(i):
        p, s_ = i >> 3, i & 7; slot = i & 3
        ch = []
        pre = [f's_add_u32 s{S_ST}, s{S_ROT}, {s_}', f's_and_b32 s{S_ST}, s{S_ST}, 7']
        if i < 8:
            pre += [f's_lshl_b32 s{S_SX}, s{S_ST}, 7', f's_add_u32 m0, s{S_MX}, {L_X + slot*16384}', f's_add_u32 s{S_SX}, s{S_XO}, s{S_SX}']
            for e in range(4):
                ch.append(('grp', pre + [('vm', f'buffer_load_dwordx4 v{V_XD+e}, s[{S_X}:{S_X+3}], s{S_SX} offen offset:{e*1024} lds', ('st', i))])); pre = []
        if isB and p == 0:
            pre += [f's_lshl_b32 s{S_SW}, s{S_ST}, 14', f's_add_u32 m0, s{S_MX}, {L_W + slot*16384}', f's_add_u32 s{S_SW}, s{S_FO}, s{S_SW}']
            for e in range(4):
                ch.append(('grp', pre + [('vm', f'buffer_load_dwordx4 v{V_FD}, s[{S_TAB}:{S_TAB+3}], s{S_SW} offen offset:{e*1024} lds', ('st', i))])); pre = []
        else:
            pre += [f's_mul_i32 s{S_SW}, s{S_ST}, {64*3584}', f's_add_u32 m0, s{S_MW1}, {slot*16384}', f's_add_u32 s{S_SW}, s{S_WO0 if p == 0 else S_WO1}, s{S_SW}']
            for e in range(2):
                ch.append(('grp', pre + [('vm', f'buffer_load_dwordx4 v{V_W1D+e}, s[{S_W1}:{S_W1+3}], s{S_SW} offen offset:{e*1024} lds', ('st', i))])); pre = []
            pre = [f's_add_u32 m0, s{S_MW1}, {slot*16384 + 8192}', 's_nop 0']
            for e in range(2):
                ch.append(('grp', pre + [('vm', f'buffer_load_dwordx4 v{V_W3D+e}, s[{S_W3}:{S_W3+3}], s{S_SW} offen offset:{e*1024} lds', ('st', i))])); pre = []
        return ch
    def reads(n):
        i, ks = n >> 2, n & 3
        p = i >> 3; slot = i & 3; b0 = AF + 8*(n % 3)
        out = []
        if p == 0:
            kk = 4*i + ks
            for e in range(2):
                a = xf(e, kk)
                out.append(('ds', f'ds_read_b128 a[{a}:{a+3}], v{V_XA+ks} offset:{slot*16384 + e*4096}', ('fr', n)))
        for t in range(2):
            b = b0 + 4*t
            if isB and p == 0:
                out.append(('ds', f'ds_read_b128 v[{b}:{b+3}], v{V_FA} offset:{slot*16384 + (ks*4+t)*1024}', ('fr', n)))
            else:
                for part in range(2):
                    out.append(('ds', f'ds_read_b64_tr_b16 v[{b+2*part}:{b+2*part+1}], v{V_WA+t} offset:{slot*16384 + (16*ks+4*part)*128}', ('fr', n)))
        return out
    srd(k, S_WR, 66, 67, 2048*257*2); srd(k, S_WI, 68, 69, 2048*257*2)
    if st: st.stamp('karg')
    for x in dma_group(0): sc.emit(x)
    if st and 'fine' in OPT: st.stamp('iss0')
    side_loads(k, vm)
    if st and 'fine' in OPT: st.stamp('isss')
    if 'late1' not in OPT:
        for x in dma_group(1): sc.emit(x)
    if st: st.stamp('iss01')
    prologue2(k)
    k('s_waitcnt lgkmcnt(0)')
    k(f's_mul_i32 s{S_NON}, s{S_NON}, 0x19660D'); k(f's_add_u32 s{S_NON}, s{S_NON}, 0x3C6EF35F')
    if st: st.stamp('setup')
    stats_code(k, vm)
    if st and 'fine' in OPT: st.stamp('stats')
    if 'late1' in OPT:
        for x in dma_group(1): sc.emit(x)
    for x in dma_group(2): sc.emit(x)
    wt_code(k, vm)
    if st: st.stamp('side')
    for x in dma_group(3): sc.emit(x)
    vm.wait(('st', 0)); k('s_barrier')
    if st: st.stamp('st0')
    for x in reads(0) + reads(1): sc.emit(x)
    ev = {}
    evlo = {}
    def at(n, items, lo=False): (evlo if lo else ev).setdefault(n, []).extend(items)
    def flag_store(off_items, tag):
        lab = f'L_fl_{nm}_{tag}'
        return ('grp', [f's_cmp_lg_u32 s{S_WV}, 0', f's_cbranch_scc1 {lab}'] + off_items +
                [f'v_mov_b32 v{V_SR}, s{S_NON}',
                 ('call', lambda: k(f'buffer_store_dword v{V_SR}, v{V_L0}, s[{S_WS}:{S_WS+3}], s{S_F0} offen sc1')), lab + ':'])
    bar_pre = {}
    bar_post = {}
    bar_pre[6] = ['wtst']
    bar_post[6] = [flag_store([f's_lshl_b32 s{S_F0}, s{S_CBLK}, 8', f's_lshl_b32 s{S_F1}, s{S_K2}, 2', f's_add_u32 s{S_F0}, s{S_F0}, s{S_F1}', f's_add_u32 s{S_F0}, s{S_F0}, {WS_WTF}'], 'wt')]
    CT = ET + 8
    cs_at = {}; direct = {}
    def cs_store(p, lab):
        return ('grp', [f's_cmp_eq_u32 s{S_D}, 0', f's_cbranch_scc1 {lab}',
                        f's_lshl_b32 s{S_B}, s{S_CB}, 3', f's_lshl_b32 s{S_C_}, s{S_WC}, 1', f's_add_u32 s{S_B}, s{S_B}, s{S_C_}', f's_add_u32 s{S_B}, s{S_B}, s{S_WR_}',
                        f's_add_u32 s{S_B}, s{S_B}, {4*p}', f's_lshl_b32 s{S_B}, s{S_B}, 3', f's_add_u32 s{S_B}, s{S_B}, s{S_ROT}', f's_lshl_b32 s{S_B}, s{S_B}, 8', f's_add_u32 s{S_B}, s{S_B}, {WS_CS}',
                        f'v_mov_b32 v{CT+1}, s{S_NON}', f'v_lshlrev_b32 v{V_A0}, 3, v{L}', f'v_cmp_gt_u32 vcc, 32, v{L}', f'v_mov_b32 v{V_A1}, 0x7fffffff', 's_nop 0',
                        f'v_cndmask_b32 v{V_A0}, v{V_A1}, v{V_A0}, vcc',
                        ('call', lambda: k(f'buffer_store_dwordx2 v[{CT}:{CT+1}], v{V_A0}, s[{S_WS}:{S_WS+3}], s{S_B} offen sc1')), lab + ':'])
    if not isB:
        direct.setdefault(0, []).extend([f's_add_u32 s{S_D}, s{S_WR_}, 1', f's_cmp_eq_u32 s{S_PAR}, 0', f's_cselect_b32 s{S_D}, s{S_D}, 0'])
        for ks in range(4):
            b0 = AF + 8*(ks % 3); g = []
            for t in range(2):
                lab = f'L_cs_{nm}_{ks}_{t}'
                g += [f's_cmp_eq_u32 s{S_D}, {1+t}', f's_cbranch_scc0 {lab}',
                      f'v_mfma_f32_32x32x16_bf16 v[{CT}:{CT+15}], v[{V_ONE}:{V_ONE+3}], v[{b0+4*t}:{b0+4*t+3}], ' + ('0' if ks == 0 else f'v[{CT}:{CT+15}]'), lab + ':']
            cs_at.setdefault(ks, []).append(('grp', g))
        at(6, [cs_store(0, f'L_csst_{nm}_0')])
    lab = f'L_cs1d_{nm}'
    g = [f's_cmp_eq_u32 s{S_PAR}, 0', f's_cbranch_scc1 {lab}', f's_mul_i32 s{S_B}, s{S_ROT}, {64*3584}', f's_add_u32 s{S_B}, s{S_B}, s{S_WO1}',
         f's_lshl_b32 s{S_C_}, s{S_WV}, 11', f's_add_u32 m0, s{S_C_}, {L_CSW}', 's_nop 0']
    for e in range(2): g.append(('call', lambda e=e: k(f'buffer_load_dwordx4 v{V_W1D+e}, s[{S_W1}:{S_W1+3}], s{S_B} offen offset:{e*1024} lds')))
    g += [f's_add_u32 m0, s{S_C_}, {L_CSW + 8192}', 's_nop 0']
    for e in range(2): g.append(('call', lambda e=e: k(f'buffer_load_dwordx4 v{V_W3D+e}, s[{S_W3}:{S_W3+3}], s{S_B} offen offset:{e*1024} lds')))
    g.append(lab + ':')
    pre_dma4 = [('grp', g)]
    lab = f'L_cs1c_{nm}'
    CF = V_CSG
    g = [f's_cmp_eq_u32 s{S_PAR}, 0', f's_cselect_b32 s{S_D}, 0, 1', f's_cbranch_scc1 {lab}',
         f'v_mov_b32 v{V_A0}, v{V_WA}', f's_cmp_eq_u32 s{S_WR_}, 0', f's_cbranch_scc1 {lab}a', f'v_mov_b32 v{V_A0}, v{V_WA+1}', lab + 'a:',
         f'v_add_u32 v{V_A0}, {L_CSW - L_W}, v{V_A0}']
    for ks in range(4):
        b = CF + 4*(ks & 1)
        for part in range(2):
            g.append(f'ds_read_b64_tr_b16 v[{b+2*part}:{b+2*part+1}], v{V_A0} offset:{(16*ks+4*part)*128}')
        if ks & 1:
            g.append('s_waitcnt lgkmcnt(0)')
            for kk_ in (ks - 1, ks):
                b2 = CF + 4*(kk_ & 1)
                g.append(f'v_mfma_f32_32x32x16_bf16 v[{CT}:{CT+15}], v[{V_ONE}:{V_ONE+3}], v[{b2}:{b2+3}], ' + ('0' if kk_ == 0 else f'v[{CT}:{CT+15}]'))
    g.append(lab + ':')
    at(14, [('grp', g)])
    at(18, [cs_store(1, f'L_csst_{nm}_1')])
    if 'notouch' not in OPT:
        for j in range(7):
            lab = f'L_tw_{nm}_{j}'
            g = [f's_cmp_lg_u32 s{S_WV}, {j & 3}', f's_cbranch_scc1 {lab}', f'v_lshlrev_b32 v{V_TCH+1}, 7, v{L}', f's_lshr_b32 s{S_F0}, s2, 3',
                 f's_mul_i32 s{S_F0}, s{S_F0}, {7*8192}', f's_add_u32 s{S_F0}, s{S_F0}, {j*8192}',
                 ('call', lambda: k(f'buffer_load_dword v0, v{V_TCH+1}, s[{S_W2}:{S_W2+3}], s{S_F0} offen')), lab + ':']
            at(TOUCH_AT + TOUCH_STEP*j, [('grp', g)])
        for wi, srd_ in ((0, S_W1), (1, S_W3)):
            lab = f'L_tp_{nm}_{wi}'
            g = [f's_cmp_lg_u32 s{S_WV}, {wi}', f's_cbranch_scc1 {lab}', f's_and_b32 s{S_F0}, s{S_RB}, 7', f's_lshl_b32 s{S_F0}, s{S_F0}, 6',
                 f'v_add_u32 v{V_TCH+1}, s{S_F0}, v{L}', f'v_mul_u32_u24 v{V_TCH+1}, 3584, v{V_TCH+1}',
                 ('call', lambda srd_=srd_: k(f'buffer_load_dword v0, v{V_TCH+1}, s[{srd_}:{srd_+3}], s{S_WO1} offen')), lab + ':']
            at(TOUCH1_AT, [('grp', g)])
        lab = f'L_tch_{nm}'
        g = [f's_cmp_lg_u32 s{S_WV}, 3', f's_cbranch_scc1 {lab}b', f'v_lshlrev_b32 v{V_TCH+1}, 7, v{L}', f's_lshr_b32 s{S_F0}, s2, 3',
             f's_min_u32 s{S_F0}, s{S_F0}, 6', f's_lshl_b32 s{S_F0}, s{S_F0}, 13', f's_add_u32 s{S_F1}, s{S_F0}, {TAB_E64}',
             ('call', lambda: k(f'buffer_load_dword v0, v{V_TCH+1}, s[{S_TAB}:{S_TAB+3}], s{S_F1} offen')),
             f's_getpc_b64 s[{S_CD}:{S_CD+1}]', f'{lab}pc:', f's_add_u32 s{S_CD}, s{S_CD}, L_common-{lab}pc', f's_addc_u32 s{S_CD+1}, s{S_CD+1}, 0',
             f's_mov_b32 s{S_CD+2}, L_codeend-L_common', f's_mov_b32 s{S_CD+3}, 0x20000', f's_min_u32 s{S_F0}, s{S_F0}, 8192',
             ('call', lambda: k(f'buffer_load_dword v0, v{V_TCH+1}, s[{S_CD}:{S_CD+3}], s{S_F0} offen')), lab + 'b:']
        at(15, [('grp', g)])
    stl = [f'buffer_load_dwordx2 v[{V_STG+2*e}:{V_STG+2*e+1}], v{V_A2+e}, s[{S_WS}:{S_WS+3}], s{S_C_} offen sc1' for e in range(2)]
    staddr = [f'v_and_b32 v{V_A0}, 31, v{L}',
              f'v_and_b32 v{V_A1}, 3, v{V_A0}', f'v_lshlrev_b32 v{V_A2}, 8, v{V_A1}',
              f'v_lshrrev_b32 v{V_A1}, 3, v{V_A0}', f'v_lshl_add_u32 v{V_A2}, v{V_A1}, 4, v{V_A2}',
              f'v_bfe_u32 v{V_A1}, v{V_A0}, 2, 1', f'v_lshl_add_u32 v{V_A2}, v{V_A1}, 3, v{V_A2}',
              f's_lshl_b32 s{S_C_}, s{S_WR_}, 7', f'v_add_u32 v{V_A2}, s{S_C_}, v{V_A2}',
              f'v_add_u32 v{V_A3}, 64, v{V_A2}',
              f's_lshl_b32 s{S_C_}, s{S_RB}, 10', f's_add_u32 s{S_C_}, s{S_C_}, {WS_ST}']
    at(9, staddr + [('vm', l, 'stg') for l in stl])
    def st_check():
        vm.wait('stg')
        tag_check(k, f'st{nm}', [V_STG+1, V_STG+3], staddr + stl)
    stc = [('call', st_check, 8)]
    for e in range(2):
        d = V_STG + 2*e
        stc += [f'v_and_b32 v{d+1}, 0xffff0000, v{d}',
                f'v_and_b32 v{d}, 0xffff, v{d}', f'v_xor_b32 v{d}, 0x8000, v{d}', f'v_lshl_or_b32 v{d}, v{d}, 16, v{d}',
                f'v_mul_f32 v{V_C2+e}, v{d+1}, v{d+1}', f'v_rcp_f32 v{d+1}, v{d+1}', f'v_cmp_gt_u32 vcc, 32, v{L}', 's_nop 0',
                f'v_mul_f32 v{V_C1+e}, 0xbfb8aa3b, v{d+1}', f'v_cndmask_b32 v{V_BX+4*e}, 0, v{d}, vcc']
        if isB:
            stc += [f'v_and_b32 v{V_A0}, 31, v{L}', f'v_lshlrev_b32 v{V_A0}, 2, v{V_A0}', f's_lshl_b32 s{S_C_}, s{S_WR_}, 8', f's_add_u32 s{S_C_}, s{S_C_}, {L_RS + 128*e}',
                    f'v_add_u32 v{V_A0}, s{S_C_}, v{V_A0}', ('ds', f'ds_write_b32 v{V_A0}, v{d+1}')]
    at(18, stc)
    def cs_cons(p):
        if isB and p == 0: return
        n0 = 32*p
        addr = [f'v_and_b32 v{V_A0}, 31, v{L}', f'v_lshlrev_b32 v{V_A0}, 3, v{V_A0}', f'v_lshrrev_b32 v{V_A1}, 5, v{L}', f'v_lshl_add_u32 v{V_A0}, v{V_A1}, 10, v{V_A0}',
                f's_lshl_b32 s{S_B}, s{S_CB}, 3', f's_lshl_b32 s{S_C_}, s{S_WC}, 1', f's_add_u32 s{S_B}, s{S_B}, s{S_C_}', f's_add_u32 s{S_B}, s{S_B}, s{S_WR_}',
                f's_add_u32 s{S_B}, s{S_B}, {4*p}', f's_lshl_b32 s{S_B}, s{S_B}, 11', f's_add_u32 s{S_B}, s{S_B}, {WS_CS}']
        lds = [f'buffer_load_dwordx2 v[{V_CSG+2*i}:{V_CSG+2*i+1}], v{V_A0}, s[{S_WS}:{S_WS+3}], s{S_B} offen offset:{i*256} sc1' for i in range(4)]
        at((14 if p == 0 else 34), addr + [('vm', l, f'csg{p}') for l in lds])
        def chk():
            vm.wait(f'csg{p}')
            tag_check(k, f'cs{nm}{p}', [V_CSG+1, V_CSG+3, V_CSG+5, V_CSG+7], addr + lds)
        g = V_CSG
        at((26 if p == 0 else 46), [('call', chk, 12),
                     f'v_add_f32 v{g}, v{g}, v{g+2}', f'v_add_f32 v{g+4}, v{g+4}, v{g+6}', f'v_add_f32 v{g}, v{g}, v{g+4}', f'v_mov_b32 v{g+1}, v{g}', 's_nop 1',
                     f'v_permlane32_swap_b32 v{g}, v{g+1}', 's_nop 0', f'v_add_f32 v{g}, v{g}, v{g+1}',
                     f'v_cvt_pk_bf16_f32 v{g+1}, v{g}, v{g}', f'v_and_b32 v{g+1}, 0xffff0000, v{g+1}', f'v_sub_f32 v{g+2}, v{g}, v{g+1}',
                     f'v_cvt_pk_bf16_f32 v{g+4}, v{g+1}, v{g+2}', f'v_cmp_gt_u32 vcc, 32, v{L}', f'v_mov_b32 v{g+5}, 0', f'v_mov_b32 v{g+6}, 0',
                     f'v_cndmask_b32 v{g+4}, 0, v{g+4}, vcc', f'v_mov_b32 v{g+7}, 0',
                     f's_lshl_b32 s{S_C_}, s{S_WC}, 1', f's_add_u32 s{S_C_}, s{S_C_}, s{S_WR_}', f's_lshl_b32 s{S_C_}, s{S_C_}, 10', f's_add_u32 s{S_C_}, s{S_C_}, {L_AX}',
                     f'v_lshl_add_u32 v{V_A0}, v{L}, 4, s{S_C_}', ('ds', f'ds_write_b128 v{V_A0}, v[{g+4}:{g+7}]', f'axw{p}')])
        nb = 30 if p == 0 else 50
        bar_lg.setdefault(nb, []).append(f'axw{p}')
        AX = V_WTD
        rd = [f's_lshl_b32 s{S_C_}, s{S_WC}, 11', f's_add_u32 s{S_C_}, s{S_C_}, {L_AX}', f'v_lshl_add_u32 v{V_A0}, v{L}, 4, s{S_C_}',
              ('ds', f'ds_read_b128 v[{AX}:{AX+3}], v{V_A0}'), ('ds', f'ds_read_b128 v[{AX+4}:{AX+7}], v{V_A0} offset:1024', f'axr{p}')]
        at(nb, rd)
        mm = [('call', lambda: lg.wait(f'axr{p}'))]
        for t in range(2):
            for e in range(2):
                a = acc(p, t, e)
                mm.append(f'v_mfma_f32_32x32x16_bf16 v[{a}:{a+15}], v[{AX+4*t}:{AX+4*t+3}], v[{V_BX+4*e}:{V_BX+4*e+3}], v[{a}:{a+15}]')
        at(nb + 2, mm)
    bar_lg = {}
    cs_cons(0); cs_cons(1)
    if not isB:
        items = []
        for t in range(2):
            for e in range(2): items += ffn_unit(0, t, e)
        at(35, items, lo=True)
        bar_pre[62] = ['hst0']
        bar_post[62] = [flag_store([f's_lshl_b32 s{S_F0}, s{S_RB}, 7', f's_lshl_b32 s{S_F1}, s{S_CB}, 2', f's_add_u32 s{S_F0}, s{S_F0}, s{S_F1}', f's_add_u32 s{S_F0}, s{S_F0}, {WS_HF}'], 'h0')]
    else:
        items = []
        RS = V_WTD
        for e in range(2):
            items += [f'v_lshrrev_b32 v{V_EA}, 5, v{L}', f'v_lshlrev_b32 v{V_EA}, 4, v{V_EA}', f's_lshl_b32 s{S_EP}, s{S_WR_}, 8', f's_add_u32 s{S_EP}, s{S_EP}, {L_RS + 128*e}',
                      f'v_add_u32 v{V_EA}, s{S_EP}, v{V_EA}']
            for q in range(4): items.append(('ds', f'ds_read_b128 v[{RS+4*q}:{RS+4*q+3}], v{V_EA} offset:{q*32}', f'rs{e}'))
            items.append(('call', lambda e=e: lg.wait(f'rs{e}')))
            for t in range(2):
                a = acc(0, t, e)
                for q in range(4):
                    for r in range(4): items.append(f'v_mul_f32 v{a+4*q+r}, v{a+4*q+r}, v{RS+4*q+r}')
                    E = ET + 2*(q & 3)
                    items.append(f'v_cvt_pk_bf16_f32 v{E}, v{a+4*q}, v{a+4*q+1}'); items.append(f'v_cvt_pk_bf16_f32 v{E+1}, v{a+4*q+2}, v{a+4*q+3}')
                    items.append(('ds', f'ds_write_b64 v{V_UTW}, v[{E}:{E+1}] offset:{L_UT + t*16*528 + e*128 + q*32}', 'utw_last' if (e, t, q) == (1, 1, 3) else 'utw'))
        at(33, items, lo=True)
        UTB = 42; UFL = 54
        bar_lg.setdefault(UTB, []).append('utw_last')
        rb = []
        for half in range(2):
            for e in range(4):
                E = ET + 4*e
                rb.append(('ds', f'ds_read_b128 v[{E}:{E+3}], v{V_UTR} offset:{L_UT + (4*half+e)*2*528}', f'utr{half}'))
            rb.append(('call', lambda half=half: lg.wait(f'utr{half}')))
            for e in range(4):
                E = ET + 4*e
                rb.append(f's_add_u32 s{S_EP}, s{S_UO}, {(4*half+e)*2*CSTR}')
                rb.append(('vm', f'buffer_store_dwordx4 v[{E}:{E+3}], v{V_UO}, s[{S_WS}:{S_WS+3}], s{S_EP} offen sc1', 'ust_last' if (half, e) == (1, 3) else 'ust'))
            rb.append('s_nop 0'); rb.append('s_nop 0')
        at(UTB, rb, lo=True)
        bar_pre[UFL] = ['ust_last']
        bar_post[UFL] = [flag_store([f's_lshl_b32 s{S_F0}, s{S_G}, 7', f's_lshl_b32 s{S_F1}, s{S_RB}, 2', f's_add_u32 s{S_F0}, s{S_F0}, s{S_F1}', f's_add_u32 s{S_F0}, s{S_F0}, {WS_UF}'], 'u')]
    NST = 64
    dmaq = []; dstep = [2]; dcnt = [0]
    BARGAP = 1; PF0 = 50 if isB else 46
    pf = tail_prefetch_items()
    for n in range(NST):
        i, ks = n >> 2, n & 3
        p = i >> 3
        mand = []
        dobar = (ks == 2 and i + 1 < 16) or n == 62
        def barrier_now():
            for tg in bar_pre.get(n, []): assert tg in vm.ever, (n, tg)
            if 'hst0' in bar_pre.get(n, []): assert not sc.lo and not sc.q, (n, len(sc.lo), len(sc.q))
            for tg in bar_lg.get(n, []): assert tg in lg.ever, (n, tg)
            vm.wait_many(([('st', i + 1)] if i + 1 < 16 else []) + bar_pre.get(n, []))
            for tg in bar_lg.get(n, []): lg.wait(tg)
            lg.wait(('fr', n + 1))
            if 'nobar' not in OPT: k('s_barrier')
            for x in bar_post.get(n, []): sc.emit(x)
            if n == 2:
                for x in pre_dma4: sc.emit(x)
            if i + 4 < 16 and 'nodma' not in OPT:
                assert not dmaq
                dmaq.extend(dma_group(i + 4)); dstep[0] = 16 // len(dmaq); dcnt[0] = 0
        rd = reads(n + 2) if (n + 2 < NST and 'noreads' not in OPT) else []
        if n in ev and not dobar: sc.add(ev.pop(n))
        if n in evlo and not dobar:
            x_ = evlo.pop(n)
            if 'noepi' not in OPT or isB: sc.add(x_, lo=True)
        for x in direct.get(n, []): k(x)
        lg.wait(('fr', n))
        if st and n in ((33, 39, 42, 43, 44, 46, 47, 50, 54, 58, 59, 62) if 'bts' in OPT else () if 'g2ts' in OPT else (32,) if 'tailts' in OPT else (16, 32, 48) if 'fine' in OPT else (8, 16, 24, 32, 40, 48, 56)): st.stamp(f'n{n}')
        kk = 4*(i & 7) + ks
        b0 = AF + 8*(n % 3)
        mand = rd + mand
        gap = 0
        for t in range(2):
            for e in range(2):
                a = acc(p, t, e); d = f'v[{a}:{a+15}]'; c = '0' if kk == 0 else d
                x = f'a[{xf(e, kk)}:{xf(e, kk)+3}]'; w = f'v[{b0+4*t}:{b0+4*t+3}]'
                if isB and p == 0: k(f'v_mfma_f32_32x32x16_bf16 {d}, {x}, {w}, {c}')
                else: k(f'v_mfma_f32_32x32x16_bf16 {d}, {w}, {x}, {c}')
                used = 0
                if dobar and gap == BARGAP:
                    barrier_now(); used += 3
                    if n in ev: sc.add(ev.pop(n))
                    if n in evlo:
                        x_ = evlo.pop(n)
                        if 'noepi' not in OPT or isB: sc.add(x_, lo=True)
                if not (dobar and gap < BARGAP):
                    g0 = BARGAP if dobar else 0
                    nm_ = (len(mand) + (3 - gap)) // (4 - gap)
                    for _ in range(nm_):
                        used += sc.emit(mand.pop(0))
                if dmaq and dcnt[0] % dstep[0] == 0: used += sc.emit(dmaq.pop(0))
                elif pf and not dmaq and n >= PF0 and (4*n + gap) % 2 == 1 and (len(pf) > 4 or n >= 56): used += sc.emit(pf.pop(0))
                dcnt[0] += 1
                if gap == 3 and n in cs_at:
                    for x_ in cs_at[n]: used += sc.emit(x_)
                sc.pop(max(0, (BUDGET + (2 if (isB and 32 < n < 42) else 1 if (not isB and n > 34) else 0)) - used))
                gap += 1
        assert not mand
    assert not ev and not evlo, (ev.keys(), evlo.keys())
    sc.flush()
    for x in pf: sc.emit(x)
    lg.drain()
    return vm
BUDGET = 4
def remap_temps(items, lo, new, n):
    import re
    def f(s):
        def r1(m):
            v = int(m.group(1)); return f'v{v - lo + new}' if lo <= v < lo + n else m.group(0)
        def r2(m):
            a, b = int(m.group(1)), int(m.group(2))
            return f'v[{a-lo+new}:{b-lo+new}]' if lo <= a < lo + n else m.group(0)
        s = re.sub(r'v\[(\d+):(\d+)\]', r2, s)
        return re.sub(r'\bv(\d+)\b', r1, s)
    out = []
    for e in items:
        if isinstance(e, str): out.append(f(e))
        elif e[0] in ('vm', 'ds'): out.append((e[0], f(e[1])) + tuple(e[2:]))
        else: out.append(e)
    return out
A_E64, A_E32, A_H = 0, 32, 96
NH = 20
V_L16, V_DW, V_PL = 43, 44, 45
V_DW1 = 2
V_L16H = 47
TW, UFR, WT_, D_, T_, B_, WU = 48, 64, 112, 192, 208, 224, 232
V_UA, V_VA, V_YW0, V_YW1, V_YR0, V_YR1, V_P0, V_P1 = 24, 25, 26, 27, 28, 29, 30, 31
V_TW0, V_TW1, V_TV0, V_TV1, V_DV, V_RA, V_OO, V_GP, V_G0, V_G1 = 2, 3, 4, 5, 6, 7, 8, 9, 10, 11
G_D = 12
G_PH = 16
G_TR, G_X, G_T, G_ACC, G_G = 96, 112, 120, 128, 192
S_HB, S_W2B, S_VB, S_LB, S_PA, S_PB, S_VS = 72, 73, 74, 75, 76, 77, 78
S_R2, S_PC = 79, 80
S_WOF, S_W2C, S_HOF = 81, 82, 83
V_DV1 = 40
RING = 18
SL = [16, 17, 5, 6, 7, 0, 1, 2, 3, 4, 8, 9, 10, 11, 12, 13, 14, 15]
def slot_addr(n): return SL[n % RING]*8192
RED_STRIDE = 1056; RED_W = 16*RED_STRIDE
def mf16(d, a, b, c, aa='v', ab='v'):
    return f'v_mfma_f32_16x16x32_bf16 v[{d}:{d+3}], {aa}[{a}:{a+3}], {ab}[{b}:{b+3}], ' + ('0' if c is None else f'v[{c}:{c+3}]')
def flag_store_now(k, off_items, lab):
    k(f's_cmp_lg_u32 s{S_WV}, 0'); k(f's_cbranch_scc1 {lab}')
    for x in off_items: k(x)
    k(f'v_mov_b32 v{V_PL}, s{S_NON}')
    k(f'buffer_store_dword v{V_PL}, v{V_L0}, s[{S_WS}:{S_WS+3}], s{S_F0} offen sc1')
    k.label(lab)
def w2_row(n):
    if n < 12: return S_W2B, (8*(n >> 2) + (n & 3))*16384
    if n < 24: return S_W2B, (8*((n - 12) >> 2) + 4 + (n & 3))*16384
    return S_W2C, (96 + n - 24)*16384
def w2_dma_chunks(n):
    a = slot_addr(n); b, o = w2_row(n)
    return [('grp', [f's_add_u32 m0, s{S_LB}, {a}', f's_add_u32 s{S_WOF}, s{b}, {o}', ('vm', f'buffer_load_dwordx4 v{V_DW}, s[{S_W2}:{S_W2+3}], s{S_WOF} offen lds', ('w', n))]),
            ('grp', [('vm', f'buffer_load_dwordx4 v{V_DW+V_DW1}, s[{S_W2}:{S_W2+3}], s{S_WOF} offen offset:1024 lds', ('w', n))])]
def tail_prefetch_items():
    L = V_L; T0, T1 = V_P0, V_P1
    it = []
    T0, T1 = 46, 47
    pre = [f'v_lshlrev_b32 v{V_L16}, 4, v{L}',
           f'v_lshrrev_b32 v{T0}, 3, v{L}', f'v_lshlrev_b32 v{V_DW}, 10, v{T0}',
           f'v_bfe_u32 v{T0}, v{L}, 4, 1', f'v_bfe_u32 v{T1}, v{L}, 2, 1', f'v_xor_b32 v{T0}, v{T0}, v{T1}',
           f'v_lshl_add_u32 v{V_DW}, v{T0}, 6, v{V_DW}', f'v_and_b32 v{T0}, 3, v{L}', f'v_lshl_add_u32 v{V_DW}, v{T0}, 4, v{V_DW}',
           f'v_add_u32 v{V_DW+V_DW1}, {8192-1024}, v{V_DW}', f'v_add_u32 v{V_L16H}, {112*1024}, v{V_L16}',
           f's_mul_i32 s{S_W2B}, s{S_WV}, {24*16384}', f's_lshl_b32 s{S_PA}, s{S_CB2}, 7', f's_add_u32 s{S_W2B}, s{S_W2B}, s{S_PA}',
           f's_lshl_b32 s{S_W2C}, s{S_WV}, 16', f's_add_u32 s{S_W2C}, s{S_W2C}, s{S_PA}',
           f's_lshl_b32 s{S_LB}, s{S_WV}, 11',
           f's_lshl_b32 s{S_PB}, s{S_WV}, 13', f's_add_u32 s{S_PB}, s{S_PB}, {TAB_E64}']
    for idx in range(8):
        r = A_E64 + 4*idx
        g = pre + ([f's_add_u32 s{S_PB}, s{S_PB}, 4096'] if idx == 4 else [])
        it.append(('grp', g + [('vm', f'buffer_load_dwordx4 a[{r}:{r+3}], v{V_L16}, s[{S_TAB}:{S_TAB+3}], s{S_PB} offen offset:{(idx&3)*1024}', 'pre')])); pre = []
    for i in range(6):
        r = A_E32 + 4*i
        g = [f's_mov_b32 s{S_PB}, {TAB_E32 + (i>>2)*4096}'] if (i & 3) == 0 else []
        it.append(('grp', g + [('vm', f'buffer_load_dwordx4 a[{r}:{r+3}], v{V_L16}, s[{S_TAB}:{S_TAB+3}], s{S_PB} offen offset:{(i&3)*1024}', 'pre')]))
    for n in range(5): it += w2_dma_chunks(n)
    for i in range(4):
        g = [f's_lshl_b32 s{S_PB}, s{S_WV}, 12', f's_add_u32 s{S_PB}, s{S_PB}, {TAB_TW}'] if i == 0 else []
        it.append(('grp', g + [('vm', f'buffer_load_dwordx4 v[{TW+4*i}:{TW+4*i+3}], v{V_L16}, s[{S_TAB}:{S_TAB+3}], s{S_PB} offen offset:{i*1024}', 'tw')]))
    return it
def p2a_poll_lines():
    L = V_L
    return [f's_lshr_b32 s{S_B}, s2, 6', f's_lshl_b32 s{S_C_}, s{S_B}, 7', f's_add_u32 s{S_C_}, s{S_C_}, {WS_UF}',
            f's_lshl_b32 s{S_B}, s{S_B}, 8', f's_add_u32 s{S_B}, s{S_B}, {WS_WTF}',
            f'v_lshlrev_b32 v{V_P0}, 2, v{L}', f'v_and_b32 v{V_P1}, 60, v{V_P0}',
            f'buffer_load_dword v{V_YR0}, v{V_P1}, s[{S_WS}:{S_WS+3}], s{S_C_} offen sc1',
            f'buffer_load_dword v{V_YR1}, v{V_P0}, s[{S_WS}:{S_WS+3}], s{S_B} offen sc1']
class Pacer:
    def __init__(self, k, sc, every): self.k = k; self.sc = sc; self.every = every; self.c = 0; self.q = []
    def __call__(self, s):
        self.k(s); self.tick()
    def tick(self, n=1):
        self.c += n
        if self.c >= self.every and self.q:
            self.c = 0; self.sc.emit(self.q.pop(0))
    def flush(self):
        while self.q: self.sc.emit(self.q.pop(0))
def g2_addr_items():
    L, T0, T1 = V_L, V_G0, V_G1
    o = []
    k = o.append
    k(f's_lshl_b32 s{T}, s{S_RB2}, 2'); k(f's_lshl_b32 s{T+1}, s{S_G2}, 1'); k(f's_add_u32 s{T}, s{T}, s{T+1}')
    k(f's_mul_i32 s{T}, s{T}, 112'); k(f's_mul_i32 s{T+1}, s{S_WV}, 28'); k(f's_add_u32 s{T}, s{T}, s{T+1}')
    k(f's_lshl_b32 s{S_HB}, s{T}, 10'); k(f's_add_u32 s{S_HB}, s{S_HB}, {WS_H}')
    k(f'v_lshrrev_b32 v{T0}, 4, v{L}'); k(f'v_mul_u32_u24 v{V_DV}, {CSTR}, v{T0}')
    k(f'v_and_b32 v{T0}, 1, v{T0}'); k(f'v_lshlrev_b32 v{T0}, 3, v{T0}'); k(f'v_and_b32 v{T1}, 15, v{L}'); k(f'v_xor_b32 v{T0}, v{T0}, v{T1}')
    k(f'v_lshl_add_u32 v{V_DV}, v{T0}, 4, v{V_DV}'); k(f'v_add_u32 v{V_DV1}, {4*CSTR-1024}, v{V_DV}')
    k(f's_mul_i32 s{S_VB}, s{S_WV}, {64*CSTR}'); k(f's_lshl_b32 s{T}, s{S_RB2}, 9'); k(f's_add_u32 s{S_VB}, s{S_VB}, s{T}')
    k(f's_lshl_b32 s{T}, s{S_G2}, 8'); k(f's_add_u32 s{S_VB}, s{S_VB}, s{T}'); k(f's_add_u32 s{S_VB}, s{S_VB}, {WS_V}')
    k(f'v_lshrrev_b32 v{T0}, 5, v{L}'); k(f'v_lshlrev_b32 v{V_TW0}, 9, v{T0}')
    k(f'v_bfe_u32 v{T0}, v{L}, 2, 2'); k(f'v_lshl_add_u32 v{V_TW0}, v{T0}, 7, v{V_TW0}')
    k(f'v_bfe_u32 v{T0}, v{L}, 3, 1'); k(f'v_lshl_add_u32 v{V_TW0}, v{T0}, 6, v{V_TW0}')
    k(f'v_bfe_u32 v{T0}, v{L}, 4, 1'); k(f'v_lshl_add_u32 v{V_TW0}, v{T0}, 5, v{V_TW0}')
    k(f'v_and_b32 v{T0}, 3, v{L}'); k(f'v_lshl_add_u32 v{V_TW0}, v{T0}, 3, v{V_TW0}')
    k(f'v_add_u32 v{V_TW0}, s{S_LB}, v{V_TW0}'); k(f'v_xor_b32 v{V_TW1}, 64, v{V_TW0}')
    k(f'v_lshrrev_b32 v{T0}, 5, v{L}'); k(f'v_lshlrev_b32 v{V_TV0}, 10, v{T0}')
    k(f'v_bfe_u32 v{T0}, v{L}, 3, 1'); k(f'v_lshl_add_u32 v{V_TV0}, v{T0}, 8, v{V_TV0}'); k(f'v_lshl_add_u32 v{V_TV0}, v{T0}, 7, v{V_TV0}')
    k(f'v_bfe_u32 v{T0}, v{L}, 4, 1'); k(f'v_lshl_add_u32 v{V_TV0}, v{T0}, 6, v{V_TV0}')
    k(f'v_and_b32 v{T0}, 3, v{L}'); k(f'v_lshl_add_u32 v{V_TV0}, v{T0}, 4, v{V_TV0}')
    k(f'v_bfe_u32 v{T0}, v{L}, 2, 1'); k(f'v_lshl_add_u32 v{V_TV0}, v{T0}, 3, v{V_TV0}')
    k(f'v_add_u32 v{V_TV0}, s{S_LB}, v{V_TV0}'); k(f'v_xor_b32 v{V_TV1}, 128, v{V_TV0}')
    k(f's_lshr_b32 s{T}, s{S_WV}, 1'); k(f's_and_b32 s{T+1}, s{S_WV}, 1'); k(f's_lshl_b32 s{T+1}, s{T+1}, 4')
    k(f'v_lshrrev_b32 v{T0}, 3, v{L}'); k(f'v_add_u32 v{T0}, s{T+1}, v{T0}')
    k(f'v_and_b32 v{T1}, 7, v{L}')
    k(f'v_mul_u32_u24 v{V_RA}, {RED_STRIDE}, v{T1}'); k(f'v_lshl_add_u32 v{V_RA}, v{T0}, 4, v{V_RA}')
    k(f's_mul_i32 s{T+2}, s{T}, {8*RED_STRIDE}'); k(f'v_add_u32 v{V_RA}, s{T+2}, v{V_RA}')
    k(f'v_lshlrev_b32 v{V_OO}, 4, v{T1}')
    k(f'v_and_b32 v{T1}, 3, v{T0}'); k(f'v_lshl_add_u32 v{V_OO}, v{T1}, 15, v{V_OO}')
    k(f'v_lshrrev_b32 v{T1}, 3, v{T0}'); k(f'v_lshl_add_u32 v{V_OO}, v{T1}, 11, v{V_OO}')
    k(f'v_bfe_u32 v{T1}, v{T0}, 2, 1'); k(f'v_lshl_add_u32 v{V_OO}, v{T1}, 10, v{V_OO}')
    k(f's_lshl_b32 s{T+2}, s{S_G2}, 1'); k(f's_add_u32 s{T+2}, s{T+2}, s{T}'); k(f's_lshl_b32 s{T+2}, s{T+2}, 13')
    k(f's_lshl_b32 s{T+3}, s{S_RB2}, 17'); k(f's_add_u32 s{T+2}, s{T+2}, s{T+3}')
    k(f's_lshl_b32 s{T+3}, s{S_CB2}, 7'); k(f's_add_u32 s{T+2}, s{T+2}, s{T+3}')
    k(f'v_add_u32 v{V_OO}, s{T+2}, v{V_OO}')
    k(f'v_and_b32 v{T0}, 31, v{L}'); k(f's_lshl_b32 s{T}, s{S_CB2}, 6'); k(f'v_add_u32 v{T0}, s{T}, v{T0}')
    k(f'v_cvt_f32_u32 v{G_D}, v{T0}'); k(f'v_add_u32 v{T0}, 32, v{T0}'); k(f'v_cvt_f32_u32 v{G_D+1}, v{T0}')
    k(f'v_lshrrev_b32 v{T1}, 5, v{L}'); k(f'v_lshlrev_b32 v{T1}, 2, v{T1}'); k(f's_lshl_b32 s{T}, s{S_WV}, 6'); k(f's_add_u32 s{T}, s{T}, 1')
    k(f'v_add_u32 v{T1}, s{T}, v{T1}'); k(f'v_cvt_f32_u32 v{T1}, v{T1}')
    for ct in range(2):
        k(f'v_mul_f32 v{G_D+ct}, 0x3b000000, v{G_D+ct}')
        k(f'v_mul_f32 v{G_D+2+ct}, 0x40a00000, v{G_D+ct}')
        k(f'v_mul_f32 v{G_PH+ct}, v{T1}, v{G_D+ct}')
    return o
def g_gen_items():
    o = []
    for c in range(8):
        for j in range(4):
            for ct in range(2):
                t = G_T + 2*ct
                o.append(f'v_cos_f32 v{t}, v{G_PH+ct}'); o.append(f'v_sin_f32 v{t+1}, v{G_PH+ct}')
            for ct in range(2):
                if not (c == 7 and j == 3):
                    o.append(f'v_add_f32 v{G_PH+ct}, v{G_PH+ct}, v{G_D + (2 if j == 3 else 0) + ct}')
            for ct in range(2):
                t = G_T + 2*ct
                o.append(f'v_cvt_pk_bf16_f32 v{G_G + 8*c + 4*ct + j}, v{t}, -v{t+1}')
    return o
def h_chunks(n):
    d = A_H + 8*(n % NH)
    return [('grp', [f's_add_u32 s{S_HOF}, s{S_HB}, {n*1024}', ('vm', f'buffer_load_dwordx4 a[{d}:{d+3}], v{V_L16}, s[{S_WS}:{S_WS+3}], s{S_HOF} offen sc1', ('h', n))]),
            ('grp', [('vm', f'buffer_load_dwordx4 a[{d+4}:{d+7}], v{V_L16H}, s[{S_WS}:{S_WS+3}], s{S_HOF} offen sc1', ('h', n))])]
def v_chunks(n):
    c = n - 28; a = slot_addr(n)
    return [('grp', [f's_add_u32 m0, s{S_LB}, {a}', f's_add_u32 s{S_PA}, s{S_VB}, {8*c*CSTR}',
                     ('vm', f'buffer_load_dwordx4 v{V_DV}, s[{S_WS}:{S_WS+3}], s{S_PA} offen sc1 lds', ('w', n))]),
            ('grp', [('vm', f'buffer_load_dwordx4 v{V_DV1}, s[{S_WS}:{S_WS+3}], s{S_PA} offen offset:1024 sc1 lds', ('w', n))])]
class VQ:
    def __init__(self, sc): self.sc = sc; self.items = []; self.half = None
    def add(self, deadline, chunks): self.items.append((deadline, list(chunks))); self.items.sort(key=lambda x: x[0])
    def pending(self): return len(self.items) + (1 if self.half else 0)
    def one(self, limit=10**9):
        if self.half:
            self.sc.emit(self.half.pop(0))
            if not self.half: self.half = None
            return True
        if self.items and self.items[0][0] <= limit:
            d, ch = self.items.pop(0)
            self.sc.emit(ch.pop(0))
            if ch: self.half = ch
            return True
        return False
    def settle(self):
        while self.half: self.one()
    def force(self, deadline):
        self.settle()
        while self.items and self.items[0][0] <= deadline:
            self.one(); self.settle()
class Pacer2:
    def __init__(self, k, vq, every): self.k = k; self.vq = vq; self.every = every; self.c = 0
    def __call__(self, s): self.k(s); self.tick()
    def tick(self, n=1):
        self.c += n
        if self.c >= self.every:
            if self.vq.one(): self.c = 0
def tail(k, st, ts):
    L = V_L
    vm = VM(k); lg = LG(k); sc = Sched2(k, vm, lg); vq = VQ(sc)
    vm.q = ['pre']; vm.ever.add('pre')
    NF, NS = 28, 36
    T0, T1 = V_G0, V_G1
    def wait_w(n):
        if n < 5: vm.wait('pre')
        else:
            vq.force(n - 1)
            assert ('w', n) in vm.ever, n
            vm.wait(('w', n))
    def wait_h(n):
        vq.force(n)
        assert ('h', n) in vm.ever, n
        vm.wait(('h', n))
    stamp = lambda nm: st.stamp(nm) if st else None
    stamp('mfma_done')
    hf_off = lambda p: [f's_lshl_b32 s{S_F0}, s{S_RB}, 7', f's_lshl_b32 s{S_F1}, s{S_CB}, 2', f's_add_u32 s{S_F0}, s{S_F0}, s{S_F1}', f's_add_u32 s{S_F0}, s{S_F0}, {WS_HF + 64*p}']
    hp = lambda p: [f's_lshl_b32 s{S_B}, s{S_RB2}, 7', f's_add_u32 s{S_B}, s{S_B}, {WS_HF + 64*p}', f'v_lshlrev_b32 v{V_GP}, 2, v{L}',
                    f'v_min_u32 v{V_GP}, {44 if p == 0 else 60}, v{V_GP}',
                    f'buffer_load_dword v{V_G_HP}, v{V_GP}, s[{S_WS}:{S_WS+3}], s{S_B} offen sc1']
    units = [ffn_unit(1, t, e) for t in range(2) for e in range(2)]
    P = Pacer2(k, vq, 12)
    def run_unit(u):
        for x in u:
            if isinstance(x, str): P(x)
            else: sc.emit(x); P.tick()
    pl = p2a_poll_lines()
    for x in pl[:-2]: k(x)
    vm.issue(pl[-2], 'pp'); vm.issue(pl[-1], 'pp')
    ga = g2_addr_items()
    for x in ga[:8]: k(x)
    for n in range(5, 8): vq.add(n - 1, w2_dma_chunks(n))
    run_unit(units[0]); run_unit(units[1])
    vq.settle()
    vm.wait('pp'); tag_check(k, 'p2a', [V_YR0, V_YR1], pl)
    stamp('uf_ok')
    k(f's_mul_i32 s{T}, s2, {CSTR}'); k(f's_lshl_b32 s{T+1}, s{S_WV}, 11'); k(f's_add_u32 s{T+2}, s{T}, s{T+1}')
    k(f's_add_u32 m0, s{T+1}, {L_U}'); k(f's_add_u32 s{T+3}, s{T+2}, {WS_U}')
    for e in range(2):
        vm.issue(f'buffer_load_dwordx4 v{V_L16}, s[{S_WS}:{S_WS+3}], s{T+3} offen offset:{e*1024} sc1 lds', 'u')
    k(f'v_and_b32 v{V_P0}, 15, v{L}'); k(f'v_lshrrev_b32 v{V_P1}, 4, v{L}')
    k(f'v_lshlrev_b32 v{V_VA}, 7, v{V_P0}'); k(f'v_lshl_add_u32 v{V_VA}, v{V_P1}, 4, v{V_VA}')
    k(f's_mul_i32 s{T+2}, s2, {WSTR}'); k(f's_add_u32 s{T+2}, s{T+2}, s{T+1}'); k(f's_add_u32 s{T+3}, s{T+2}, {WS_WT}')
    for mt in range(2):
        vm.issue(f'buffer_load_dwordx4 v[{WT_+4*mt}:{WT_+4*mt+3}], v{V_VA}, s[{S_WS}:{S_WS+3}], s{T+3} offen offset:{mt*64} sc1', 'wt')
    k(f'v_lshlrev_b32 v{V_VA}, 9, v{V_P1}'); k(f'v_lshl_add_u32 v{V_VA}, v{V_P0}, 4, v{V_VA}')
    k(f'v_add_u32 v{V_UA}, {L_U}, v{V_VA}')
    for n in range(8, 14): vq.add(n - 1, w2_dma_chunks(n))
    P.every = 9
    run_unit(units[2]); run_unit(units[3])
    stamp('p1_end')
    vq.settle()
    for x in hp(0)[:-1]: k(x)
    vm.issue(hp(0)[-1], 'hp0')
    P.every = 10
    for x in ga[8:]: P(x)
    for va in (V_TW0, V_TW1, V_TV0, V_TV1): P(f'v_add_u32 v{va+V_HI}, 0x10000, v{va}')
    for va in (V_TW0, V_TW1, V_TV0, V_TV1): P(f'v_add_u32 v{va+V_HI2}, 0x20000, v{va}')
    def reads(n):
        a = slot_addr(n); b = G_TR + 8*(n & 1); o = []
        for t in range(2):
            va = (V_TW0, V_TW1)[t] if n < NF else (V_TV0, V_TV1)[t]
            for part in range(2):
                o.append((va, a + (part*8*128 if n < NF else part*2*256), b + 4*t + 2*part))
        return o
    def emit_read(n, r):
        va, off, b = r
        lg.issue(f'ds_read_b64_tr_b16 v[{b}:{b+1}], v{va + (0, V_HI, V_HI2)[off >> 16]} offset:{off & 0xffff}', ('tr', n))
    gq = []
    def step(n, prefetch_next=True, rate=2):
        rd = []
        if prefetch_next and n + 1 < NS:
            wait_w(n + 1); rd = reads(n + 1)
        if n < NF: wait_h(n)
        lg.wait(('tr', n))
        b = G_TR + 8*(n & 1)
        gap = 0
        for e in range(2):
            for ct in range(2):
                a_ = f'v[{G_ACC+16*(2*e+ct)}:{G_ACC+16*(2*e+ct)+15}]'; c_ = '0' if n == 0 else a_
                if n < NF:
                    d = A_H + 8*(n % NH)
                    k(f'v_mfma_f32_32x32x16_bf16 {a_}, v[{b+4*ct}:{b+4*ct+3}], a[{d+4*e}:{d+4*e+3}], {c_}')
                else:
                    g = G_G + 8*(n - NF) + 4*ct
                    k(f'v_mfma_f32_32x32x16_bf16 {a_}, v[{g}:{g+3}], v[{b+4*e}:{b+4*e+3}], {c_}')
                if rd: emit_read(n + 1, rd.pop(0))
                if vq.half or gap < rate or True:
                    lim = n + URG if gap >= rate else 10**9
                    vq.one(lim)
                for _ in range(GPACE):
                    if gq: k(gq.pop(0))
                gap += 1
    vq.settle()
    vm.wait('wt'); k('s_barrier')
    stamp('u_ok')
    for ks in range(4):
        for mt in range(2):
            r = UFR + 4*(mt*4+ks)
            lg.issue(f'ds_read_b128 v[{r}:{r+3}], v{V_UA} offset:{ks*2048 + mt*256}', ('uf', ks))
    P = Pacer2(k, vq, PACE_P2A)
    kk = P
    D, Tt, B = D_, T_, B_
    kk(f'v_and_b32 v{V_P0}, 15, v{L}'); kk(f'v_lshlrev_b32 v{V_YW0}, 6, v{V_P0}')
    kk(f'v_bfe_u32 v{V_P0}, v{L}, 2, 1'); kk(f'v_lshl_add_u32 v{V_YW0}, v{V_P0}, 5, v{V_YW0}')
    kk(f'v_lshrrev_b32 v{V_P0}, 4, v{L}'); kk(f'v_lshl_add_u32 v{V_YW0}, v{V_P0}, 3, v{V_YW0}')
    k(f's_lshl_b32 s{T}, s{S_WV}, 10'); k(f's_add_u32 s{T}, s{T}, {L_Y}'); kk(f'v_add_u32 v{V_YW0}, s{T}, v{V_YW0}')
    kk(f'v_xor_b32 v{V_YW1}, 32, v{V_YW0}')
    kk(f'v_lshrrev_b32 v{V_P0}, 2, v{L}'); kk(f'v_lshlrev_b32 v{V_YR0}, 6, v{V_P0}')
    kk(f'v_bfe_u32 v{V_P0}, v{L}, 4, 1'); kk(f'v_lshl_add_u32 v{V_YR0}, v{V_P0}, 5, v{V_YR0}')
    kk(f'v_and_b32 v{V_P0}, 3, v{L}'); kk(f'v_lshl_add_u32 v{V_YR0}, v{V_P0}, 3, v{V_YR0}')
    kk(f'v_add_u32 v{V_YR0}, {L_Y}, v{V_YR0}'); kk(f'v_xor_b32 v{V_YR1}, 32, v{V_YR0}')
    for ks in range(4):
        lg.wait(('uf', ks))
        for mt in range(2):
            for var in range(2):
                d = D + 4*(mt*2+var)
                kk(mf16(d, UFR + 4*(mt*4+ks), A_E64 + 4*(ks*2+var), None if ks == 0 else d, 'v', 'a'))
    vq.settle()
    vm.wait('hp0'); tag_check(k, 'hf0', [V_G_HP], hp(0))
    stamp('hf0_ok')
    for n in range(12): vq.add(n, h_chunks(n))
    for n in range(14, RING): vq.add(n - 1, w2_dma_chunks(n))
    P.every = PACE_H; P.c = 0
    k.nop(2)
    def twiddle(sign):
        for mt in range(2):
            for r in range(4):
                R, I = D + 8*mt + r, D + 8*mt + 4 + r; c = TW + 8*mt + r
                kk(f'v_mul_f32 v{Tt+8*mt+r}, v{R}, v{c}'); kk(f'v_mul_f32 v{Tt+8*mt+4+r}, v{I}, v{c}')
            for r in range(4):
                R, I = D + 8*mt + r, D + 8*mt + 4 + r; s_ = TW + 8*mt + 4 + r
                kk(f'v_fma_f32 v{Tt+8*mt+r}, {"" if sign > 0 else "-"}v{I}, v{s_}, v{Tt+8*mt+r}')
                kk(f'v_fma_f32 v{Tt+8*mt+4+r}, {"-" if sign > 0 else ""}v{R}, v{s_}, v{Tt+8*mt+4+r}')
    def pack():
        for mt in range(2):
            for part in range(2):
                kk(f'v_cvt_pk_bf16_f32 v{B+4*part+2*mt}, v{Tt+8*mt+4*part}, v{Tt+8*mt+4*part+1}')
                kk(f'v_cvt_pk_bf16_f32 v{B+4*part+2*mt+1}, v{Tt+8*mt+4*part+2}, v{Tt+8*mt+4*part+3}')
    twiddle(+1); pack(); k.nop(2)
    Br, Bi = B, B + 4
    C32 = lambda mt: A_E32 + 12*mt; S32 = lambda mt: A_E32 + 12*mt + 4; N32 = lambda mt: A_E32 + 12*mt + 8
    for mt in range(2):
        kk(mf16(D + 8*mt, C32(mt), Br, None, 'a')); kk(mf16(D + 8*mt + 4, C32(mt), Bi, None, 'a'))
    for mt in range(2):
        kk(mf16(D + 8*mt, S32(mt), Bi, D + 8*mt, 'a')); kk(mf16(D + 8*mt + 4, N32(mt), Br, D + 8*mt + 4, 'a'))
    for mt in range(2):
        for r in range(4):
            kk(f'v_lshlrev_b32 v{WU+4*mt+r}, 16, v{WT_+4*mt+r}'); kk(f'v_and_b32 v{WU+8+4*mt+r}, 0xffff0000, v{WT_+4*mt+r}')
    for mt in range(2):
        for r in range(4):
            R = D + 8*mt + r
            kk(f'v_mul_f32 v{Tt+8*mt+r}, v{R}, v{WU+4*mt+r}'); kk(f'v_mul_f32 v{Tt+8*mt+4+r}, v{R}, v{WU+8+4*mt+r}')
        for r in range(4):
            I = D + 8*mt + 4 + r
            kk(f'v_fma_f32 v{Tt+8*mt+r}, -v{I}, v{WU+8+4*mt+r}, v{Tt+8*mt+r}')
            kk(f'v_fma_f32 v{Tt+8*mt+4+r}, v{I}, v{WU+4*mt+r}, v{Tt+8*mt+4+r}')
    pack(); k.nop(2)
    for mt in range(2):
        kk(mf16(D + 8*mt, C32(mt), Br, None, 'a')); kk(mf16(D + 8*mt + 4, C32(mt), Bi, None, 'a'))
    for mt in range(2):
        kk(mf16(D + 8*mt, N32(mt), Bi, D + 8*mt, 'a')); kk(mf16(D + 8*mt + 4, S32(mt), Br, D + 8*mt + 4, 'a'))
    k.nop(8)
    twiddle(-1); pack()
    for mt in range(2):
        va = V_YW0 if mt == 0 else V_YW1
        lg.issue(f'ds_write_b64 v{va}, v[{B+4+2*mt}:{B+4+2*mt+1}]'); lg.issue(f'ds_write_b64 v{va}, v[{B+2*mt}:{B+2*mt+1}] offset:4096')
    vm.wait('hst1'); lg.drain(); k('s_barrier')
    flag_store_now(k, hf_off(1), 'L_fl_h1')
    stamp('hflag')
    FB = UFR
    for nt in range(2):
        va = V_YR0 if nt == 0 else V_YR1
        for ks in range(4):
            r = FB + 4*(nt*4+ks)
            lg.issue(f'ds_read_b64_tr_b16 v[{r}:{r+1}], v{va} offset:{ks*1024}'); P.tick()
            lg.issue(f'ds_read_b64_tr_b16 v[{r+2}:{r+3}], v{va} offset:{4096 + ks*1024}', ('yb', nt)); P.tick()
    k(f's_mov_b32 s{S_VS}, 0x36000000'); k('s_cmp_eq_u32 s2, 255'); k(f's_cselect_b32 s{S_VS}, 0x35800000, s{S_VS}')
    k(f's_mul_i32 s{T}, s2, {CSTR}'); k(f's_lshl_b32 s{T+1}, s{S_WV}, 11'); k(f's_add_u32 s{T}, s{T}, s{T+1}'); k(f's_add_u32 s{T+4}, s{T}, {WS_V}')
    for nt in range(2):
        lg.wait(('yb', nt))
        for ks in range(4):
            f = FB + 4*(nt*4+ks)
            kk(mf16(D + 8*nt + 4, A_E64 + 4*(ks*2+0), f, None if ks == 0 else D + 8*nt + 4, 'a'))
            kk(mf16(D + 8*nt, A_E64 + 4*(ks*2+1), f, None if ks == 0 else D + 8*nt, 'a'))
    wait_w(0)
    for r in reads(0): emit_read(0, r)
    k.nop(4)
    for nt in range(2):
        for i in range(8): kk(f'v_mul_f32 v{D+8*nt+i}, s{S_VS}, v{D+8*nt+i}')
        o = B + 4*nt
        kk(f'v_cvt_pk_bf16_f32 v{o}, v{D+8*nt}, v{D+8*nt+1}'); kk(f'v_cvt_pk_bf16_f32 v{o+1}, v{D+8*nt+2}, v{D+8*nt+3}')
        kk(f'v_cvt_pk_bf16_f32 v{o+2}, v{D+8*nt+4}, v{D+8*nt+5}'); kk(f'v_cvt_pk_bf16_f32 v{o+3}, v{D+8*nt+6}, v{D+8*nt+7}')
        vm.issue(f'buffer_store_dwordx4 v[{o}:{o+3}], v{V_VA}, s[{S_WS}:{S_WS+3}], s{T+4} offen offset:{nt*256} sc1', 'vst')
    stamp('p2a_end')
    gq += ['s_nop 1'] + g_gen_items()
    vp = [f's_lshl_b32 s{S_B}, s{S_WV}, 8', f's_add_u32 s{S_B}, s{S_B}, {WS_VF}', f'v_lshlrev_b32 v{V_GP}, 2, v{L}',
          f'buffer_load_dword v{T1}, v{V_GP}, s[{S_WS}:{S_WS+3}], s{S_B} offen sc1']
    vq.settle()
    for x in hp(1)[:-1]: k(x)
    vm.issue(hp(1)[-1], 'hp1')
    hn = 12; h1ok = False; vready = []
    for n in range(NS):
        if n == VFL_AT:
            vq.settle(); vm.wait('vst'); k('s_barrier')
            flag_store_now(k, [f's_lshl_b32 s{S_F0}, s2, 2', f's_add_u32 s{S_F0}, s{S_F0}, {WS_VF}'], 'L_fl_v')
            stamp('vflag')
        if n == H1CHK:
            vq.settle(); vm.wait('hp1'); tag_check(k, 'hf1', [V_G_HP], hp(1)); h1ok = True
            stamp('hf1_ok')
            while hn < NF and hn < n + NH: vq.add(hn, h_chunks(hn)); hn += 1
        if n == VP_AT:
            vq.settle()
            for x in vp[:-1]: k(x)
            vm.issue(vp[-1], 'vp')
        if n == VCHK:
            vq.settle(); vm.wait('vp'); tag_check(k, 'vf', [T1], vp)
            stamp('vf_ok')
        if n == 30: vq.add(NS, [('grp', [('vm', f'buffer_load_dwordx4 v[{G_X+4*j}:{G_X+4*j+3}], v{V_OO}, s[{S_X}:{S_X+3}], 0 offen offset:{j*2048}', 'x') for j in range(2)])])
        step(n)
        m = n + RING - 1
        if n >= 1 and m < NF: vq.add(m - 1, w2_dma_chunks(m))
        if n >= 1 and NF <= m < NS: vready.append(m)
        if n >= VCHK:
            while vready: mm = vready.pop(0); vq.add(mm - 1, v_chunks(mm))
        if h1ok and hn < NF and hn < n + 1 + NH: vq.add(hn, h_chunks(hn)); hn += 1
        if st and n in (11, 27): stamp(f'g{n}')
    assert not gq and not vq.pending() and hn == NF, (len(gq), vq.pending(), hn)
    stamp('kdone')
    k('s_barrier')
    k(f's_mul_i32 s{T}, s{S_WV}, {RED_W}'); k(f'v_lshl_add_u32 v{T0}, v{L}, 4, s{T}')
    k.nop(10)
    for e in range(2):
        for ct in range(2):
            for q in range(4):
                r = G_ACC + 16*(2*e+ct) + 4*q
                k(f'ds_write_b128 v{T0}, v[{r}:{r+3}] offset:{((e*2+ct)*4+q)*RED_STRIDE}')
    k('s_waitcnt lgkmcnt(0)'); k('s_barrier')
    stamp('redw')
    for j in range(2):
        for w in range(4):
            r = G_ACC + 32*j + 8*w
            k(f'ds_read_b128 v[{r}:{r+3}], v{V_RA} offset:{w*RED_W + j*128}')
            k(f'ds_read_b128 v[{r+4}:{r+7}], v{V_RA} offset:{w*RED_W + j*128 + 512}')
    vm.wait('x')
    for j in range(2):
        S = G_ACC + 32*j
        for w in range(1, 4):
            k(f's_waitcnt lgkmcnt({min(15, 8*(1-j) + 2*(3-w))})')
            for i in range(8): k(f'v_add_f32 v{S+i}, v{S+i}, v{S+8*w+i}')
        for i in range(4):
            x = G_X + 4*j + i
            k(f'v_lshlrev_b32 v{T0}, 16, v{x}'); k(f'v_and_b32 v{T1}, 0xffff0000, v{x}')
            k(f'v_add_f32 v{S+2*i}, v{S+2*i}, v{T0}'); k(f'v_add_f32 v{S+2*i+1}, v{S+2*i+1}, v{T1}')
            k(f'v_cvt_pk_bf16_f32 v{x}, v{S+2*i}, v{S+2*i+1}')
        vm.issue(f'buffer_store_dwordx4 v[{G_X+4*j}:{G_X+4*j+3}], v{V_OO}, s[{S_OUT}:{S_OUT+3}], 0 offen offset:{j*2048}' + (' sc1' if 'outsc1' in OPT else ''), 'o')
V_G_HP = 41
V_HI, V_HI2 = 30, 34
PACE_P2A, PACE_H, GPACE, URG = 8, 6, 4, 6
VFL_AT, H1CHK, VP_AT, VCHK = 2, 4, 17, 20
def build(ts=False):
    global slow_paths
    slow_paths.clear(); slow_id[0] = 0
    k = K()
    st = Stamps(k, ts, 0, vts=V_TS)
    k('s_cmp_ge_u32 s2, 256'); k('s_cbranch_scc1 L_end')
    st.stamp('start')
    prologue(k, st)
    k(f's_cmp_ge_u32 s{S_CB}, 12'); k('s_cbranch_scc1 L_typeB')
    n0, nm0 = st.n, list(st.names)
    sta = st if ts else None
    p1_body(k, False, sta)
    k('s_branch L_common')
    st.n, st.names = n0, list(nm0)
    k.label('L_typeB')
    p1_body(k, True, sta)
    k.label('L_common')
    tail(k, sta, ts)
    k('s_cmp_lg_u32 s2, 0'); k('s_cbranch_scc1 L_noep')
    flag_store_now(k, [f's_mov_b32 s{S_F0}, {WS_EPOCH}'], 'L_fl_e')
    k.label('L_noep')
    if 'dbgts' in OPT:
        k('s_waitcnt vmcnt(0)'); k('s_memrealtime s[64:65]'); k('s_waitcnt lgkmcnt(0)')
        k('s_not_b32 s101, s101'); k('v_mov_b32 v2, s101'); k('v_mov_b32 v3, s64'); k('v_mov_b32 v4, 48'); k('v_mov_b32 v5, 52')
        k(f'v_cndmask_b32 v4, v4, v4, vcc')
        k('s_mov_b64 exec, 1')
        k(f'buffer_atomic_umax v2, v4, s[{S_DBG}:{S_DBG+3}], 0 offen sc1'); k(f'buffer_atomic_umax v3, v5, s[{S_DBG}:{S_DBG+3}], 0 offen sc1')
        k('s_mov_b64 exec, -1')
    st.flush(2, 3)
    k.label('L_end'); k('s_endpgm')
    for sp in slow_paths: k.l += sp.l
    k.label('L_codeend'); k('s_endpgm')
    probs = check(k.l, 'fused')
    if probs: print('\n'.join(probs[:10])); raise SystemExit('hazards')
    hdr = f"""; fused LayerNorm + GFNet spectral filter + SwiGLU MLP + residual sum (persistent, one workgroup per CU)
; @launch grid=(256,1,1) block=(256,1,1) lds={LDS_TOTAL}
.amdgcn_target "amdgcn-amd-amdhsa--gfx950"
"""
    out = hdr + kernel_header(NAME) + k.text() + kernel_desc(NAME, 512, sgpr=102, accum=256) + tables_asm()
    if ts: out += '; TSNAMES 0 ' + ' '.join(st.names) + '\n'
    return out
if __name__ == '__main__':
    dst = sys.argv[1]
    OPT.update(a for a in sys.argv[2:])
    for a in sys.argv[2:]:
        if '=' in a:
            nm_, v_ = a.split('='); assert nm_ in globals(), nm_; globals()[nm_] = int(v_)
    s = build(ts='ts' in sys.argv)
    open(dst, 'w').write(s)
    print(len(s), 'bytes ->', dst)
```

```python
import sys
from asmgen import *
from tables import tables_asm, TAB_F, TAB_G, TAB_E64, TAB_E32, TAB_TW, TAB_END
import common as C
from common import VM, Stamps, kernel_header, kernel_desc, S_X, S_W1, S_W3, S_W2, S_WS, S_OUT, S_TAB, S_WR, S_WI
NAME = 'parallel_sum__spectral_gfnet__glu_gated_swiglu__prompt_kernel'
OPT = set()
WS_EPOCH = 0x0
WS_HF = 0x1000
WS_UF = 0x2000
WS_WTF = 0x3000
WS_VF = 0x4000
WS_ST = 0x10000
WS_CS = 0x20000
WS_WT, WS_U, WS_V, WS_H = 0x100000, 0x340000, 0x580000, 0x800000
CSTR = 8192 + 512
WSTR = 8192 + 128
C.CSTR, C.WSTR = CSTR, WSTR
WS_SIZE = 0x1400000
C.WS_WT, C.WS_U, C.WS_V, C.WS_H = WS_WT, WS_U, WS_V, WS_H
S_WV, S_WR_, S_WC, S_RB, S_CB, S_G, S_NON, S_ROT = 40, 41, 42, 43, 44, 45, 46, 47
S_XO, S_WO0, S_WO1, S_FO, S_HO, S_UO = 48, 49, 50, 51, 52, 53
S_MX, S_MW1 = 54, 55
T = 56
S_RB2, S_G2, S_CB2 = 84, 85, 86
S_SX, S_SW = 87, 88
S_PAR = 89
S_ST = 101
S_K2, S_CBLK = 90, 91
S_A, S_B, S_C_, S_D = 92, 93, 94, 95
L_X, L_W = 0x0000, 0x10000
L_UT = 0x0000
L_MISC = 0x24000
L_U = L_MISC
L_Y = L_MISC + 0x2000
L_WTB = L_MISC
L_AX = L_MISC + 0x2400
L_RS = L_AX + 0x1000
L_CSW = 0x20000
LDS_TOTAL = 0x28000
V_L = 1
V_XA = 2
V_WA = 6
V_FA = 8
V_XD = 9
V_W1D = 13
V_W3D = 15
V_FD = 17
V_C1, V_C2 = 18, 20
V_BX = 24
V_HO, V_UTW, V_UTR, V_UO = 32, 33, 34, 35
V_ONE = 36
V_SR = 40
V_WTD = 48
V_STG = 64
V_CSG = 68
V_A0, V_A1, V_A2, V_A3 = 76, 77, 78, 79
ET = 80
AF = 104
ACC = 128
V_TS = 23
V_L0 = 22
S_F0, S_F1 = 96, 97
S_EP, S_EP2 = 98, 99
S_SPIN = 100
S_PP = 3
V_TCH = 46
S_DBG = 68
S_CD = 72
TOUCH_AT = 11
TOUCH1_AT = 7
TOUCH_STEP = 4
CS0_LD = 18
EPI0_AT = 39
SPIN_MAX = 100000
slow_id = [0]
V_L0T = 42
V_C1P, V_C2P = 96, 100
V_EA = 41
def acc(p, t, e): return ACC + p*64 + t*32 + e*16
def xf(e, kk): return (e*32 + kk)*4
class Sched:
    def __init__(self, k, vm): self.k = k; self.vm = vm; self.q = []
    def add(self, items): self.q += items
    def pop(self, nmax):
        c = 0
        while self.q and c < nmax:
            e = self.q[0]
            if e == 'STEP': return
            self.q.pop(0)
            if isinstance(e, tuple):
                if e[0] == 'vm': self.vm.issue(e[1], e[2])
                elif e[0] == 'call': e[1]()
                elif e[0] == 'grp':
                    for x in e[1]:
                        if isinstance(x, tuple): self.vm.issue(x[1], x[2])
                        else: self.k(x)
                    c += len(e[1]) - 1
            else: self.k(e)
            c += 1
    def newstep(self):
        if self.q and self.q[0] == 'STEP': self.q.pop(0)
    def flush(self):
        while self.q:
            if self.q[0] == 'STEP':
                self.q.pop(0); self.k('s_waitcnt lgkmcnt(0)')
            else: self.pop(1)
slow_paths = []
def tag_check(k, label, regs, reload_lines):
    k(f'v_cmp_ne_u32 vcc, s{S_NON}, v{regs[0]}')
    for r in regs[1:]:
        k(f'v_cmp_ne_u32 s[{T+6}:{T+7}], s{S_NON}, v{r}'); k('s_nop 0'); k(f's_or_b64 vcc, vcc, s[{T+6}:{T+7}]')
    k('s_nop 1')
    k('s_cmp_lg_u64 vcc, 0'); k(f's_cbranch_scc1 L_slow_{label}')
    k.label(f'L_back_{label}')
    sp = K()
    slow_id[0] += 1
    sp.label(f'L_slow_{label}')
    sp(f's_sub_u32 s{S_SPIN}, s{S_SPIN}, 1'); sp(f's_cbranch_scc1 L_tmo_{label}')
    sp('s_sleep 2')
    for l in reload_lines: sp(l)
    sp('s_waitcnt vmcnt(0)')
    sp(f'v_cmp_ne_u32 vcc, s{S_NON}, v{regs[0]}')
    for r in regs[1:]:
        sp(f'v_cmp_ne_u32 s[{T+6}:{T+7}], s{S_NON}, v{r}'); sp('s_nop 0'); sp(f's_or_b64 vcc, vcc, s[{T+6}:{T+7}]')
    sp('s_nop 1')
    sp('s_cmp_lg_u64 vcc, 0'); sp(f's_cbranch_scc1 L_slow_{label}')
    sp(f's_branch L_back_{label}')
    sp.label(f'L_tmo_{label}')
    sp(f's_mov_b32 s{S_SPIN}, 0')
    sp(f'v_mov_b32 v{regs[0]}, {slow_id[0]}'); sp(f'v_mov_b32 v{V_L0T}, {4*slow_id[0]}')
    sp(f'buffer_store_dword v{regs[0]}, v{V_L0T}, s[{S_DBG}:{S_DBG+3}], 0 offen')
    sp(f's_branch L_back_{label}')
    slow_paths.append(sp)
def srd(k, s, lo, hi, size):
    k(f's_mov_b32 s{s}, s{lo}'); k(f's_mov_b32 s{s+1}, s{hi}'); k(f's_mov_b32 s{s+2}, {size}'); k(f's_mov_b32 s{s+3}, 0x20000')
def prologue(k, st):
    L, T0, T1, T2 = V_L, V_A0, V_A1, V_A2
    k('s_load_dwordx16 s[64:79], s[0:1], 0'); k('s_load_dwordx4 s[80:83], s[0:1], 64')
    k(f'v_and_b32 v{L}, 63, v0'); k(f'v_lshrrev_b32 v{T0}, 6, v0'); k('s_nop 0')
    k(f'v_readfirstlane_b32 s{S_WV}, v{T0}')
    k(f's_and_b32 s{T}, s2, 7'); k(f's_lshr_b32 s{T+1}, s2, 3')
    k(f's_and_b32 s{S_WR_}, s{S_WV}, 1'); k(f's_lshr_b32 s{S_WC}, s{S_WV}, 1')
    k(f's_and_b32 s{S_RB}, s{T}, 1'); k(f's_lshl_b32 s{S_RB}, s{S_RB}, 3')
    k(f's_and_b32 s{T+2}, s{T+1}, 7'); k(f's_add_u32 s{S_RB}, s{S_RB}, s{T+2}')
    k(f's_lshr_b32 s{S_G}, s{T}, 1'); k(f's_lshr_b32 s{T+2}, s{T+1}, 3')
    k(f's_mul_i32 s{S_CB}, s{S_G}, 3'); k(f's_add_u32 s{S_CB}, s{S_CB}, s{T+2}'); k(f's_add_u32 s{T+3}, s{S_G}, 12')
    k(f's_cmp_eq_u32 s{T+2}, 3'); k(f's_cselect_b32 s{S_CB}, s{T+3}, s{S_CB}')
    k(f's_lshl_b32 s{T+2}, s{T}, 2'); k(f's_and_b32 s{T+3}, s{T+1}, 3'); k(f's_add_u32 s{T+2}, s{T+2}, s{T+3}')
    k(f's_lshr_b32 s{S_RB2}, s{T+2}, 1'); k(f's_and_b32 s{S_G2}, s{T+2}, 1'); k(f's_lshr_b32 s{S_CB2}, s{T+1}, 2')
    k(f's_lshr_b32 s{S_PP}, s{S_RB}, 1'); k(f's_lshr_b32 s{T+2}, s{T+1}, 3'); k(f's_add_u32 s{S_ROT}, s{S_PP}, s{T+2}')
    k(f's_and_b32 s{S_ROT}, s{S_ROT}, 3'); k(f's_lshl_b32 s{S_ROT}, s{S_ROT}, 1'); k(f's_and_b32 s{S_PAR}, s{S_RB}, 1')
    if 'norot2' not in OPT:
        k(f's_lshr_b32 s{T+2}, s{T}, 1'); k(f's_add_u32 s{T+2}, s{T+2}, s{T}'); k(f's_and_b32 s{T+2}, s{T+2}, 1'); k(f's_add_u32 s{S_ROT}, s{S_ROT}, s{T+2}')
    k(f's_lshr_b32 s{S_K2}, s2, 2'); k(f's_and_b32 s{S_CBLK}, s2, 3')
    k(f'v_lshrrev_b32 v{T0}, 3, v{L}')
    k(f'v_and_b32 v{T1}, 3, v{T0}'); k(f'v_lshlrev_b32 v{T1}, 15, v{T1}')
    k(f'v_lshrrev_b32 v{T2}, 2, v{T0}'); k(f'v_lshl_add_u32 v{T1}, v{T2}, 10, v{T1}')
    k(f's_lshl_b32 s{T+2}, s{S_WV}, 13'); k(f'v_add_u32 v{T1}, s{T+2}, v{T1}')
    k(f'v_and_b32 v{T2}, 7, v{L}')
    for e in range(4):
        k(f'v_lshrrev_b32 v{V_A3}, 4, v{L}'); k(f'v_add_u32 v{V_A3}, {4*e}, v{V_A3}'); k(f'v_and_b32 v{V_A3}, 7, v{V_A3}')
        k(f'v_xor_b32 v{V_A3}, v{V_A3}, v{T2}'); k(f'v_lshl_add_u32 v{V_XD+e}, v{V_A3}, 4, v{T1}')
        if e: k(f'v_add_u32 v{V_XD+e}, {e*1024}, v{V_XD+e}')
    k(f's_lshl_b32 s{T+2}, s{S_WV}, 4'); k(f'v_add_u32 v{T0}, s{T+2}, v{T0}')
    k(f'v_bfe_u32 v{T1}, v{L}, 4, 1'); k(f'v_bfe_u32 v{T2}, v{L}, 1, 2'); k(f'v_xor_b32 v{T1}, v{T1}, v{T2}')
    k(f'v_mul_u32_u24 v{T0}, 3584, v{T0}'); k(f'v_and_b32 v{T2}, 1, v{L}'); k(f'v_lshl_add_u32 v{T0}, v{T2}, 4, v{T0}')
    k(f'v_lshl_add_u32 v{V_W1D}, v{T1}, 5, v{T0}'); k(f'v_add_u32 v{V_W1D+1}, {8*3584-1024}, v{V_W1D}')
    k(f'v_xor_b32 v{T1}, 2, v{T1}'); k(f'v_lshl_add_u32 v{V_W3D}, v{T1}, 5, v{T0}'); k(f'v_add_u32 v{V_W3D+1}, {8*3584-1024}, v{V_W3D}')
    k(f's_lshl_b32 s{T+2}, s{S_WV}, 12'); k(f'v_lshl_add_u32 v{V_FD}, v{L}, 4, s{T+2}')
    k(f's_lshl_b32 s{S_MX}, s{S_WV}, 12')
    k(f's_lshl_b32 s{S_MW1}, s{S_WV}, 11'); k(f's_add_u32 s{S_MW1}, s{S_MW1}, {L_W}')
    k(f's_lshl_b32 s{S_XO}, s{S_RB}, 17')
    k(f's_lshl_b32 s{S_WO0}, s{S_CB}, 8'); k(f's_add_u32 s{S_WO1}, s{S_WO0}, 128')
    k(f's_lshl_b32 s{T+2}, s{S_G}, 7'); k(f's_add_u32 s{T+2}, s{T+2}, {1536*2}')
    k(f's_cmp_ge_u32 s{S_CB}, 12'); k(f's_cselect_b32 s{S_WO1}, s{T+2}, s{S_WO1}')
    k(f's_lshl_b32 s{S_FO}, s{S_G}, 17'); k(f's_add_u32 s{S_FO}, s{S_FO}, {TAB_F}')
    k(f's_getpc_b64 s[{S_TAB}:{S_TAB+1}]')
    k(f's_add_u32 s{S_TAB}, s{S_TAB}, TABS@rel32@lo+4'); k(f's_addc_u32 s{S_TAB+1}, s{S_TAB+1}, TABS@rel32@hi+12')
    k(f's_mov_b32 s{S_TAB+2}, {TAB_END}'); k(f's_mov_b32 s{S_TAB+3}, 0x20000')
    k('s_waitcnt lgkmcnt(0)')
    k(f's_load_dword s{S_NON}, s[82:83], {WS_EPOCH}')
    srd(k, S_X, 64, 65, 2048*512*2); srd(k, S_W1, 72, 73, 512*1792*2); srd(k, S_W3, 74, 75, 512*1792*2)
def prologue2(k):
    L, T0, T1, T2 = V_L, V_A0, V_A1, V_A2
    srd(k, S_W2, 76, 77, 1792*512*2)
    srd(k, S_OUT, 78, 79, 2048*512*2); srd(k, S_WS, 82, 83, WS_SIZE); srd(k, S_DBG, 80, 81, 256)
    k(f's_mov_b32 s{S_SPIN}, {SPIN_MAX}')
    k(f'v_and_b32 v{T0}, 31, v{L}'); k(f'v_lshrrev_b32 v{T1}, 5, v{L}'); k(f'v_bfe_u32 v{T2}, v{T0}, 1, 3')
    k(f'v_xor_b32 v{T1}, v{T1}, v{T2}'); k(f'v_lshlrev_b32 v{T1}, 4, v{T1}')
    k(f's_lshl_b32 s{T}, s{S_WR_}, 13'); k(f'v_lshl_add_u32 v{T0}, v{T0}, 7, s{T}')
    for ks in range(4):
        k(f'v_xor_b32 v{V_XA+ks}, {ks*32}, v{T1}'); k(f'v_add_u32 v{V_XA+ks}, v{V_XA+ks}, v{T0}')
    k(f'v_bfe_u32 v{T0}, v{L}, 4, 1'); k(f'v_bfe_u32 v{T1}, v{L}, 2, 2')
    k(f'v_lshrrev_b32 v{T2}, 1, v{T1}'); k(f'v_lshl_or_b32 v{T2}, v{T0}, 1, v{T2}')
    k(f'v_lshlrev_b32 v{T0}, 13, v{T0}'); k(f'v_lshl_add_u32 v{T0}, v{T1}, 7, v{T0}')
    k(f'v_lshrrev_b32 v{T1}, 5, v{L}'); k(f'v_lshl_add_u32 v{T0}, v{T1}, 10, v{T0}')
    k(f'v_and_b32 v{T1}, 3, v{L}'); k(f'v_lshl_add_u32 v{T0}, v{T1}, 3, v{T0}'); k(f'v_add_u32 v{T0}, {L_W}, v{T0}')
    k(f's_lshl_b32 s{T}, s{S_WC}, 1')
    for t in range(2):
        k(f's_add_u32 s{T+1}, s{T}, {t}'); k(f'v_xor_b32 v{T1}, s{T+1}, v{T2}'); k(f'v_lshl_add_u32 v{V_WA+t}, v{T1}, 5, v{T0}')
    k(f's_lshl_b32 s{T}, s{S_WC}, 11'); k(f's_add_u32 s{T}, s{T}, {L_W}'); k(f'v_lshl_add_u32 v{V_FA}, v{L}, 4, s{T}')
    k(f's_mul_i32 s{T}, s{S_WR_}, {2*112*1024}'); k(f'v_lshl_add_u32 v{V_HO}, v{L}, 4, s{T}')
    k(f's_mul_i32 s{S_HO}, s{S_RB}, {4*112*1024}'); k(f's_add_u32 s{S_HO}, s{S_HO}, {WS_H}')
    k(f's_mul_i32 s{T}, s{S_G}, 28'); k(f's_lshr_b32 s{T+1}, s2, 6'); k(f's_lshl_b32 s{T+1}, s{T+1}, 2'); k(f's_add_u32 s{T}, s{T}, s{T+1}')
    k(f's_lshl_b32 s{T+1}, s{S_WC}, 1'); k(f's_add_u32 s{T}, s{T}, s{T+1}'); k(f's_lshl_b32 s{T}, s{T}, 10'); k(f's_add_u32 s{S_HO}, s{S_HO}, s{T}')
    k(f'v_and_b32 v{T0}, 15, v{L}'); k(f'v_mul_u32_u24 v{T0}, 528, v{T0}')
    k(f'v_bfe_u32 v{T1}, v{L}, 4, 1'); k(f'v_lshl_add_u32 v{T0}, v{T1}, 3, v{T0}')
    k(f'v_lshrrev_b32 v{T1}, 5, v{L}'); k(f'v_lshl_add_u32 v{T0}, v{T1}, 4, v{T0}')
    k(f's_mul_i32 s{T}, s{S_WC}, {32*528}'); k(f's_lshl_b32 s{T+1}, s{S_WR_}, 8'); k(f's_add_u32 s{T}, s{T}, s{T+1}')
    k(f'v_add_u32 v{V_UTW}, s{T}, v{T0}')
    k(f'v_lshrrev_b32 v{T0}, 5, v{L}'); k(f'v_mul_u32_u24 v{T0}, 528, v{T0}')
    k(f'v_and_b32 v{T1}, 31, v{L}'); k(f'v_lshl_add_u32 v{T0}, v{T1}, 4, v{T0}')
    k(f's_mul_i32 s{T}, s{S_WV}, {16*528}'); k(f'v_add_u32 v{V_UTR}, s{T}, v{T0}')
    k(f'v_lshrrev_b32 v{T0}, 5, v{L}'); k(f'v_mul_u32_u24 v{T0}, {CSTR}, v{T0}'); k(f'v_lshl_add_u32 v{T0}, v{T1}, 4, v{T0}')
    k(f's_mul_i32 s{T}, s{S_WV}, {16*CSTR}'); k(f'v_add_u32 v{V_UO}, s{T}, v{T0}')
    k(f's_mul_i32 s{S_UO}, s{S_G}, {64*CSTR}'); k(f's_lshl_b32 s{T}, s{S_RB}, 9'); k(f's_add_u32 s{S_UO}, s{S_UO}, s{T}'); k(f's_add_u32 s{S_UO}, s{S_UO}, {WS_U}')
    k(f'v_cmp_eq_u32 vcc, 0, v{L}'); k(f'v_mov_b32 v{T0}, 0x7fffffff'); k('s_nop 0'); k(f'v_cndmask_b32 v{V_L0}, v{T0}, 0, vcc')
    for i in range(4): k(f'v_mov_b32 v{V_ONE+i}, 0x3f803f80')
    for e in range(2):
        for i in range(1, 4): k(f'v_mov_b32 v{V_BX+4*e+i}, 0')
def side_loads_stats(k, vm):
    L, T0 = V_L, V_A0
    k(f's_lshl_b32 s{T}, s{S_RB}, 7'); k(f's_lshl_b32 s{T+1}, s{S_CB}, 3'); k(f's_add_u32 s{T}, s{T}, s{T+1}')
    k(f's_lshl_b32 s{T+1}, s{S_WV}, 1'); k(f's_add_u32 s{S_A}, s{T}, s{T+1}')
    k(f's_lshl_b32 s{T}, s{S_A}, 10'); k(f'v_lshlrev_b32 v{T0}, 4, v{L}')
    for e in range(2):
        vm.issue(f'buffer_load_dwordx4 v[{V_SR+4*e}:{V_SR+4*e+3}], v{T0}, s[{S_X}:{S_X+3}], s{T} offen offset:{e*1024}', 'srow')
def side_loads_wt(k, vm):
    L = V_L
    k(f's_lshl_b32 s{T}, s{S_WV}, 9'); k(f's_add_u32 s{T}, s{T}, s{S_K2}'); k(f's_mul_i32 s{T}, s{T}, 514')
    k(f's_lshl_b32 s{T+1}, s{S_CBLK}, 7'); k(f's_add_u32 s{T}, s{T}, s{T+1}'); k(f's_add_u32 s{T}, s{T}, 2')
    k(f'v_lshrrev_b32 v{V_A1}, 3, v{L}'); k(f'v_mul_u32_u24 v{V_A1}, {64*514}, v{V_A1}'); k(f'v_and_b32 v{V_A2}, 7, v{L}'); k(f'v_lshl_add_u32 v{V_A1}, v{V_A2}, 4, v{V_A1}')
    vm.issue(f'buffer_load_dwordx4 v[{V_WTD}:{V_WTD+3}], v{V_A1}, s[{S_WR}:{S_WR+3}], s{T} offen', 'wtl')
    vm.issue(f'buffer_load_dwordx4 v[{V_WTD+4}:{V_WTD+7}], v{V_A1}, s[{S_WI}:{S_WI+3}], s{T} offen', 'wtl')
def stats_code(k, vm):
    X = [192, 200]; S0, S1, Q0, Q1, A = 208, 209, 210, 211, 212
    vm.wait('srow')
    for i in range(4):
        for e in range(2):
            k(f'v_lshlrev_b32 v{X[e]+2*i}, 16, v{V_SR+4*e+i}'); k(f'v_and_b32 v{X[e]+2*i+1}, 0xffff0000, v{V_SR+4*e+i}')
    S = [S0, S1]; Q = [Q0, Q1]
    for e in range(2): k(f'v_add_f32 v{S[e]}, v{X[e]}, v{X[e]+1}'); k(f'v_mul_f32 v{Q[e]}, v{X[e]}, v{X[e]}')
    for e in range(2): k(f'v_fma_f32 v{Q[e]}, v{X[e]+1}, v{X[e]+1}, v{Q[e]}')
    for i in range(2, 8):
        for e in range(2): k(f'v_add_f32 v{S[e]}, v{S[e]}, v{X[e]+i}'); k(f'v_fma_f32 v{Q[e]}, v{X[e]+i}, v{X[e]+i}, v{Q[e]}')
    k('s_nop 1')
    k(f'v_permlane32_swap_b32 v{S0}, v{S1}'); k(f'v_permlane32_swap_b32 v{Q0}, v{Q1}'); k('s_nop 0')
    k(f'v_add_f32 v{S0}, v{S0}, v{S1}'); k(f'v_add_f32 v{Q0}, v{Q0}, v{Q1}'); k('s_nop 1')
    k(f'v_permlane16_swap_b32 v{S0}, v{Q0}'); k('s_nop 1')
    k(f'v_add_f32 v{S0}, v{S0}, v{Q0}')
    for r in (8, 4, 2, 1):
        k('s_nop 1'); k(f'v_add_f32_dpp v{S0}, v{S0}, v{S0} row_ror:{r} row_mask:0xf bank_mask:0xf')
    k(f'v_mov_b32 v{Q0}, v{S0}'); k('s_nop 1')
    k(f'v_permlane16_swap_b32 v{S0}, v{Q0}'); k('s_nop 1')
    k(f'v_mul_f32 v{S0}, 0x3b000000, v{S0}'); k(f'v_mul_f32 v{Q0}, 0x3b000000, v{Q0}')
    k(f'v_fma_f32 v{Q0}, -v{S0}, v{S0}, v{Q0}'); k(f'v_max_f32 v{Q0}, 0, v{Q0}')
    k(f'v_cvt_pk_bf16_f32 v{S0}, v{S0}, v{Q0}')
    k(f'v_and_b32 v{Q0}, 0xffff0000, v{S0}'); k(f'v_add_f32 v{Q0}, 0x3727c5ac, v{Q0}')
    k(f'v_cvt_pk_bf16_f32 v{Q0}, v{Q0}, v{Q0}'); k(f'v_and_b32 v{Q0}, 0xffff0000, v{Q0}')
    k(f'v_sqrt_f32 v{Q0}, v{Q0}'); k(f'v_mov_b32 v{A}, 0xffff')
    k(f'v_cvt_pk_bf16_f32 v{Q0}, v{Q0}, v{Q0}')
    k(f'v_bfi_b32 v{S1}, v{A}, v{S0}, v{Q0}'); k(f'v_mov_b32 v{Q0}, s{S_NON}')
    k(f'v_and_b32 v{A}, 31, v{V_L}'); k(f'v_cmp_eq_u32 vcc, 0, v{A}'); k(f'v_lshrrev_b32 v{A}, 2, v{V_L}'); k(f'v_mov_b32 v{A+1}, 0x7fffffff')
    k(f's_lshl_b32 s{S_B}, s{S_A}, 3'); k(f'v_cndmask_b32 v{A}, v{A+1}, v{A}, vcc'); k(f's_add_u32 s{S_B}, s{S_B}, {WS_ST}')
    k(f'v_mov_b32 v{S0}, v{S1}'); k(f'v_mov_b32 v{S1}, v{Q0}')
    vm.issue(f'buffer_store_dwordx2 v[{S0}:{S1}], v{A}, s[{S_WS}:{S_WS+3}], s{S_B} offen sc1', 'stst')
def wt_items(vm, lg):
    L = V_L; O = V_WTD + 8
    a = [f'v_and_b32 v{V_A0}, 7, v{L}', f'v_lshrrev_b32 v{V_A1}, 3, v{L}',
         f's_lshl_b32 s{S_B}, s{S_WV}, 1', f'v_lshrrev_b32 v{V_A2}, 2, v{V_A1}', f'v_add_u32 v{V_A2}, s{S_B}, v{V_A2}',
         f'v_xor_b32 v{V_A2}, v{V_A2}, v{V_A0}', f'v_lshlrev_b32 v{V_A2}, 4, v{V_A2}',
         f'v_and_b32 v{V_A1}, 3, v{V_A1}', f'v_lshl_add_u32 v{V_A2}, v{V_A1}, 2, v{V_A2}',
         f'v_mul_u32_u24 v{V_A0}, {8*144}, v{V_A0}', f'v_add_u32 v{V_A2}, v{V_A2}, v{V_A0}', f'v_add_u32 v{V_A2}, {L_WTB}, v{V_A2}',
         f's_mov_b32 s{S_B}, 0x05040100', f's_mov_b32 s{S_C_}, 0x07060302', ('call', lambda: vm.wait('wtl'))]
    for j in range(4):
        a += [f'v_perm_b32 v{O+2*j}, v{V_WTD+4+j}, v{V_WTD+j}, s{S_B}', f'v_perm_b32 v{O+2*j+1}, v{V_WTD+4+j}, v{V_WTD+j}, s{S_C_}']
    for i in range(8): a.append(('ds', f'ds_write_b32 v{V_A2}, v{O+i} offset:{i*144}', 'wtw'))
    b = [f'v_lshrrev_b32 v{V_A0}, 3, v{L}', f's_lshl_b32 s{S_B}, s{S_WV}, 4', f'v_add_u32 v{V_A0}, s{S_B}, v{V_A0}',
         f'v_and_b32 v{V_A1}, 7, v{L}', f's_lshl_b32 s{S_C_}, s{S_WV}, 1',
         f'v_xor_b32 v{V_A2}, s{S_C_}, v{V_A1}', f'v_lshlrev_b32 v{V_A2}, 4, v{V_A2}',
         f'v_mul_u32_u24 v{V_A3}, 144, v{V_A0}', f'v_add_u32 v{V_A3}, {L_WTB}, v{V_A3}', f'v_add_u32 v{O}, v{V_A3}, v{V_A2}',
         f'v_xor_b32 v{V_A2}, 16, v{V_A2}', f'v_add_u32 v{O+1}, v{V_A3}, v{V_A2}',
         ('ds', f'ds_read_b128 v[{V_WTD}:{V_WTD+3}], v{O}'), ('ds', f'ds_read_b128 v[{V_WTD+4}:{V_WTD+7}], v{O+1} offset:{8*144}', 'wtr'),
         f'v_mul_u32_u24 v{V_A0}, {WSTR}, v{V_A0}', f'v_lshl_add_u32 v{V_A0}, v{V_A1}, 4, v{V_A0}', f'v_add_u32 v{V_A1}, {8*WSTR}, v{V_A0}',
         f's_mul_i32 s{S_B}, s{S_CBLK}, {64*WSTR}', f's_lshl_b32 s{S_C_}, s{S_K2}, 7', f's_add_u32 s{S_B}, s{S_B}, s{S_C_}', f's_add_u32 s{S_B}, s{S_B}, {WS_WT}',
         ('call', lambda: lg.wait('wtr')),
         ('vm', f'buffer_store_dwordx4 v[{V_WTD}:{V_WTD+3}], v{V_A0}, s[{S_WS}:{S_WS+3}], s{S_B} offen sc1', 'wtst'),
         ('vm', f'buffer_store_dwordx4 v[{V_WTD+4}:{V_WTD+7}], v{V_A1}, s[{S_WS}:{S_WS+3}], s{S_B} offen sc1', 'wtst')]
    return a, b
class LG:
    def __init__(self, k): self.k = k; self.q = []; self.ever = set()
    def issue(self, text, tag=None): self.k(text); self.q.append(tag); self.ever.add(tag)
    def wait(self, tag):
        idx = [i for i, t in enumerate(self.q) if t == tag]
        if not idx: return
        n = len(self.q) - 1 - idx[-1]
        self.k(f's_waitcnt lgkmcnt({min(n, 15)})')
        self.q = self.q[idx[-1]+1:] if n <= 15 else self.q[len(self.q)-15:]
    def drain(self): self.k('s_waitcnt lgkmcnt(0)'); self.q = []
class Sched2:
    def __init__(self, k, vm, lg): self.k = k; self.vm = vm; self.lg = lg; self.q = []; self.lo = []
    def add(self, items, lo=False): (self.lo if lo else self.q).extend(items)
    def emit(self, e):
        if isinstance(e, tuple):
            if e[0] == 'vm': self.vm.issue(e[1], e[2]); return 1
            if e[0] == 'ds': self.lg.issue(e[1], e[2] if len(e) > 2 else None); return 1
            if e[0] == 'call': e[1](); return e[2] if len(e) > 2 else 1
            if e[0] == 'grp':
                return sum(self.emit(x) for x in e[1])
        self.k(e); return 1
    @staticmethod
    def cost(e):
        if isinstance(e, str): return 2 if e.startswith(('v_exp', 'v_rcp', 'v_sin', 'v_cos', 'v_sqrt')) else 1
        return 1
    def pop(self, budget):
        c = 0
        while self.q or self.lo:
            src = self.q or self.lo
            if c + self.cost(src[0]) > budget: break
            e = src.pop(0); n = self.emit(e)
            c += max(n, self.cost(e))
        return c
    def flush(self):
        while self.q or self.lo: self.emit((self.q or self.lo).pop(0))
def ffn_unit(p, t, e, packed=False):
    a = acc(p, t, e); E = ET
    out = []
    if packed:
        for half in range(2):
            g = a + 4*half; u = g + 8
            for r in (0, 2): out.append(f'v_pk_mul_f32 v[{E+r}:{E+r+1}], v[{g+r}:{g+r+1}], v[{V_C1P+2*e}:{V_C1P+2*e+1}]')
            out.append(f'v_exp_f32 v{E}, v{E}'); out.append(f'v_pk_mul_f32 v[{g}:{g+1}], v[{g}:{g+1}], v[{u}:{u+1}]')
            out.append(f'v_exp_f32 v{E+1}, v{E+1}'); out.append(f'v_pk_mul_f32 v[{g+2}:{g+3}], v[{g+2}:{g+3}], v[{u+2}:{u+3}]')
            out.append(f'v_exp_f32 v{E+2}, v{E+2}'); out.append(f'v_exp_f32 v{E+3}, v{E+3}')
            out.append(f'v_pk_fma_f32 v[{E}:{E+1}], v[{E}:{E+1}], v[{V_C2P+2*e}:{V_C2P+2*e+1}], v[{V_C2P+2*e}:{V_C2P+2*e+1}]')
            out.append(f'v_pk_fma_f32 v[{E+2}:{E+3}], v[{E+2}:{E+3}], v[{V_C2P+2*e}:{V_C2P+2*e+1}], v[{V_C2P+2*e}:{V_C2P+2*e+1}]')
            for r in range(4): out.append(f'v_rcp_f32 v{E+r}, v{E+r}')
            out.append('s_nop 0' if half == 0 else f's_add_u32 s{S_EP}, s{S_HO}, {(12*p + t)*1024 + e*112*1024}')
            for r in (0, 2): out.append(f'v_pk_mul_f32 v[{g+r}:{g+r+1}], v[{g+r}:{g+r+1}], v[{E+r}:{E+r+1}]')
            out.append(f'v_cvt_pk_bf16_f32 v{E+4+2*half}, v{g}, v{g+1}')
            out.append(f'v_cvt_pk_bf16_f32 v{E+5+2*half}, v{g+2}, v{g+3}')
    else:
        for half in range(2):
            g = a + 4*half; u = g + 8
            M1 = [f'v_mul_f32 v{E+r}, v{g+r}, v{V_C1+e}' for r in range(4)]
            EX = [f'v_exp_f32 v{E+r}, v{E+r}' for r in range(4)]
            M2 = [f'v_mul_f32 v{g+r}, v{g+r}, v{u+r}' for r in range(4)]
            FM = [f'v_fma_f32 v{E+r}, v{E+r}, v{V_C2+e}, v{V_C2+e}' for r in range(4)]
            RC = [f'v_rcp_f32 v{E+r}, v{E+r}' for r in range(4)]
            M3 = [f'v_mul_f32 v{g+r}, v{g+r}, v{E+r}' for r in range(4)]
            out += [M1[0], M1[1], EX[0], M1[2], EX[1], M1[3], EX[2], M2[0], EX[3], M2[1], FM[0], M2[2], FM[1], RC[0], FM[2], RC[1], FM[3], RC[2], M2[3], RC[3], M3[0]]
            out.append(f's_add_u32 s{S_EP}, s{S_HO}, {(12*p + t)*1024 + e*112*1024}' if half == 1 else M3[1])
            out += ([M3[1]] if half == 1 else []) + [M3[2], M3[3]]
            out.append(f'v_cvt_pk_bf16_f32 v{E+4+2*half}, v{g}, v{g+1}')
            out.append(f'v_cvt_pk_bf16_f32 v{E+5+2*half}, v{g+2}, v{g+3}')
    out.append(('vm', f'buffer_store_dwordx4 v[{E+4}:{E+7}], v{V_HO}, s[{S_WS}:{S_WS+3}], s{S_EP} offen sc1', f'hst{p}'))
    return out
def p1_body(k, isB, st):
    nm = 'B' if isB else 'A'
    vm = VM(k); lg = LG(k); sc = Sched2(k, vm, lg)
    L = V_L
    def dma_group(i):
        p, s_ = i >> 3, i & 7; slot = i & 3
        ch = []
        pre = [f's_add_u32 s{S_ST}, s{S_ROT}, {s_}', f's_and_b32 s{S_ST}, s{S_ST}, 7']
        if i < 8:
            pre += [f's_lshl_b32 s{S_SX}, s{S_ST}, 7', f's_add_u32 m0, s{S_MX}, {L_X + slot*16384}', f's_add_u32 s{S_SX}, s{S_XO}, s{S_SX}']
            for e in range(4):
                ch.append(('grp', pre + [('vm', f'buffer_load_dwordx4 v{V_XD+e}, s[{S_X}:{S_X+3}], s{S_SX} offen offset:{e*1024} lds', ('st', i))])); pre = []
        if isB and p == 0:
            pre += [f's_lshl_b32 s{S_SW}, s{S_ST}, 14', f's_add_u32 m0, s{S_MX}, {L_W + slot*16384}', f's_add_u32 s{S_SW}, s{S_FO}, s{S_SW}']
            for e in range(4):
                ch.append(('grp', pre + [('vm', f'buffer_load_dwordx4 v{V_FD}, s[{S_TAB}:{S_TAB+3}], s{S_SW} offen offset:{e*1024} lds', ('st', i))])); pre = []
        else:
            pre += [f's_mul_i32 s{S_SW}, s{S_ST}, {64*3584}', f's_add_u32 m0, s{S_MW1}, {slot*16384}', f's_add_u32 s{S_SW}, s{S_WO0 if p == 0 else S_WO1}, s{S_SW}']
            for e in range(2):
                ch.append(('grp', pre + [('vm', f'buffer_load_dwordx4 v{V_W1D+e}, s[{S_W1}:{S_W1+3}], s{S_SW} offen offset:{e*1024} lds', ('st', i))])); pre = []
            pre = [f's_add_u32 m0, s{S_MW1}, {slot*16384 + 8192}', 's_nop 0']
            for e in range(2):
                ch.append(('grp', pre + [('vm', f'buffer_load_dwordx4 v{V_W3D+e}, s[{S_W3}:{S_W3+3}], s{S_SW} offen offset:{e*1024} lds', ('st', i))])); pre = []
        return ch
    def reads(n):
        i, ks = n >> 2, n & 3
        p = i >> 3; slot = i & 3; b0 = AF + 8*(n % 3)
        out = []
        if p == 0:
            kk = 4*i + ks
            for e in range(2):
                a = xf(e, kk)
                out.append(('ds', f'ds_read_b128 a[{a}:{a+3}], v{V_XA+ks} offset:{slot*16384 + e*4096}', ('fr', n)))
        for t in range(2):
            b = b0 + 4*t
            if isB and p == 0:
                out.append(('ds', f'ds_read_b128 v[{b}:{b+3}], v{V_FA} offset:{slot*16384 + (ks*4+t)*1024}', ('fr', n)))
            else:
                for part in range(2):
                    out.append(('ds', f'ds_read_b64_tr_b16 v[{b+2*part}:{b+2*part+1}], v{V_WA+t} offset:{slot*16384 + (16*ks+4*part)*128}', ('fr', n)))
        return out
    lab = f'L_cs1d_{nm}'
    g = ([f's_cmp_eq_u32 s{S_PAR}, 0', f's_cbranch_scc1 {lab}'] if isB else []) + \
        [f's_cmp_eq_u32 s{S_PAR}, 0', f's_cselect_b32 s{S_C_}, s{S_WO0}, s{S_WO1}', f's_mul_i32 s{S_B}, s{S_PP}, {64*3584}', f's_add_u32 s{S_B}, s{S_B}, s{S_C_}',
         f's_lshl_b32 s{S_C_}, s{S_WV}, 11', f's_add_u32 m0, s{S_C_}, {L_CSW}', 's_nop 0']
    for e in range(2): g.append(('call', lambda e=e: k(f'buffer_load_dwordx4 v{V_W1D+e}, s[{S_W1}:{S_W1+3}], s{S_B} offen offset:{e*1024} lds')))
    g += [f's_add_u32 m0, s{S_C_}, {L_CSW + 8192}', 's_nop 0']
    for e in range(2): g.append(('call', lambda e=e: k(f'buffer_load_dwordx4 v{V_W3D+e}, s[{S_W3}:{S_W3+3}], s{S_B} offen offset:{e*1024} lds')))
    g.append(lab + ':')
    cs_side = ('grp', g)
    srd(k, S_WR, 66, 67, 2048*257*2); srd(k, S_WI, 68, 69, 2048*257*2)
    if st: st.stamp('karg')
    side_loads_stats(k, vm)
    for x in dma_group(0): sc.emit(x)
    if 'touch0' in OPT:
        k(f's_lshr_b32 s{T}, s2, 6'); k(f's_lshl_b32 s{T}, s{T}, 5'); k(f's_lshl_b32 s{T+1}, s{S_WV}, 3'); k(f's_add_u32 s{T}, s{T}, s{T+1}')
        k(f'v_lshrrev_b32 v{V_A0}, 3, v{L}'); k(f'v_add_u32 v{V_A0}, s{T}, v{V_A0}'); k(f'v_lshlrev_b32 v{V_A0}, 10, v{V_A0}')
        k(f'v_and_b32 v{V_A1}, 7, v{L}'); k(f'v_lshl_add_u32 v{V_A0}, v{V_A1}, 7, v{V_A0}')
        vm.issue(f'buffer_load_dword v0, v{V_A0}, s[{S_X}:{S_X+3}], s{S_XO} offen', 'tch')
        k(f's_and_b32 s{T}, s{S_RB}, 7'); k(f's_lshl_b32 s{T}, s{T}, 6'); k(f'v_add_u32 v{V_A0}, s{T}, v{L}')
        lab = f'L_t0_{nm}'
        if isB:
            k(f's_cmp_ge_u32 s{S_WV}, 2'); k(f's_cbranch_scc1 {lab}w')
            k(f's_lshl_b32 s{T}, s{T}, 8'); k(f's_lshl_b32 s{T+1}, s{S_WV}, 13'); k(f's_add_u32 s{T}, s{T}, s{T+1}'); k(f's_add_u32 s{T}, s{T}, s{S_FO}')
            k(f'v_lshlrev_b32 v{V_A0}, 7, v{L}')
            k(f'buffer_load_dword v0, v{V_A0}, s[{S_TAB}:{S_TAB+3}], s{T} offen'); k(f's_branch {lab}e')
            k.label(f'{lab}w')
        k(f'v_mul_u32_u24 v{V_A0}, 3584, v{V_A0}')
        k(f's_cmp_ge_u32 s{S_WV}, 2'); k(f's_cselect_b32 s{T}, s{S_WO1}, s{S_WO0}')
        k(f's_bitcmp1_b32 s{S_WV}, 0'); k(f's_cbranch_scc1 {lab}3')
        k(f'buffer_load_dword v0, v{V_A0}, s[{S_W1}:{S_W1+3}], s{T} offen'); k(f's_branch {lab}e')
        k.label(f'{lab}3')
        k(f'buffer_load_dword v0, v{V_A0}, s[{S_W3}:{S_W3+3}], s{T} offen')
        k.label(f'{lab}e')
        vm.q.append('tch')
    if st: st.stamp('iss0')
    prologue2(k)
    if 'early' in OPT:
        lab = f'L_early_{nm}'
        k(f's_cmp_eq_u32 s{S_WV}, 0'); k(f's_cbranch_scc0 {lab}1')
        k(f'v_lshlrev_b32 v{V_A0}, 18, v{L}'); k(f'buffer_load_dword v0, v{V_A0}, s[{S_WS}:{S_WS+3}], 0 offen'); k(f's_branch {lab}e')
        k.label(f'{lab}1')
        k(f's_cmp_eq_u32 s{S_WV}, 1'); k(f's_cbranch_scc0 {lab}2')
        k(f'v_lshlrev_b32 v{V_A0}, 15, v{L}'); k(f'buffer_load_dword v0, v{V_A0}, s[{S_OUT}:{S_OUT+3}], 0 offen'); k(f's_branch {lab}e')
        k.label(f'{lab}2')
        k(f's_getpc_b64 s[{S_CD}:{S_CD+1}]'); k.label(f'{lab}pc')
        k(f's_mov_b32 s{S_CD+2}, 0x8000'); k(f's_mov_b32 s{S_CD+3}, 0x20000')
        k(f's_lshr_b32 s{T}, s2, 3'); k(f's_and_b32 s{T}, s{T}, 1'); k(f's_lshl_b32 s{T}, s{T}, 1'); k(f's_and_b32 s{T+1}, s{S_WV}, 1'); k(f's_add_u32 s{T}, s{T}, s{T+1}'); k(f's_lshl_b32 s{T}, s{T}, 13')
        k(f'v_lshlrev_b32 v{V_A0}, 7, v{L}'); k(f'buffer_load_dword v0, v{V_A0}, s[{S_CD}:{S_CD+3}], s{T} offen')
        k.label(f'{lab}e')
    k('s_waitcnt lgkmcnt(0)')
    k(f's_mul_i32 s{S_NON}, s{S_NON}, 0x19660D'); k(f's_add_u32 s{S_NON}, s{S_NON}, 0x3C6EF35F')
    if st: st.stamp('setup')
    for x in dma_group(1): sc.emit(x)
    if st: st.stamp('iss1')
    stats_code(k, vm)
    if st: st.stamp('side')
    vm.wait(('st', 0)); k('s_barrier')
    if st: st.stamp('st0')
    for x in reads(0) + reads(1): sc.emit(x)
    ev = {}
    evlo = {}
    def at(n, items, lo=False): (evlo if lo else ev).setdefault(n, []).extend(items)
    def flag_store(off_items, tag):
        lab = f'L_fl_{nm}_{tag}'
        return ('grp', [f's_cmp_lg_u32 s{S_WV}, 0', f's_cbranch_scc1 {lab}'] + off_items +
                [f'v_mov_b32 v{V_SR}, s{S_NON}',
                 ('call', lambda: k(f'buffer_store_dword v{V_SR}, v{V_L0}, s[{S_WS}:{S_WS+3}], s{S_F0} offen sc1')), lab + ':'])
    bar_pre = {}
    bar_post = {}
    wta, wtb = wt_items(vm, lg)
    at(8, wta); at(14, wtb)
    bar_pre[30] = ['wtst']
    bar_post[30] = [flag_store([f's_lshl_b32 s{S_F0}, s{S_CBLK}, 8', f's_lshl_b32 s{S_F1}, s{S_K2}, 2', f's_add_u32 s{S_F0}, s{S_F0}, s{S_F1}', f's_add_u32 s{S_F0}, s{S_F0}, {WS_WTF}'], 'wt')]
    CT = ET + 8
    cs_at = {}; direct = {}
    def cs_store(lab):
        return ('grp', [f's_cmp_eq_u32 s{S_D}, 0', f's_cbranch_scc1 {lab}',
                        f's_lshl_b32 s{S_B}, s{S_CB}, 3', f's_lshl_b32 s{S_C_}, s{S_WC}, 1', f's_add_u32 s{S_B}, s{S_B}, s{S_C_}', f's_add_u32 s{S_B}, s{S_B}, s{S_WR_}',
                        f's_lshl_b32 s{S_C_}, s{S_PAR}, 2', f's_add_u32 s{S_B}, s{S_B}, s{S_C_}', f's_lshl_b32 s{S_B}, s{S_B}, 3', f's_add_u32 s{S_B}, s{S_B}, s{S_PP}', f's_lshl_b32 s{S_B}, s{S_B}, 8', f's_add_u32 s{S_B}, s{S_B}, {WS_CS}',
                        f'v_mov_b32 v{CT+1}, s{S_NON}', f'v_lshlrev_b32 v{V_A0}, 3, v{L}', f'v_cmp_gt_u32 vcc, 32, v{L}', f'v_mov_b32 v{V_A1}, 0x7fffffff', 's_nop 0',
                        f'v_cndmask_b32 v{V_A0}, v{V_A1}, v{V_A0}, vcc',
                        ('call', lambda: k(f'buffer_store_dwordx2 v[{CT}:{CT+1}], v{V_A0}, s[{S_WS}:{S_WS+3}], s{S_B} offen sc1')), lab + ':'])
    lab = f'L_cs1c_{nm}'
    CF = V_CSG
    g = ([f's_cmp_eq_u32 s{S_PAR}, 0', f's_cselect_b32 s{S_D}, 0, 1', f's_cbranch_scc1 {lab}'] if isB else [f's_mov_b32 s{S_D}, 1']) + [
         f'v_mov_b32 v{V_A0}, v{V_WA}', f's_cmp_eq_u32 s{S_WR_}, 0', f's_cbranch_scc1 {lab}a', f'v_mov_b32 v{V_A0}, v{V_WA+1}', lab + 'a:',
         f'v_add_u32 v{V_A0}, {L_CSW - L_W}, v{V_A0}']
    for ks in range(4):
        b = CF + 4*(ks & 1)
        for part in range(2):
            g.append(f'ds_read_b64_tr_b16 v[{b+2*part}:{b+2*part+1}], v{V_A0} offset:{(16*ks+4*part)*128}')
        if ks & 1:
            g.append('s_waitcnt lgkmcnt(0)')
            for kk_ in (ks - 1, ks):
                b2 = CF + 4*(kk_ & 1)
                g.append(f'v_mfma_f32_32x32x16_bf16 v[{CT}:{CT+15}], v[{V_ONE}:{V_ONE+3}], v[{b2}:{b2+3}], ' + ('0' if kk_ == 0 else f'v[{CT}:{CT+15}]'))
    g.append(lab + ':')
    at(6, [('grp', g)])
    at(7, [cs_store(f"L_csst_{nm}_1")])
    if 'notouch' not in OPT:
        for j in range(7):
            lab = f'L_tw_{nm}_{j}'
            g = [f's_cmp_lg_u32 s{S_WV}, {j & 3}', f's_cbranch_scc1 {lab}', f'v_lshlrev_b32 v{V_TCH+1}, 7, v{L}', f's_lshr_b32 s{S_F0}, s2, 3',
                 f's_mul_i32 s{S_F0}, s{S_F0}, {7*8192}', f's_add_u32 s{S_F0}, s{S_F0}, {j*8192}',
                 ('call', lambda: k(f'buffer_load_dword v0, v{V_TCH+1}, s[{S_W2}:{S_W2+3}], s{S_F0} offen')), lab + ':']
            at(TOUCH_AT + TOUCH_STEP*j, [('grp', g)])
        for wi, srd_ in (((0, S_W1), (1, S_W3)) if 'touch0' not in OPT else ()):
            lab = f'L_tp_{nm}_{wi}'
            g = [f's_cmp_lg_u32 s{S_WV}, {wi}', f's_cbranch_scc1 {lab}', f's_and_b32 s{S_F0}, s{S_RB}, 7', f's_lshl_b32 s{S_F0}, s{S_F0}, 6',
                 f'v_add_u32 v{V_TCH+1}, s{S_F0}, v{L}', f'v_mul_u32_u24 v{V_TCH+1}, 3584, v{V_TCH+1}',
                 ('call', lambda srd_=srd_: k(f'buffer_load_dword v0, v{V_TCH+1}, s[{srd_}:{srd_+3}], s{S_WO1} offen')), lab + ':']
            at(TOUCH1_AT + 2*wi, [('grp', g)])
        lab = f'L_tch_{nm}'
        g = [f's_cmp_lg_u32 s{S_WV}, 3', f's_cbranch_scc1 {lab}b', f'v_lshlrev_b32 v{V_TCH+1}, 7, v{L}', f's_lshr_b32 s{S_F0}, s2, 3',
             f's_min_u32 s{S_F0}, s{S_F0}, 6', f's_lshl_b32 s{S_F0}, s{S_F0}, 13', f's_add_u32 s{S_F1}, s{S_F0}, {TAB_E64}',
             ('call', lambda: k(f'buffer_load_dword v0, v{V_TCH+1}, s[{S_TAB}:{S_TAB+3}], s{S_F1} offen')), lab + 'b:']
        at(TOUCH_AT + 2, [('grp', g)])
        g = [f's_cmp_lg_u32 s{S_WV}, 2', f's_cbranch_scc1 {lab}c', f'v_lshlrev_b32 v{V_TCH+1}, 7, v{L}', f's_lshr_b32 s{S_F0}, s2, 3',
             f's_min_u32 s{S_F0}, s{S_F0}, 1', f's_lshl_b32 s{S_F0}, s{S_F0}, 13',
             f's_getpc_b64 s[{S_CD}:{S_CD+1}]', f'{lab}pc:', f's_add_u32 s{S_CD}, s{S_CD}, L_common-{lab}pc', f's_addc_u32 s{S_CD+1}, s{S_CD+1}, 0',
             f's_mov_b32 s{S_CD+2}, L_codeend-L_common', f's_mov_b32 s{S_CD+3}, 0x20000',
             ('call', lambda: k(f'buffer_load_dword v0, v{V_TCH+1}, s[{S_CD}:{S_CD+3}], s{S_F0} offen')), lab + 'c:']
        at(TOUCH_AT + 6, [('grp', g)])
    stl = [f'buffer_load_dwordx2 v[{V_STG+2*e}:{V_STG+2*e+1}], v{V_A2+e}, s[{S_WS}:{S_WS+3}], s{S_C_} offen sc1' for e in range(2)]
    staddr = [f'v_and_b32 v{V_A0}, 31, v{L}',
              f'v_and_b32 v{V_A1}, 3, v{V_A0}', f'v_lshlrev_b32 v{V_A2}, 8, v{V_A1}',
              f'v_lshrrev_b32 v{V_A1}, 3, v{V_A0}', f'v_lshl_add_u32 v{V_A2}, v{V_A1}, 4, v{V_A2}',
              f'v_bfe_u32 v{V_A1}, v{V_A0}, 2, 1', f'v_lshl_add_u32 v{V_A2}, v{V_A1}, 3, v{V_A2}',
              f's_lshl_b32 s{S_C_}, s{S_WR_}, 7', f'v_add_u32 v{V_A2}, s{S_C_}, v{V_A2}',
              f'v_add_u32 v{V_A3}, 64, v{V_A2}',
              f's_lshl_b32 s{S_C_}, s{S_RB}, 10', f's_add_u32 s{S_C_}, s{S_C_}, {WS_ST}']
    at(9, staddr + [('vm', l, 'stg') for l in stl])
    def st_check():
        vm.wait('stg')
        tag_check(k, f'st{nm}', [V_STG+1, V_STG+3], staddr + stl)
    stc = [('call', st_check, 8)]
    for e in range(2):
        d = V_STG + 2*e
        stc += [f'v_and_b32 v{d+1}, 0xffff0000, v{d}',
                f'v_and_b32 v{d}, 0xffff, v{d}', f'v_xor_b32 v{d}, 0x8000, v{d}', f'v_lshl_or_b32 v{d}, v{d}, 16, v{d}',
                f'v_mul_f32 v{V_C2+e}, v{d+1}, v{d+1}', f'v_rcp_f32 v{d+1}, v{d+1}', f'v_cmp_gt_u32 vcc, 32, v{L}', 's_nop 0',
                f'v_mul_f32 v{V_C1+e}, 0xbfb8aa3b, v{d+1}', f'v_cndmask_b32 v{V_BX+4*e}, 0, v{d}, vcc']
        if isB:
            stc += [f'v_and_b32 v{V_A0}, 31, v{L}', f'v_lshlrev_b32 v{V_A0}, 2, v{V_A0}', f's_lshl_b32 s{S_C_}, s{S_WR_}, 8', f's_add_u32 s{S_C_}, s{S_C_}, {L_RS + 128*e}',
                    f'v_add_u32 v{V_A0}, s{S_C_}, v{V_A0}', ('ds', f'ds_write_b32 v{V_A0}, v{d+1}')]
    at(18, stc)
    def cs_cons(p):
        if isB and p == 0: return
        n0 = 32*p
        addr = [f'v_and_b32 v{V_A0}, 31, v{L}', f'v_lshlrev_b32 v{V_A0}, 3, v{V_A0}', f'v_lshrrev_b32 v{V_A1}, 5, v{L}', f'v_lshl_add_u32 v{V_A0}, v{V_A1}, 10, v{V_A0}',
                f's_lshl_b32 s{S_B}, s{S_CB}, 3', f's_lshl_b32 s{S_C_}, s{S_WC}, 1', f's_add_u32 s{S_B}, s{S_B}, s{S_C_}', f's_add_u32 s{S_B}, s{S_B}, s{S_WR_}',
                f's_add_u32 s{S_B}, s{S_B}, {4*p}', f's_lshl_b32 s{S_B}, s{S_B}, 11', f's_add_u32 s{S_B}, s{S_B}, {WS_CS}']
        lds = [f'buffer_load_dwordx2 v[{V_CSG+2*i}:{V_CSG+2*i+1}], v{V_A0}, s[{S_WS}:{S_WS+3}], s{S_B} offen offset:{i*256} sc1' for i in range(4)]
        at((CS0_LD if p == 0 else 34), addr + [('vm', l, f'csg{p}') for l in lds])
        def chk():
            vm.wait(f'csg{p}')
            tag_check(k, f'cs{nm}{p}', [V_CSG+1, V_CSG+3, V_CSG+5, V_CSG+7], addr + lds)
        g = V_CSG
        at((CS0_LD + 12 if p == 0 else 46), [('call', chk, 12),
                     f'v_add_f32 v{g}, v{g}, v{g+2}', f'v_add_f32 v{g+4}, v{g+4}, v{g+6}', f'v_add_f32 v{g}, v{g}, v{g+4}', f'v_mov_b32 v{g+1}, v{g}', 's_nop 1',
                     f'v_permlane32_swap_b32 v{g}, v{g+1}', 's_nop 0', f'v_add_f32 v{g}, v{g}, v{g+1}',
                     f'v_cvt_pk_bf16_f32 v{g+1}, v{g}, v{g}', f'v_and_b32 v{g+1}, 0xffff0000, v{g+1}', f'v_sub_f32 v{g+2}, v{g}, v{g+1}',
                     f'v_cvt_pk_bf16_f32 v{g+4}, v{g+1}, v{g+2}', f'v_cmp_gt_u32 vcc, 32, v{L}', f'v_mov_b32 v{g+5}, 0', f'v_mov_b32 v{g+6}, 0',
                     f'v_cndmask_b32 v{g+4}, 0, v{g+4}, vcc', f'v_mov_b32 v{g+7}, 0',
                     f's_lshl_b32 s{S_C_}, s{S_WC}, 1', f's_add_u32 s{S_C_}, s{S_C_}, s{S_WR_}', f's_lshl_b32 s{S_C_}, s{S_C_}, 10', f's_add_u32 s{S_C_}, s{S_C_}, {L_AX}',
                     f'v_lshl_add_u32 v{V_A0}, v{L}, 4, s{S_C_}', ('ds', f'ds_write_b128 v{V_A0}, v[{g+4}:{g+7}]', f'axw{p}')])
        nb = CS0_LD + 16 if p == 0 else 50
        bar_lg.setdefault(nb, []).append(f'axw{p}')
        AX = V_WTD
        rd = [f's_lshl_b32 s{S_C_}, s{S_WC}, 11', f's_add_u32 s{S_C_}, s{S_C_}, {L_AX}', f'v_lshl_add_u32 v{V_A0}, v{L}, 4, s{S_C_}',
              ('ds', f'ds_read_b128 v[{AX}:{AX+3}], v{V_A0}'), ('ds', f'ds_read_b128 v[{AX+4}:{AX+7}], v{V_A0} offset:1024', f'axr{p}')]
        at(nb, rd)
        mm = [('call', lambda: lg.wait(f'axr{p}'))]
        for t in range(2):
            for e in range(2):
                a = acc(p, t, e)
                mm.append(f'v_mfma_f32_32x32x16_bf16 v[{a}:{a+15}], v[{AX+4*t}:{AX+4*t+3}], v[{V_BX+4*e}:{V_BX+4*e+3}], v[{a}:{a+15}]')
        at(nb + 2, mm)
    bar_lg = {14: ['wtw']}
    cs_cons(0); cs_cons(1)
    if not isB:
        items = []
        for t in range(2):
            for e in range(2): items += ffn_unit(0, t, e)
        at(EPI0_AT, items, lo=True)
        bar_pre[62] = ['hst0']
        bar_post[62] = [flag_store([f's_lshl_b32 s{S_F0}, s{S_RB}, 7', f's_lshl_b32 s{S_F1}, s{S_CB}, 2', f's_add_u32 s{S_F0}, s{S_F0}, s{S_F1}', f's_add_u32 s{S_F0}, s{S_F0}, {WS_HF}'], 'h0')]
    else:
        items = []
        RS = V_WTD
        for e in range(2):
            items += [f'v_lshrrev_b32 v{V_EA}, 5, v{L}', f'v_lshlrev_b32 v{V_EA}, 4, v{V_EA}', f's_lshl_b32 s{S_EP}, s{S_WR_}, 8', f's_add_u32 s{S_EP}, s{S_EP}, {L_RS + 128*e}',
                      f'v_add_u32 v{V_EA}, s{S_EP}, v{V_EA}']
            for q in range(4): items.append(('ds', f'ds_read_b128 v[{RS+4*q}:{RS+4*q+3}], v{V_EA} offset:{q*32}', f'rs{e}'))
            items.append(('call', lambda e=e: lg.wait(f'rs{e}')))
            for t in range(2):
                a = acc(0, t, e)
                for q in range(4):
                    for r in range(4): items.append(f'v_mul_f32 v{a+4*q+r}, v{a+4*q+r}, v{RS+4*q+r}')
                    E = ET + 2*(q & 3)
                    items.append(f'v_cvt_pk_bf16_f32 v{E}, v{a+4*q}, v{a+4*q+1}'); items.append(f'v_cvt_pk_bf16_f32 v{E+1}, v{a+4*q+2}, v{a+4*q+3}')
                    items.append(('ds', f'ds_write_b64 v{V_UTW}, v[{E}:{E+1}] offset:{L_UT + t*16*528 + e*128 + q*32}', 'utw_last' if (e, t, q) == (1, 1, 3) else 'utw'))
        at(33, items, lo=True)
        UTB = 42; UFL = 54
        bar_lg.setdefault(UTB, []).append('utw_last')
        rb = []
        for half in range(2):
            for e in range(4):
                E = ET + 4*e
                rb.append(('ds', f'ds_read_b128 v[{E}:{E+3}], v{V_UTR} offset:{L_UT + (4*half+e)*2*528}', f'utr{half}'))
            rb.append(('call', lambda half=half: lg.wait(f'utr{half}')))
            for e in range(4):
                E = ET + 4*e
                rb.append(f's_add_u32 s{S_EP}, s{S_UO}, {(4*half+e)*2*CSTR}')
                rb.append(('vm', f'buffer_store_dwordx4 v[{E}:{E+3}], v{V_UO}, s[{S_WS}:{S_WS+3}], s{S_EP} offen sc1', 'ust_last' if (half, e) == (1, 3) else 'ust'))
            rb.append('s_nop 0'); rb.append('s_nop 0')
        at(UTB, rb, lo=True)
        bar_pre[UFL] = ['ust_last']
        bar_post[UFL] = [flag_store([f's_lshl_b32 s{S_F0}, s{S_G}, 7', f's_lshl_b32 s{S_F1}, s{S_RB}, 2', f's_add_u32 s{S_F0}, s{S_F0}, s{S_F1}', f's_add_u32 s{S_F0}, s{S_F0}, {WS_UF}'], 'u')]
    NST = 64
    dmaq = [cs_side, ('call', lambda: side_loads_wt(k, vm), 12)] + dma_group(2) + dma_group(3); dstep = [1]; dcnt = [0]
    BARGAP = 1; PF0 = 50 if isB else 46
    pf = tail_prefetch_items()
    for n in range(NST):
        i, ks = n >> 2, n & 3
        p = i >> 3
        mand = []
        dobar = (ks == 2 and i + 1 < 16) or n == 62
        def barrier_now():
            for tg in bar_pre.get(n, []): assert tg in vm.ever or 'noepi' in OPT, (n, tg)
            if 'hst0' in bar_pre.get(n, []): assert not sc.lo and not sc.q, (n, len(sc.lo), len(sc.q))
            for tg in bar_lg.get(n, []): assert tg in lg.ever, (n, tg)
            vm.wait_many(([('st', i + 1)] if i + 1 < 16 else []) + bar_pre.get(n, []))
            for tg in bar_lg.get(n, []): lg.wait(tg)
            lg.wait(('fr', n + 1))
            if 'nobar' not in OPT: k('s_barrier')
            for x in bar_post.get(n, []): sc.emit(x)
            if i + 4 < 16 and 'nodma' not in OPT:
                assert not dmaq or n <= 6, (n, len(dmaq))
                dmaq.extend(dma_group(i + 4)); dstep[0] = max(1, 16 // len(dmaq)); dcnt[0] = 0
        rd = reads(n + 2) if (n + 2 < NST and 'noreads' not in OPT) else []
        if n in ev and not dobar: sc.add(ev.pop(n))
        if n in evlo and not dobar:
            x_ = evlo.pop(n)
            if 'noepi' not in OPT or isB: sc.add(x_, lo=True)
        for x in direct.get(n, []): k(x)
        lg.wait(('fr', n))
        if st and n in (tuple(range(2, 34, 2)) if 'p0ts' in OPT else (33, 39, 42, 43, 44, 46, 47, 50, 54, 58, 59, 62) if 'bts' in OPT else () if 'g2ts' in OPT else (32,) if 'tailts' in OPT else (16, 32, 48) if 'fine' in OPT else (8, 16, 24, 32, 40, 48, 56)): st.stamp(f'n{n}')
        kk = 4*(i & 7) + ks
        b0 = AF + 8*(n % 3)
        mand = rd + mand
        gap = 0
        for t in range(2):
            for e in range(2):
                a = acc(p, t, e); d = f'v[{a}:{a+15}]'; c = '0' if kk == 0 else d
                x = f'a[{xf(e, kk)}:{xf(e, kk)+3}]'; w = f'v[{b0+4*t}:{b0+4*t+3}]'
                if isB and p == 0: k(f'v_mfma_f32_32x32x16_bf16 {d}, {x}, {w}, {c}')
                else: k(f'v_mfma_f32_32x32x16_bf16 {d}, {w}, {x}, {c}')
                used = 0
                if dobar and gap == BARGAP:
                    barrier_now(); used += 3
                    if n in ev: sc.add(ev.pop(n))
                    if n in evlo:
                        x_ = evlo.pop(n)
                        if 'noepi' not in OPT or isB: sc.add(x_, lo=True)
                if not (dobar and gap < BARGAP):
                    g0 = BARGAP if dobar else 0
                    nm_ = (len(mand) + (3 - gap)) // (4 - gap)
                    for _ in range(nm_):
                        used += sc.emit(mand.pop(0))
                if dmaq and dcnt[0] % dstep[0] == 0: used += sc.emit(dmaq.pop(0))
                elif pf and not dmaq and n >= PF0 and (4*n + gap) % 2 == 1 and (len(pf) > 4 or n >= 56):
                    while pf and not any(isinstance(x_, tuple) and x_[0] == 'vm' for x_ in pf[0][1]): used += sc.emit(pf.pop(0))
                    used += sc.emit(pf.pop(0))
                dcnt[0] += 1
                if gap == 3 and n in cs_at:
                    for x_ in cs_at[n]: used += sc.emit(x_)
                sc.pop(max(0, (BUDGET + (BEXTRA if (isB and 32 < n < 42) else 0)) - used))
                gap += 1
        assert not mand
    assert not ev and not evlo, (ev.keys(), evlo.keys())
    sc.flush()
    for x in pf: sc.emit(x)
    lg.drain()
    return vm
BUDGET = 6
BEXTRA = 1
PACKED = 1
def remap_temps(items, lo, new, n):
    import re
    def f(s):
        def r1(m):
            v = int(m.group(1)); return f'v{v - lo + new}' if lo <= v < lo + n else m.group(0)
        def r2(m):
            a, b = int(m.group(1)), int(m.group(2))
            return f'v[{a-lo+new}:{b-lo+new}]' if lo <= a < lo + n else m.group(0)
        s = re.sub(r'v\[(\d+):(\d+)\]', r2, s)
        return re.sub(r'\bv(\d+)\b', r1, s)
    out = []
    for e in items:
        if isinstance(e, str): out.append(f(e))
        elif e[0] in ('vm', 'ds'): out.append((e[0], f(e[1])) + tuple(e[2:]))
        else: out.append(e)
    return out
A_E64, A_E32, A_H = 0, 32, 96
NH = 20
V_L16, V_DW, V_PL = 43, 44, 45
V_DW1 = 2
V_L16H = 47
TW, UFR, WT_, D_, T_, B_, WU = 48, 64, 112, 192, 208, 224, 232
V_UA, V_VA, V_YW0, V_YW1, V_YR0, V_YR1, V_P0, V_P1 = 24, 25, 26, 27, 28, 29, 30, 31
V_TW0, V_TW1, V_TV0, V_TV1, V_DV, V_RA, V_OO, V_GP, V_G0, V_G1 = 2, 3, 4, 5, 6, 7, 8, 9, 10, 11
G_D = 12
G_PH = 16
G_TR, G_X, G_T, G_ACC, G_G = 96, 112, 120, 128, 192
S_HB, S_W2B, S_VB, S_LB, S_PA, S_PB, S_VS = 72, 73, 74, 75, 76, 77, 78
S_R2, S_PC = 79, 80
S_WOF, S_W2C, S_HOF = 81, 82, 83
S_WBLK = 32
S_HBLK = 8
S_RA = 79
V_DV1 = 40
RING = 18
SL = [16, 17, 5, 6, 7, 0, 1, 2, 3, 4, 8, 9, 10, 11, 12, 13, 14, 15]
def slot_addr(n): return SL[n % RING]*8192
RED_STRIDE = 1056; RED_W = 16*RED_STRIDE
def mf16(d, a, b, c, aa='v', ab='v'):
    return f'v_mfma_f32_16x16x32_bf16 v[{d}:{d+3}], {aa}[{a}:{a+3}], {ab}[{b}:{b+3}], ' + ('0' if c is None else f'v[{c}:{c+3}]')
def flag_store_now(k, off_items, lab):
    k(f's_cmp_lg_u32 s{S_WV}, 0'); k(f's_cbranch_scc1 {lab}')
    for x in off_items: k(x)
    k(f'v_mov_b32 v{V_PL}, s{S_NON}')
    k(f'buffer_store_dword v{V_PL}, v{V_L0}, s[{S_WS}:{S_WS+3}], s{S_F0} offen sc1')
    k.label(lab)
def w2_row(n):
    return S_WBLK + (n >> 2), (n & 3)*16384
def rot_items(kind):
    o = []
    A, R = S_RA, S_PB
    o.append(('grp', [f's_mul_i32 s{R}, s{S_CB2}, 11', f's_lshr_b32 s{R}, s{R}, 5', f's_mul_i32 s{R}, s{R}, 3', f's_sub_u32 s{R}, s{S_CB2}, s{R}']))
    for j in range(3):
        g = [f's_add_u32 s{A}, s{R}, {j}', f's_sub_u32 s{S_PA}, s{A}, 3', f's_min_u32 s{A}, s{A}, s{S_PA}']
        if kind == 'w': g += [f's_lshl_b32 s{A}, s{A}, 17', f's_add_u32 s{S_WBLK+j}, s{S_W2B}, s{A}']
        else: g += [f's_lshl_b32 s{A}, s{A}, 12', f's_add_u32 s{S_HBLK+j}, s{S_HB}, s{A}']
        o.append(('grp', g))
    for j in range(4):
        g = [f's_add_u32 s{A}, s{S_CB2}, {j}', f's_and_b32 s{A}, s{A}, 3']
        if kind == 'w':
            g += [f's_lshl_b32 s{S_PA}, s{A}, 17', f's_add_u32 s{S_PA}, s{S_PA}, {4*16384}', f's_add_u32 s{S_PA}, s{S_PA}, s{S_W2B}',
                  f's_cmp_eq_u32 s{A}, 3', f's_cselect_b32 s{S_WBLK+3+j}, s{S_W2C}, s{S_PA}']
        else:
            g += [f's_lshl_b32 s{A}, s{A}, 12', f's_add_u32 s{A}, s{A}, {12*1024}', f's_add_u32 s{S_HBLK+3+j}, s{S_HB}, s{A}']
        o.append(('grp', g))
    return o
def w2_dma_chunks(n):
    a = slot_addr(n); b, o = w2_row(n)
    return [('grp', [f's_add_u32 m0, s{S_LB}, {a}', f's_add_u32 s{S_WOF}, s{b}, {o}', ('vm', f'buffer_load_dwordx4 v{V_DW}, s[{S_W2}:{S_W2+3}], s{S_WOF} offen lds', ('w', n))]),
            ('grp', [('vm', f'buffer_load_dwordx4 v{V_DW+V_DW1}, s[{S_W2}:{S_W2+3}], s{S_WOF} offen offset:1024 lds', ('w', n))])]
def tail_prefetch_items():
    L = V_L; T0, T1 = V_P0, V_P1
    it = []
    T0, T1 = 46, 47
    pre = [f'v_lshlrev_b32 v{V_L16}, 4, v{L}',
           f'v_lshrrev_b32 v{T0}, 3, v{L}', f'v_lshlrev_b32 v{V_DW}, 10, v{T0}',
           f'v_bfe_u32 v{T0}, v{L}, 4, 1', f'v_bfe_u32 v{T1}, v{L}, 2, 1', f'v_xor_b32 v{T0}, v{T0}, v{T1}',
           f'v_lshl_add_u32 v{V_DW}, v{T0}, 6, v{V_DW}', f'v_and_b32 v{T0}, 3, v{L}', f'v_lshl_add_u32 v{V_DW}, v{T0}, 4, v{V_DW}',
           f'v_add_u32 v{V_DW+V_DW1}, {8192-1024}, v{V_DW}', f'v_add_u32 v{V_L16H}, {112*1024}, v{V_L16}',
           f's_mul_i32 s{S_W2B}, s{S_WV}, {24*16384}', f's_lshl_b32 s{S_PA}, s{S_CB2}, 7', f's_add_u32 s{S_W2B}, s{S_W2B}, s{S_PA}',
           f's_lshl_b32 s{S_W2C}, s{S_WV}, 16', f's_add_u32 s{S_W2C}, s{S_W2C}, s{S_PA}', f's_add_u32 s{S_W2C}, s{S_W2C}, {96*16384}',
           f's_lshl_b32 s{S_LB}, s{S_WV}, 11',
           f's_lshl_b32 s{S_PB}, s{S_WV}, 13', f's_add_u32 s{S_PB}, s{S_PB}, {TAB_E64}']
    for idx in range(8):
        r = A_E64 + 4*idx
        g = pre + ([f's_add_u32 s{S_PB}, s{S_PB}, 4096'] if idx == 4 else [])
        it.append(('grp', g + [('vm', f'buffer_load_dwordx4 a[{r}:{r+3}], v{V_L16}, s[{S_TAB}:{S_TAB+3}], s{S_PB} offen offset:{(idx&3)*1024}', 'pre')])); pre = []
    for i in range(6):
        r = A_E32 + 4*i
        g = [f's_mov_b32 s{S_PB}, {TAB_E32 + (i>>2)*4096}'] if (i & 3) == 0 else []
        it.append(('grp', g + [('vm', f'buffer_load_dwordx4 a[{r}:{r+3}], v{V_L16}, s[{S_TAB}:{S_TAB+3}], s{S_PB} offen offset:{(i&3)*1024}', 'pre')]))
    it += rot_items('w')
    for n in range(5): it += w2_dma_chunks(n)
    for i in range(4):
        g = [f's_lshl_b32 s{S_PB}, s{S_WV}, 12', f's_add_u32 s{S_PB}, s{S_PB}, {TAB_TW}'] if i == 0 else []
        it.append(('grp', g + [('vm', f'buffer_load_dwordx4 v[{TW+4*i}:{TW+4*i+3}], v{V_L16}, s[{S_TAB}:{S_TAB+3}], s{S_PB} offen offset:{i*1024}', 'tw')]))
    return it
def p2a_poll_lines():
    L = V_L
    return [f's_lshr_b32 s{S_B}, s2, 6', f's_lshl_b32 s{S_C_}, s{S_B}, 7', f's_add_u32 s{S_C_}, s{S_C_}, {WS_UF}',
            f's_lshl_b32 s{S_B}, s{S_B}, 8', f's_add_u32 s{S_B}, s{S_B}, {WS_WTF}',
            f'v_lshlrev_b32 v{V_P0}, 2, v{L}', f'v_and_b32 v{V_P1}, 60, v{V_P0}',
            f'buffer_load_dword v{V_YR0}, v{V_P1}, s[{S_WS}:{S_WS+3}], s{S_C_} offen sc1',
            f'buffer_load_dword v{V_YR1}, v{V_P0}, s[{S_WS}:{S_WS+3}], s{S_B} offen sc1']
class Pacer:
    def __init__(self, k, sc, every): self.k = k; self.sc = sc; self.every = every; self.c = 0; self.q = []
    def __call__(self, s):
        self.k(s); self.tick()
    def tick(self, n=1):
        self.c += n
        if self.c >= self.every and self.q:
            self.c = 0; self.sc.emit(self.q.pop(0))
    def flush(self):
        while self.q: self.sc.emit(self.q.pop(0))
def g2_addr_items():
    L, T0, T1 = V_L, V_G0, V_G1
    o = []
    k = o.append
    k(f's_lshl_b32 s{T}, s{S_RB2}, 2'); k(f's_lshl_b32 s{T+1}, s{S_G2}, 1'); k(f's_add_u32 s{T}, s{T}, s{T+1}')
    k(f's_mul_i32 s{T}, s{T}, 112'); k(f's_mul_i32 s{T+1}, s{S_WV}, 28'); k(f's_add_u32 s{T}, s{T}, s{T+1}')
    k(f's_lshl_b32 s{S_HB}, s{T}, 10'); k(f's_add_u32 s{S_HB}, s{S_HB}, {WS_H}')
    k('#late')
    k(f'v_lshrrev_b32 v{T0}, 4, v{L}'); k(f'v_mul_u32_u24 v{V_DV}, {CSTR}, v{T0}')
    k(f'v_and_b32 v{T0}, 1, v{T0}'); k(f'v_lshlrev_b32 v{T0}, 3, v{T0}'); k(f'v_and_b32 v{T1}, 15, v{L}'); k(f'v_xor_b32 v{T0}, v{T0}, v{T1}')
    k(f'v_lshl_add_u32 v{V_DV}, v{T0}, 4, v{V_DV}'); k(f'v_add_u32 v{V_DV1}, {4*CSTR-1024}, v{V_DV}')
    k(f's_mul_i32 s{S_VB}, s{S_WV}, {64*CSTR}'); k(f's_lshl_b32 s{T}, s{S_RB2}, 9'); k(f's_add_u32 s{S_VB}, s{S_VB}, s{T}')
    k(f's_lshl_b32 s{T}, s{S_G2}, 8'); k(f's_add_u32 s{S_VB}, s{S_VB}, s{T}'); k(f's_add_u32 s{S_VB}, s{S_VB}, {WS_V}')
    k('#now')
    k(f'v_lshrrev_b32 v{T0}, 5, v{L}'); k(f'v_lshlrev_b32 v{V_TW0}, 9, v{T0}')
    k(f'v_bfe_u32 v{T0}, v{L}, 2, 2'); k(f'v_lshl_add_u32 v{V_TW0}, v{T0}, 7, v{V_TW0}')
    k(f'v_bfe_u32 v{T0}, v{L}, 3, 1'); k(f'v_lshl_add_u32 v{V_TW0}, v{T0}, 6, v{V_TW0}')
    k(f'v_bfe_u32 v{T0}, v{L}, 4, 1'); k(f'v_lshl_add_u32 v{V_TW0}, v{T0}, 5, v{V_TW0}')
    k(f'v_and_b32 v{T0}, 3, v{L}'); k(f'v_lshl_add_u32 v{V_TW0}, v{T0}, 3, v{V_TW0}')
    k(f'v_add_u32 v{V_TW0}, s{S_LB}, v{V_TW0}'); k(f'v_xor_b32 v{V_TW1}, 64, v{V_TW0}')
    for va in (V_TW0, V_TW1): k(f'v_add_u32 v{va+V_HI}, 0x10000, v{va}'); k(f'v_add_u32 v{va+V_HI2}, 0x20000, v{va}')
    k('#late')
    k(f'v_lshrrev_b32 v{T0}, 5, v{L}'); k(f'v_lshlrev_b32 v{V_TV0}, 10, v{T0}')
    k(f'v_bfe_u32 v{T0}, v{L}, 3, 1'); k(f'v_lshl_add_u32 v{V_TV0}, v{T0}, 8, v{V_TV0}'); k(f'v_lshl_add_u32 v{V_TV0}, v{T0}, 7, v{V_TV0}')
    k(f'v_bfe_u32 v{T0}, v{L}, 4, 1'); k(f'v_lshl_add_u32 v{V_TV0}, v{T0}, 6, v{V_TV0}')
    k(f'v_and_b32 v{T0}, 3, v{L}'); k(f'v_lshl_add_u32 v{V_TV0}, v{T0}, 4, v{V_TV0}')
    k(f'v_bfe_u32 v{T0}, v{L}, 2, 1'); k(f'v_lshl_add_u32 v{V_TV0}, v{T0}, 3, v{V_TV0}')
    k(f'v_add_u32 v{V_TV0}, s{S_LB}, v{V_TV0}'); k(f'v_xor_b32 v{V_TV1}, 128, v{V_TV0}')
    for va in (V_TV0, V_TV1): k(f'v_add_u32 v{va+V_HI}, 0x10000, v{va}'); k(f'v_add_u32 v{va+V_HI2}, 0x20000, v{va}')
    k(f's_lshr_b32 s{T}, s{S_WV}, 1'); k(f's_and_b32 s{T+1}, s{S_WV}, 1'); k(f's_lshl_b32 s{T+1}, s{T+1}, 4')
    k(f'v_lshrrev_b32 v{T0}, 3, v{L}'); k(f'v_add_u32 v{T0}, s{T+1}, v{T0}')
    k(f'v_and_b32 v{T1}, 7, v{L}')
    k(f'v_mul_u32_u24 v{V_RA}, {RED_STRIDE}, v{T1}'); k(f'v_lshl_add_u32 v{V_RA}, v{T0}, 4, v{V_RA}')
    k(f's_mul_i32 s{T+2}, s{T}, {8*RED_STRIDE}'); k(f'v_add_u32 v{V_RA}, s{T+2}, v{V_RA}')
    k(f'v_lshlrev_b32 v{V_OO}, 4, v{T1}')
    k(f'v_and_b32 v{T1}, 3, v{T0}'); k(f'v_lshl_add_u32 v{V_OO}, v{T1}, 15, v{V_OO}')
    k(f'v_lshrrev_b32 v{T1}, 3, v{T0}'); k(f'v_lshl_add_u32 v{V_OO}, v{T1}, 11, v{V_OO}')
    k(f'v_bfe_u32 v{T1}, v{T0}, 2, 1'); k(f'v_lshl_add_u32 v{V_OO}, v{T1}, 10, v{V_OO}')
    k(f's_lshl_b32 s{T+2}, s{S_G2}, 1'); k(f's_add_u32 s{T+2}, s{T+2}, s{T}'); k(f's_lshl_b32 s{T+2}, s{T+2}, 13')
    k(f's_lshl_b32 s{T+3}, s{S_RB2}, 17'); k(f's_add_u32 s{T+2}, s{T+2}, s{T+3}')
    k(f's_lshl_b32 s{T+3}, s{S_CB2}, 7'); k(f's_add_u32 s{T+2}, s{T+2}, s{T+3}')
    k(f'v_add_u32 v{V_OO}, s{T+2}, v{V_OO}')
    k(f'v_and_b32 v{T0}, 31, v{L}'); k(f's_lshl_b32 s{T}, s{S_CB2}, 6'); k(f'v_add_u32 v{T0}, s{T}, v{T0}')
    k(f'v_cvt_f32_u32 v{G_D}, v{T0}'); k(f'v_add_u32 v{T0}, 32, v{T0}'); k(f'v_cvt_f32_u32 v{G_D+1}, v{T0}')
    k(f'v_lshrrev_b32 v{T1}, 5, v{L}'); k(f'v_lshlrev_b32 v{T1}, 2, v{T1}'); k(f's_lshl_b32 s{T}, s{S_WV}, 6'); k(f's_add_u32 s{T}, s{T}, 1')
    k(f'v_add_u32 v{T1}, s{T}, v{T1}'); k(f'v_cvt_f32_u32 v{T1}, v{T1}')
    for ct in range(2):
        k(f'v_mul_f32 v{G_D+ct}, 0x3b000000, v{G_D+ct}')
        k(f'v_mul_f32 v{G_D+2+ct}, 0x40a00000, v{G_D+ct}')
        k(f'v_mul_f32 v{G_PH+ct}, v{T1}, v{G_D+ct}')
    parts = {'early': [], 'now': [], 'late': []}; cur = 'early'
    for x in o:
        if x.startswith('#'): cur = x[1:]
        else: parts[cur].append(x)
    return parts['early'], parts['now'], parts['late']
def g_gen_items():
    o = []
    for c in range(8):
        for j in range(4):
            for ct in range(2):
                t = G_T + 2*ct
                o.append(f'v_cos_f32 v{t}, v{G_PH+ct}'); o.append(f'v_sin_f32 v{t+1}, v{G_PH+ct}')
            for ct in range(2):
                if not (c == 7 and j == 3):
                    o.append(f'v_add_f32 v{G_PH+ct}, v{G_PH+ct}, v{G_D + (2 if j == 3 else 0) + ct}')
            for ct in range(2):
                t = G_T + 2*ct
                o.append(f'v_cvt_pk_bf16_f32 v{G_G + 8*c + 4*ct + j}, v{t}, -v{t+1}')
    return o
def h_chunks(n):
    d = A_H + 8*(n % NH)
    return [('grp', [f's_add_u32 s{S_HOF}, s{S_HBLK + (n >> 2)}, {(n & 3)*1024}', ('vm', f'buffer_load_dwordx4 a[{d}:{d+3}], v{V_L16}, s[{S_WS}:{S_WS+3}], s{S_HOF} offen sc1', ('h', n))]),
            ('grp', [('vm', f'buffer_load_dwordx4 a[{d+4}:{d+7}], v{V_L16H}, s[{S_WS}:{S_WS+3}], s{S_HOF} offen sc1', ('h', n))])]
def v_chunks(n):
    c = n - 28; a = slot_addr(n)
    return [('grp', [f's_add_u32 m0, s{S_LB}, {a}', f's_add_u32 s{S_PA}, s{S_VB}, {8*c*CSTR}',
                     ('vm', f'buffer_load_dwordx4 v{V_DV}, s[{S_WS}:{S_WS+3}], s{S_PA} offen sc1 lds', ('w', n))]),
            ('grp', [('vm', f'buffer_load_dwordx4 v{V_DV1}, s[{S_WS}:{S_WS+3}], s{S_PA} offen offset:1024 sc1 lds', ('w', n))])]
class VQ:
    def __init__(self, sc): self.sc = sc; self.items = []; self.half = None
    def add(self, deadline, chunks): self.items.append((deadline, list(chunks))); self.items.sort(key=lambda x: x[0])
    def pending(self): return len(self.items) + (1 if self.half else 0)
    def one(self, limit=10**9):
        if self.half:
            self.sc.emit(self.half.pop(0))
            if not self.half: self.half = None
            return True
        if self.items and self.items[0][0] <= limit:
            d, ch = self.items.pop(0)
            self.sc.emit(ch.pop(0))
            if ch: self.half = ch
            return True
        return False
    def settle(self):
        while self.half: self.one()
    def force(self, deadline):
        self.settle()
        while self.items and self.items[0][0] <= deadline:
            self.one(); self.settle()
class Pacer2:
    def __init__(self, k, vq, period): self.k = k; self.vq = vq; self.every = period; self.c = 0
    @staticmethod
    def cyc(s):
        op = s.split()[0]
        if op.startswith('v_mfma'): return 16 if '16x16' in op else 32
        if op.startswith(('v_exp', 'v_rcp', 'v_sin', 'v_cos', 'v_sqrt')): return 8
        if op == 's_nop': return 4*(int(s.split()[1]) + 1)
        return 4
    def __call__(self, s): self.k(s); self.tick(self.cyc(s))
    def tick(self, n=4):
        self.c += n
        if self.c >= self.every:
            if self.vq.one(): self.c -= self.every
            else: self.c = 0
def tail(k, st, ts):
    L = V_L
    vm = VM(k); lg = LG(k); sc = Sched2(k, vm, lg); vq = VQ(sc)
    vm.q = ['pre']; vm.ever.add('pre')
    NF, NS = 28, 36
    T0, T1 = V_G0, V_G1
    def wait_w(n):
        if n < 5: vm.wait('pre')
        else:
            vq.force(n - 1 if n < 28 else 28 + (n - 28)//2 - 1)
            assert ('w', n) in vm.ever, n
            vm.wait(('w', n))
    def wait_h(n):
        vq.force(n)
        assert ('h', n) in vm.ever, n
        vm.wait(('h', n))
    stamp = lambda nm: st.stamp(nm) if st else None
    stamp('mfma_done')
    hf_off = lambda p: [f's_lshl_b32 s{S_F0}, s{S_RB}, 7', f's_lshl_b32 s{S_F1}, s{S_CB}, 2', f's_add_u32 s{S_F0}, s{S_F0}, s{S_F1}', f's_add_u32 s{S_F0}, s{S_F0}, {WS_HF + 64*p}']
    hp = lambda p: [f's_lshl_b32 s{S_B}, s{S_RB2}, 7', f's_add_u32 s{S_B}, s{S_B}, {WS_HF + 64*p}', f'v_lshlrev_b32 v{V_GP}, 2, v{L}',
                    f'v_min_u32 v{V_GP}, {44 if p == 0 else 60}, v{V_GP}',
                    f'buffer_load_dword v{V_G_HP}, v{V_GP}, s[{S_WS}:{S_WS+3}], s{S_B} offen sc1']
    if PACKED:
        for e in range(2):
            for j in range(2): k(f'v_mov_b32 v{V_C1P+2*e+j}, v{V_C1+e}'); k(f'v_mov_b32 v{V_C2P+2*e+j}, v{V_C2+e}')
    units = [ffn_unit(1, t, e, PACKED) for t in range(2) for e in range(2)]
    P = Pacer2(k, vq, PERIOD)
    def run_unit(u):
        for x in u:
            if isinstance(x, str): P(x)
            else: sc.emit(x); P.c = max(0, P.c - PERIOD)
    pl = p2a_poll_lines()
    for x in pl[:-2]: k(x)
    vm.issue(pl[-2], 'pp'); vm.issue(pl[-1], 'pp')
    ga_early, ga_now, ga_late = g2_addr_items()
    for x in ga_early: k(x)
    for x in rot_items('h'): sc.emit(x)
    for n in range(5, RING): vq.add(n - 1, w2_dma_chunks(n))
    run_unit(units[0]); run_unit(units[1])
    vq.settle()
    vm.wait('pp'); tag_check(k, 'p2a', [V_YR0, V_YR1], pl)
    stamp('uf_ok')
    k(f's_mul_i32 s{T}, s2, {CSTR}'); k(f's_lshl_b32 s{T+1}, s{S_WV}, 11'); k(f's_add_u32 s{T+2}, s{T}, s{T+1}')
    k(f's_add_u32 m0, s{T+1}, {L_U}'); k(f's_add_u32 s{T+3}, s{T+2}, {WS_U}')
    for e in range(2):
        vm.issue(f'buffer_load_dwordx4 v{V_L16}, s[{S_WS}:{S_WS+3}], s{T+3} offen offset:{e*1024} sc1 lds', 'u')
    P(f'v_and_b32 v{V_P0}, 15, v{L}'); k(f'v_lshrrev_b32 v{V_P1}, 4, v{L}')
    k(f'v_lshlrev_b32 v{V_VA}, 7, v{V_P0}'); k(f'v_lshl_add_u32 v{V_VA}, v{V_P1}, 4, v{V_VA}')
    k(f's_mul_i32 s{T+2}, s2, {WSTR}'); k(f's_add_u32 s{T+2}, s{T+2}, s{T+1}'); k(f's_add_u32 s{T+3}, s{T+2}, {WS_WT}')
    vq.settle()
    for mt in range(2):
        vm.issue(f'buffer_load_dwordx4 v[{WT_+4*mt}:{WT_+4*mt+3}], v{V_VA}, s[{S_WS}:{S_WS+3}], s{T+3} offen offset:{mt*64} sc1', 'wt')
    k(f'v_lshlrev_b32 v{V_VA}, 9, v{V_P1}'); k(f'v_lshl_add_u32 v{V_VA}, v{V_P0}, 4, v{V_VA}')
    k(f'v_add_u32 v{V_UA}, {L_U}, v{V_VA}')
    for x in hp(0)[:-1]: k(x)
    vm.issue(hp(0)[-1], 'hp0')
    P.c = 0
    run_unit(units[2]); run_unit(units[3])
    stamp('p1_end')
    vq.settle()
    vm.wait('hp0'); tag_check(k, 'hf0', [V_G_HP], hp(0))
    stamp('hf0_ok')
    for n in range(12): vq.add(n, h_chunks(n))
    for x in ga_now: P(x)
    def vstep(n):
        m = n - NF; return m >> 2, 2*(m & 3)
    def wdeps(n):
        if n < NF: return [n]
        e, c = vstep(n); return [NF + c, NF + c + 1]
    def reads(n):
        b = G_TR + 8*(n & 1); o = []
        if n < NF:
            a = slot_addr(n)
            for t in range(2):
                for part in range(2): o.append(((V_TW0, V_TW1)[t], a + part*8*128, b + 4*t + 2*part))
        else:
            e, c = vstep(n)
            for t in range(2):
                a = slot_addr(NF + c + t)
                for part in range(2): o.append(((V_TV0, V_TV1)[e], a + part*2*256, b + 4*t + 2*part))
        return o
    def emit_read(n, r):
        va, off, b = r
        lg.issue(f'ds_read_b64_tr_b16 v[{b}:{b+1}], v{va + (0, V_HI, V_HI2)[off >> 16]} offset:{off & 0xffff}', ('tr', n))
    gq = []; redq = []
    def step(n, prefetch_next=True, rate=None):
        rate = GRATE
        rd = []
        if prefetch_next and n + 1 < NS:
            for m_ in wdeps(n + 1): wait_w(m_)
            rd = reads(n + 1)
        if n < NF: wait_h(n)
        lg.wait(('tr', n))
        b = G_TR + 8*(n & 1)
        gap = 0
        for i0_ in range(2):
            for ct in range(2):
                if n < NF:
                    e = i0_
                    a_ = f'v[{G_ACC+16*(2*e+ct)}:{G_ACC+16*(2*e+ct)+15}]'; c_ = '0' if n == 0 else a_
                    d = A_H + 8*(n % NH)
                    k(f'v_mfma_f32_32x32x16_bf16 {a_}, v[{b+4*ct}:{b+4*ct+3}], a[{d+4*e}:{d+4*e+3}], {c_}')
                else:
                    e, c = vstep(n)
                    a_ = f'v[{G_ACC+16*(2*e+ct)}:{G_ACC+16*(2*e+ct)+15}]'
                    g = G_G + 8*(c + i0_) + 4*ct
                    k(f'v_mfma_f32_32x32x16_bf16 {a_}, v[{g}:{g+3}], v[{b+4*i0_}:{b+4*i0_+3}], {a_}')
                    if redq and n >= 33: lg.issue(redq.pop(0), 'red0')
                for _ in range(2):
                    if rd: emit_read(n + 1, rd.pop(0))
                if vq.half or gap < rate or True:
                    lim = n + URG if gap >= rate else 10**9
                    vq.one(lim)
                for _ in range(GPACE + (1 if gap < GP1 else 0)):
                    if gq: k(gq.pop(0))
                gap += 1
    vq.settle()
    vm.wait('wt'); k('s_barrier')
    stamp('u_ok')
    for ks in range(4):
        for mt in range(2):
            r = UFR + 4*(mt*4+ks)
            lg.issue(f'ds_read_b128 v[{r}:{r+3}], v{V_UA} offset:{ks*2048 + mt*256}', ('uf', ks))
    P = Pacer2(k, vq, PERIOD)
    kk = P
    D, Tt, B = D_, T_, B_
    kk(f'v_and_b32 v{V_P0}, 15, v{L}'); kk(f'v_lshlrev_b32 v{V_YW0}, 6, v{V_P0}')
    kk(f'v_bfe_u32 v{V_P0}, v{L}, 2, 1'); kk(f'v_lshl_add_u32 v{V_YW0}, v{V_P0}, 5, v{V_YW0}')
    kk(f'v_lshrrev_b32 v{V_P0}, 4, v{L}'); kk(f'v_lshl_add_u32 v{V_YW0}, v{V_P0}, 3, v{V_YW0}')
    k(f's_lshl_b32 s{T}, s{S_WV}, 10'); k(f's_add_u32 s{T}, s{T}, {L_Y}'); kk(f'v_add_u32 v{V_YW0}, s{T}, v{V_YW0}')
    kk(f'v_xor_b32 v{V_YW1}, 32, v{V_YW0}')
    kk(f'v_lshrrev_b32 v{V_P0}, 2, v{L}'); kk(f'v_lshlrev_b32 v{V_YR0}, 6, v{V_P0}')
    kk(f'v_bfe_u32 v{V_P0}, v{L}, 4, 1'); kk(f'v_lshl_add_u32 v{V_YR0}, v{V_P0}, 5, v{V_YR0}')
    kk(f'v_and_b32 v{V_P0}, 3, v{L}'); kk(f'v_lshl_add_u32 v{V_YR0}, v{V_P0}, 3, v{V_YR0}')
    kk(f'v_add_u32 v{V_YR0}, {L_Y}, v{V_YR0}'); kk(f'v_xor_b32 v{V_YR1}, 32, v{V_YR0}')
    for ks in range(4):
        lg.wait(('uf', ks))
        for mt in range(2):
            for var in range(2):
                d = D + 4*(mt*2+var)
                kk(mf16(d, UFR + 4*(mt*4+ks), A_E64 + 4*(ks*2+var), None if ks == 0 else d, 'v', 'a'))
    k.nop(6)
    pr = lambda r: f'v[{r}:{r+1}]'
    def cmul(R, I, c, s_, oR, oI, conj):
        kk(f'v_pk_mul_f32 {pr(oR)}, {pr(R)}, {pr(c)}'); kk(f'v_pk_mul_f32 {pr(oI)}, {pr(I)}, {pr(c)}')
        n = ' neg_lo:[1,0,0] neg_hi:[1,0,0]'
        kk(f'v_pk_fma_f32 {pr(oR)}, {pr(I)}, {pr(s_)}, {pr(oR)}' + ('' if conj else n))
        kk(f'v_pk_fma_f32 {pr(oI)}, {pr(R)}, {pr(s_)}, {pr(oI)}' + (n if conj else ''))
    def twiddle(sign):
        for mt in range(2):
            for r in (0, 2):
                cmul(D + 8*mt + r, D + 8*mt + 4 + r, TW + 8*mt + r, TW + 8*mt + 4 + r, Tt + 8*mt + r, Tt + 8*mt + 4 + r, sign > 0)
    def pack():
        for mt in range(2):
            for part in range(2):
                kk(f'v_cvt_pk_bf16_f32 v{B+4*part+2*mt}, v{Tt+8*mt+4*part}, v{Tt+8*mt+4*part+1}')
                kk(f'v_cvt_pk_bf16_f32 v{B+4*part+2*mt+1}, v{Tt+8*mt+4*part+2}, v{Tt+8*mt+4*part+3}')
    twiddle(+1); pack(); k.nop(2)
    Br, Bi = B, B + 4
    C32 = lambda mt: A_E32 + 12*mt; S32 = lambda mt: A_E32 + 12*mt + 4; N32 = lambda mt: A_E32 + 12*mt + 8
    for mt in range(2):
        kk(mf16(D + 8*mt, C32(mt), Br, None, 'a')); kk(mf16(D + 8*mt + 4, C32(mt), Bi, None, 'a'))
    for mt in range(2):
        kk(mf16(D + 8*mt, S32(mt), Bi, D + 8*mt, 'a')); kk(mf16(D + 8*mt + 4, N32(mt), Br, D + 8*mt + 4, 'a'))
    for mt in range(2):
        for r in range(4):
            kk(f'v_lshlrev_b32 v{WU+4*mt+r}, 16, v{WT_+4*mt+r}'); kk(f'v_and_b32 v{WU+8+4*mt+r}, 0xffff0000, v{WT_+4*mt+r}')
    for mt in range(2):
        for r in (0, 2):
            cmul(D + 8*mt + r, D + 8*mt + 4 + r, WU + 4*mt + r, WU + 8 + 4*mt + r, Tt + 8*mt + r, Tt + 8*mt + 4 + r, False)
    pack(); k.nop(2)
    for mt in range(2):
        kk(mf16(D + 8*mt, C32(mt), Br, None, 'a')); kk(mf16(D + 8*mt + 4, C32(mt), Bi, None, 'a'))
    for mt in range(2):
        kk(mf16(D + 8*mt, N32(mt), Bi, D + 8*mt, 'a')); kk(mf16(D + 8*mt + 4, S32(mt), Br, D + 8*mt + 4, 'a'))
    k.nop(8)
    twiddle(-1); pack()
    for mt in range(2):
        va = V_YW0 if mt == 0 else V_YW1
        lg.issue(f'ds_write_b64 v{va}, v[{B+4+2*mt}:{B+4+2*mt+1}]'); lg.issue(f'ds_write_b64 v{va}, v[{B+2*mt}:{B+2*mt+1}] offset:4096')
    vm.wait('hst1'); lg.drain(); k('s_barrier')
    flag_store_now(k, hf_off(1), 'L_fl_h1')
    stamp('hflag')
    FB = UFR
    for nt in range(2):
        va = V_YR0 if nt == 0 else V_YR1
        for ks in range(4):
            r = FB + 4*(nt*4+ks)
            lg.issue(f'ds_read_b64_tr_b16 v[{r}:{r+1}], v{va} offset:{ks*1024}'); P.tick(8)
            lg.issue(f'ds_read_b64_tr_b16 v[{r+2}:{r+3}], v{va} offset:{4096 + ks*1024}', ('yb', nt)); P.tick(8)
    k(f's_mov_b32 s{S_VS}, 0x36000000'); k('s_cmp_eq_u32 s2, 255'); k(f's_cselect_b32 s{S_VS}, 0x35800000, s{S_VS}')
    k(f's_mul_i32 s{T}, s2, {CSTR}'); k(f's_lshl_b32 s{T+1}, s{S_WV}, 11'); k(f's_add_u32 s{T}, s{T}, s{T+1}'); k(f's_add_u32 s{T+4}, s{T}, {WS_V}')
    k(f'v_mov_b32 v{WU}, s{S_VS}'); k(f'v_mov_b32 v{WU+1}, s{S_VS}')
    for nt in range(2):
        lg.wait(('yb', nt))
        for ks in range(4):
            f = FB + 4*(nt*4+ks)
            kk(mf16(D + 8*nt + 4, A_E64 + 4*(ks*2+0), f, None if ks == 0 else D + 8*nt + 4, 'a'))
            kk(mf16(D + 8*nt, A_E64 + 4*(ks*2+1), f, None if ks == 0 else D + 8*nt, 'a'))
    wait_w(0)
    for r in reads(0): emit_read(0, r)
    k.nop(4)
    for nt in range(2):
        for i in range(0, 8, 2): kk(f'v_pk_mul_f32 {pr(D+8*nt+i)}, {pr(D+8*nt+i)}, {pr(WU)}')
        o = B + 4*nt
        kk(f'v_cvt_pk_bf16_f32 v{o}, v{D+8*nt}, v{D+8*nt+1}'); kk(f'v_cvt_pk_bf16_f32 v{o+1}, v{D+8*nt+2}, v{D+8*nt+3}')
        kk(f'v_cvt_pk_bf16_f32 v{o+2}, v{D+8*nt+4}, v{D+8*nt+5}'); kk(f'v_cvt_pk_bf16_f32 v{o+3}, v{D+8*nt+6}, v{D+8*nt+7}')
        vm.issue(f'buffer_store_dwordx4 v[{o}:{o+3}], v{V_VA}, s[{S_WS}:{S_WS+3}], s{T+4} offen offset:{nt*256} sc1', 'vst')
    stamp('p2a_end')
    gq += ga_late + g_gen_items()
    vp = [f's_lshl_b32 s{S_B}, s{S_WV}, 8', f's_add_u32 s{S_B}, s{S_B}, {WS_VF}', f'v_lshlrev_b32 v{V_GP}, 2, v{L}',
          f'buffer_load_dword v{T1}, v{V_GP}, s[{S_WS}:{S_WS+3}], s{S_B} offen sc1']
    hn = 12; h1ok = False; vready = []
    for n in range(NS):
        if n == HP1_AT:
            vq.settle()
            for x in hp(1)[:-1]: k(x)
            vm.issue(hp(1)[-1], 'hp1')
        if n == VFL_AT:
            vq.settle(); vm.wait('vst'); k('s_barrier')
            flag_store_now(k, [f's_lshl_b32 s{S_F0}, s2, 2', f's_add_u32 s{S_F0}, s{S_F0}, {WS_VF}'], 'L_fl_v')
            stamp('vflag')
        if n == H1CHK:
            vq.settle(); vm.wait('hp1'); tag_check(k, 'hf1', [V_G_HP], hp(1)); h1ok = True
            stamp('hf1_ok')
            while hn < NF and hn < n + NH: vq.add(hn, h_chunks(hn)); hn += 1
        if n == VP_AT:
            vq.settle()
            for x in vp[:-1]: k(x)
            vm.issue(vp[-1], 'vp')
        if n == VCHK:
            vq.settle(); vm.wait('vp'); tag_check(k, 'vf', [T1], vp)
            stamp('vf_ok')
        if n == NF:
            k('s_barrier')
            k(f's_mul_i32 s{T}, s{S_WV}, {RED_W}'); k(f'v_lshl_add_u32 v{V_RW}, v{L}, 4, s{T}')
            for ct in range(2):
                for q in range(4):
                    r = G_ACC + 16*ct + 4*q
                    redq.append(f'ds_write_b128 v{V_RW}, v[{r}:{r+3}] offset:{(ct*4+q)*RED_STRIDE}')
        if n == 30: vq.add(NS, [('grp', [('vm', f'buffer_load_dwordx4 v[{G_X+4*j}:{G_X+4*j+3}], v{V_OO}, s[{S_X}:{S_X+3}], 0 offen offset:{j*2048}', 'x') for j in range(2)])])
        step(n)
        m = n + RING - 1
        if n >= 1 and m < NF: vq.add(m - 1, w2_dma_chunks(m))
        if n >= 1 and NF <= m < NS: vready.append(m)
        if n >= VCHK:
            while vready: mm = vready.pop(0); vq.add(NF + (mm - NF)//2 - 1, v_chunks(mm))
        if h1ok and hn < NF and hn < n + 1 + NH: vq.add(hn, h_chunks(hn)); hn += 1
        if st and n in ((5, 7, 9, 11, 13, 15, 17, 19, 21, 23, 25, 27, 31) if 'g2ts' in OPT else (11, 27)): stamp(f'g{n}')
    assert not gq and not vq.pending() and hn == NF, (len(gq), vq.pending(), hn)
    stamp('kdone')
    assert not redq
    k('s_barrier')
    k.nop(11)
    for ct in range(2):
        for q in range(4):
            r = G_ACC + 32 + 16*ct + 4*q
            k(f'ds_write_b128 v{V_RW}, v[{r}:{r+3}] offset:{(8+ct*4+q)*RED_STRIDE}')
    k('s_waitcnt lgkmcnt(0)'); k('s_barrier')
    stamp('redw')
    for j in range(2):
        for w in range(4):
            r = G_ACC + 32*j + 8*w
            k(f'ds_read_b128 v[{r}:{r+3}], v{V_RA} offset:{w*RED_W + j*128}')
            k(f'ds_read_b128 v[{r+4}:{r+7}], v{V_RA} offset:{w*RED_W + j*128 + 512}')
    vm.wait('x')
    pr2 = lambda r: f'v[{r}:{r+1}]'
    XU = G_TR
    for j in range(2):
        for i in range(4):
            x = G_X + 4*j + i
            k(f'v_lshlrev_b32 v{XU+8*j+2*i}, 16, v{x}'); k(f'v_and_b32 v{XU+8*j+2*i+1}, 0xffff0000, v{x}')
    for j in range(2):
        S = G_ACC + 32*j
        for w in range(1, 4):
            k(f's_waitcnt lgkmcnt({min(15, 8*(1-j) + 2*(3-w))})')
            for i in range(0, 8, 2): k(f'v_pk_add_f32 {pr2(S+i)}, {pr2(S+i)}, {pr2(S+8*w+i)}')
        for i in range(0, 8, 2): k(f'v_pk_add_f32 {pr2(S+i)}, {pr2(S+i)}, {pr2(XU+8*j+i)}')
        for i in range(4): k(f'v_cvt_pk_bf16_f32 v{G_X+4*j+i}, v{S+2*i}, v{S+2*i+1}')
        vm.issue(f'buffer_store_dwordx4 v[{G_X+4*j}:{G_X+4*j+3}], v{V_OO}, s[{S_OUT}:{S_OUT+3}], 0 offen offset:{j*2048}' + (' sc1' if 'outsc1' in OPT else ''), 'o')
V_RW = 19
V_G_HP = 41
V_HI, V_HI2 = 30, 34
PERIOD, GPACE, URG, GP1, GRATE = 64, 3, 10, 0, 2
VFL_AT, H1CHK, VP_AT, VCHK, HP1_AT = 6, 6, 17, 20, 2
def merge_waits(lines):
    import re
    out = []
    for l in lines:
        t = l.strip()
        if t.startswith('s_waitcnt') and out and out[-1].strip().startswith('s_waitcnt'):
            c = {}
            for x in (out[-1], t):
                for nm, v in re.findall(r'(vmcnt|lgkmcnt)\((\d+)\)', x): c[nm] = min(int(v), c.get(nm, 99))
            out[-1] = '    s_waitcnt ' + ' '.join(f'{nm}({c[nm]})' for nm in ('vmcnt', 'lgkmcnt') if nm in c)
        else: out.append(l)
    return out
def build(ts=False):
    global slow_paths
    slow_paths.clear(); slow_id[0] = 0
    k = K()
    st = Stamps(k, ts, 0, vts=V_TS)
    k('s_cmp_ge_u32 s2, 256'); k('s_cbranch_scc1 L_end')
    st.stamp('start')
    if 'shuf' in OPT:
        k('s_and_b32 s3, s2, 7'); k('s_lshl_b32 s3, s3, 3'); k('s_bfe_u32 s4, s2, 0x30003'); k('s_or_b32 s3, s3, s4'); k('s_and_b32 s2, s2, 0xc0'); k('s_or_b32 s2, s2, s3')
    prologue(k, st)
    k(f's_cmp_ge_u32 s{S_CB}, 12'); k('s_cbranch_scc1 L_typeB')
    n0, nm0 = st.n, list(st.names)
    sta = st if ts else None
    p1_body(k, False, sta)
    k('s_branch L_common')
    st.n, st.names = n0, list(nm0)
    k.label('L_typeB')
    p1_body(k, True, sta)
    k.label('L_common')
    tail(k, sta, ts)
    k('s_cmp_lg_u32 s2, 0'); k('s_cbranch_scc1 L_noep')
    flag_store_now(k, [f's_mov_b32 s{S_F0}, {WS_EPOCH}'], 'L_fl_e')
    k.label('L_noep')
    if 'dbgts' in OPT:
        k('s_waitcnt vmcnt(0)'); k('s_memrealtime s[64:65]'); k('s_waitcnt lgkmcnt(0)')
        k('s_not_b32 s101, s101'); k('v_mov_b32 v2, s101'); k('v_mov_b32 v3, s64'); k('v_mov_b32 v4, 48'); k('v_mov_b32 v5, 52')
        k(f'v_cndmask_b32 v4, v4, v4, vcc')
        k('s_mov_b64 exec, 1')
        k(f'buffer_atomic_umax v2, v4, s[{S_DBG}:{S_DBG+3}], 0 offen sc1'); k(f'buffer_atomic_umax v3, v5, s[{S_DBG}:{S_DBG+3}], 0 offen sc1')
        k('s_mov_b64 exec, -1')
    st.flush(2, 3)
    k.label('L_end'); k('s_endpgm')
    for sp in slow_paths: k.l += sp.l
    k.label('L_codeend'); k('s_endpgm')
    if 'nomerge' not in OPT: k.l = merge_waits(k.l)
    probs = check(k.l, 'fused')
    if probs: print('\n'.join(probs[:10])); raise SystemExit('hazards')
    hdr = f"""; out = x + irfft2(rfft2(LN(x)) * W) + (silu(LN(x) w1) * (LN(x) w3)) w2      S=2048 D=512 F=1792, bf16 in/out, fp32 accumulate
;  P1   128 rows x 8 tiles of 32 columns per workgroup (x fragments resident in AGPRs, weights streamed by LDS-DMA).
;       LayerNorm is applied algebraically: raw x enters the MFMAs, -mean*colsum(w) is one extra K step, 1/std is folded
;  G2   64 x 64 output tile: h w2 + V G (inverse DFT along D, G generated with v_sin/v_cos), K split over the waves, + x.
; Hand-offs through d_ws: write-through (sc1) stores, s_waitcnt, barrier, flag word; row statistics and column-sum partials are
; 8-byte value+tag granules.  Flags and tags carry a per-launch value derived from a word of d_ws, so stale words of an earlier
; @launch grid=(256,1,1) block=(256,1,1) lds={LDS_TOTAL}
.amdgcn_target "amdgcn-amd-amdhsa--gfx950"
"""
    out = hdr + kernel_header(NAME) + k.text() + kernel_desc(NAME, 512, sgpr=102, accum=256) + tables_asm()
    if ts: out += '; TSNAMES 0 ' + ' '.join(st.names) + '\n'
    return out
if __name__ == '__main__':
    dst = sys.argv[1]
    OPT.update(a for a in sys.argv[2:])
    for a in sys.argv[2:]:
        if '=' in a:
            nm_, v_ = a.split('='); assert nm_ in globals(), nm_; globals()[nm_] = int(v_)
    if 'ts2' in OPT: Stamps.only = ('start', 'end')
    if 'g2ts' in OPT: Stamps.only = ['start', 'p2a_end', 'vflag', 'hf1_ok', 'vf_ok', 'kdone', 'end'] + [f'g{i}' for i in range(40)]
    if 'p0ts' in OPT: Stamps.only = ['start', 'karg', 'iss0', 'setup', 'side', 'st0', 'mfma_done', 'end'] + [f'n{i}' for i in range(64)]
    s = build(ts='ts' in sys.argv or 'ts2' in sys.argv)
    open(dst, 'w').write(s)
    print(len(s), 'bytes ->', dst)
```

```python
import sys
from asmgen import *
import os
if 'gtab' in sys.argv: os.environ['TAB_WITH_G'] = '1'
from tables import tables_asm, TAB_F, TAB_G, TAB_E64, TAB_E32, TAB_TW, TAB_END
import common as C
from common import VM, Stamps, kernel_header, kernel_desc, S_X, S_W1, S_W3, S_W2, S_WS, S_OUT, S_TAB, S_WR, S_WI
NAME = 'parallel_sum__spectral_gfnet__glu_gated_swiglu__prompt_kernel'
OPT = set()
WS_EPOCH = 0x0
WS_HF = 0x1000
WS_UF = 0x2000
WS_WTF = 0x3000
WS_VF = 0x4000
WS_ST = 0x10000
WS_CS = 0x20000
WS_WT, WS_U, WS_V, WS_H = 0x100000, 0x340000, 0x580000, 0x800000
CSTR = 8192 + 512
WSTR = 8192 + 128
C.CSTR, C.WSTR = CSTR, WSTR
WS_SIZE = 0x1400000
C.WS_WT, C.WS_U, C.WS_V, C.WS_H = WS_WT, WS_U, WS_V, WS_H
S_WV, S_WR_, S_WC, S_RB, S_CB, S_G, S_NON, S_ROT = 40, 41, 42, 43, 44, 45, 46, 47
S_XO, S_WO0, S_WO1, S_FO, S_HO, S_UO = 48, 49, 50, 51, 52, 53
S_MX, S_MW1 = 54, 55
T = 56
S_RB2, S_G2, S_CB2 = 84, 85, 86
S_SX, S_SW = 87, 88
S_PAR = 89
S_ST = 101
S_K2, S_CBLK = 90, 91
S_A, S_B, S_C_, S_D = 92, 93, 94, 95
L_X, L_W = 0x0000, 0x10000
L_UT = 0x0000
L_MISC = 0x24000
L_U = L_MISC
L_Y = L_MISC + 0x2000
L_WTB = L_MISC
L_AX = L_MISC + 0x2400
L_RS = L_AX + 0x1000
L_CSW = 0x20000
LDS_TOTAL = 0x28000
V_L = 1
V_XA = 2
V_WA = 6
V_FA = 8
V_XD = 9
V_W1D = 13
V_W3D = 15
V_FD = 17
V_C1, V_C2 = 18, 20
V_BX = 24
V_HO, V_UTW, V_UTR, V_UO = 32, 33, 34, 35
V_ONE = 36
V_SR = 40
V_WTD = 48
V_STG = 64
V_CSG = 68
V_A0, V_A1, V_A2, V_A3 = 76, 77, 78, 79
ET = 80
AF = 104
ACC = 128
V_TS = 23
V_L0 = 22
S_F0, S_F1 = 96, 97
S_EP, S_EP2 = 98, 99
S_SPIN = 100
S_PP = 3
V_TCH = 44
S_DBG = 68
S_CD = 72
TOUCH_AT = 11
TOUCH1_AT = 7
TOUCH_STEP = 4
GT_AT = 41
CS0_LD = 18
SETUP_AT = 19
EPI0_AT = 39
SPIN_MAX = 100000
slow_id = [0]
V_L0T = 42
V_C1P, V_C2P = 96, 100
V_EA = 41
def acc(p, t, e): return ACC + p*64 + t*32 + e*16
def xf(e, kk): return (e*32 + kk)*4
class Sched:
    def __init__(self, k, vm): self.k = k; self.vm = vm; self.q = []
    def add(self, items): self.q += items
    def pop(self, nmax):
        c = 0
        while self.q and c < nmax:
            e = self.q[0]
            if e == 'STEP': return
            self.q.pop(0)
            if isinstance(e, tuple):
                if e[0] == 'vm': self.vm.issue(e[1], e[2])
                elif e[0] == 'call': e[1]()
                elif e[0] == 'grp':
                    for x in e[1]:
                        if isinstance(x, tuple): self.vm.issue(x[1], x[2])
                        else: self.k(x)
                    c += len(e[1]) - 1
            else: self.k(e)
            c += 1
    def newstep(self):
        if self.q and self.q[0] == 'STEP': self.q.pop(0)
    def flush(self):
        while self.q:
            if self.q[0] == 'STEP':
                self.q.pop(0); self.k('s_waitcnt lgkmcnt(0)')
            else: self.pop(1)
slow_paths = []
def tag_cmp(k, regs):
    k(f'v_cmp_ne_u32 vcc, s{S_NON}, v{regs[0]}')
    for r in regs[1:]:
        k(f'v_cmp_ne_u32 s[{T+6}:{T+7}], s{S_NON}, v{r}'); k('s_nop 3'); k(f's_or_b64 vcc, vcc, s[{T+6}:{T+7}]')
    if len(regs) == 1: k('s_nop 3')
    k('s_cmp_lg_u64 vcc, 0')
def tag_check(k, label, regs, reload_lines):
    tag_cmp(k, regs); k(f's_cbranch_scc1 L_slow_{label}')
    k.label(f'L_back_{label}')
    sp = K()
    slow_id[0] += 1
    sp.label(f'L_slow_{label}')
    sp(f's_sub_u32 s{S_SPIN}, s{S_SPIN}, 1'); sp(f's_cbranch_scc1 L_tmo_{label}')
    sp('s_sleep 2')
    for l in reload_lines: sp(l)
    sp('s_waitcnt vmcnt(0)')
    tag_cmp(sp, regs); sp(f's_cbranch_scc1 L_slow_{label}')
    sp(f's_branch L_back_{label}')
    sp.label(f'L_tmo_{label}')
    sp(f's_mov_b32 s{S_SPIN}, 0')
    sp(f'v_mov_b32 v{regs[0]}, {slow_id[0]}'); sp(f'v_mov_b32 v{V_L0T}, {4*slow_id[0]}')
    sp(f'buffer_store_dword v{regs[0]}, v{V_L0T}, s[{S_DBG}:{S_DBG+3}], 0 offen')
    sp(f's_branch L_back_{label}')
    slow_paths.append(sp)
def srd(k, s, lo, hi, size):
    k(f's_mov_b32 s{s}, s{lo}'); k(f's_mov_b32 s{s+1}, s{hi}'); k(f's_mov_b32 s{s+2}, {size}'); k(f's_mov_b32 s{s+3}, 0x20000')
def prologue(k, st):
    L, T0, T1, T2 = V_L, V_A0, V_A1, V_A2
    k('s_load_dwordx16 s[64:79], s[0:1], 0'); k('s_load_dwordx4 s[80:83], s[0:1], 64')
    k(f'v_and_b32 v{L}, 63, v0'); k(f'v_lshrrev_b32 v{T0}, 6, v0'); k('s_nop 0')
    k(f'v_readfirstlane_b32 s{S_WV}, v{T0}')
    k(f's_and_b32 s{T}, s2, 7'); k(f's_lshr_b32 s{T+1}, s2, 3')
    k(f's_and_b32 s{S_WR_}, s{S_WV}, 1'); k(f's_lshr_b32 s{S_WC}, s{S_WV}, 1')
    k(f's_and_b32 s{S_RB}, s{T}, 1'); k(f's_lshl_b32 s{S_RB}, s{S_RB}, 3')
    k(f's_and_b32 s{T+2}, s{T+1}, 7'); k(f's_add_u32 s{S_RB}, s{S_RB}, s{T+2}')
    k(f's_lshr_b32 s{S_G}, s{T}, 1'); k(f's_lshr_b32 s{T+2}, s{T+1}, 3')
    k(f's_mul_i32 s{S_CB}, s{S_G}, 3'); k(f's_add_u32 s{S_CB}, s{S_CB}, s{T+2}'); k(f's_add_u32 s{T+3}, s{S_G}, 12')
    k(f's_cmp_eq_u32 s{T+2}, 3'); k(f's_cselect_b32 s{S_CB}, s{T+3}, s{S_CB}')
    k(f's_lshl_b32 s{T+2}, s{T}, 2'); k(f's_and_b32 s{T+3}, s{T+1}, 3'); k(f's_add_u32 s{T+2}, s{T+2}, s{T+3}')
    k(f's_lshr_b32 s{S_RB2}, s{T+2}, 1'); k(f's_and_b32 s{S_G2}, s{T+2}, 1'); k(f's_lshr_b32 s{S_CB2}, s{T+1}, 2')
    k(f's_lshr_b32 s{S_PP}, s{S_RB}, 1'); k(f's_lshr_b32 s{T+2}, s{T+1}, 3'); k(f's_add_u32 s{S_ROT}, s{S_PP}, s{T+2}')
    k(f's_and_b32 s{S_ROT}, s{S_ROT}, 3'); k(f's_lshl_b32 s{S_ROT}, s{S_ROT}, 1'); k(f's_and_b32 s{S_PAR}, s{S_RB}, 1')
    if 'norot2' not in OPT:
        k(f's_lshr_b32 s{T+2}, s{T}, 1'); k(f's_add_u32 s{T+2}, s{T+2}, s{T}'); k(f's_and_b32 s{T+2}, s{T+2}, 1'); k(f's_add_u32 s{S_ROT}, s{S_ROT}, s{T+2}')
    k(f's_lshr_b32 s{S_K2}, s2, 2'); k(f's_and_b32 s{S_CBLK}, s2, 3')
    k(f'v_lshrrev_b32 v{T0}, 3, v{L}')
    k(f'v_and_b32 v{T1}, 3, v{T0}'); k(f'v_lshlrev_b32 v{T1}, 15, v{T1}')
    k(f'v_lshrrev_b32 v{T2}, 2, v{T0}'); k(f'v_lshl_add_u32 v{T1}, v{T2}, 10, v{T1}')
    k(f's_lshl_b32 s{T+2}, s{S_WV}, 13'); k(f'v_add_u32 v{T1}, s{T+2}, v{T1}')
    k(f'v_and_b32 v{T2}, 7, v{L}')
    for e in range(4):
        k(f'v_lshrrev_b32 v{V_A3}, 4, v{L}'); k(f'v_add_u32 v{V_A3}, {4*e}, v{V_A3}'); k(f'v_and_b32 v{V_A3}, 7, v{V_A3}')
        k(f'v_xor_b32 v{V_A3}, v{V_A3}, v{T2}'); k(f'v_lshl_add_u32 v{V_XD+e}, v{V_A3}, 4, v{T1}')
        if e: k(f'v_add_u32 v{V_XD+e}, {e*1024}, v{V_XD+e}')
    k(f's_lshl_b32 s{T+2}, s{S_WV}, 4'); k(f'v_add_u32 v{T0}, s{T+2}, v{T0}')
    k(f'v_bfe_u32 v{T1}, v{L}, 4, 1'); k(f'v_bfe_u32 v{T2}, v{L}, 1, 2'); k(f'v_xor_b32 v{T1}, v{T1}, v{T2}')
    k(f'v_mul_u32_u24 v{T0}, 3584, v{T0}'); k(f'v_and_b32 v{T2}, 1, v{L}'); k(f'v_lshl_add_u32 v{T0}, v{T2}, 4, v{T0}')
    k(f'v_lshl_add_u32 v{V_W1D}, v{T1}, 5, v{T0}'); k(f'v_add_u32 v{V_W1D+1}, {8*3584-1024}, v{V_W1D}')
    k(f'v_xor_b32 v{T1}, 2, v{T1}'); k(f'v_lshl_add_u32 v{V_W3D}, v{T1}, 5, v{T0}'); k(f'v_add_u32 v{V_W3D+1}, {8*3584-1024}, v{V_W3D}')
    k(f's_lshl_b32 s{T+2}, s{S_WV}, 12'); k(f'v_lshl_add_u32 v{V_FD}, v{L}, 4, s{T+2}')
    k(f's_lshl_b32 s{S_MX}, s{S_WV}, 12')
    k(f's_lshl_b32 s{S_MW1}, s{S_WV}, 11'); k(f's_add_u32 s{S_MW1}, s{S_MW1}, {L_W}')
    k(f's_lshl_b32 s{S_XO}, s{S_RB}, 17')
    k(f's_lshl_b32 s{S_WO0}, s{S_CB}, 8'); k(f's_add_u32 s{S_WO1}, s{S_WO0}, 128')
    k(f's_lshl_b32 s{T+2}, s{S_G}, 7'); k(f's_add_u32 s{T+2}, s{T+2}, {1536*2}')
    k(f's_cmp_ge_u32 s{S_CB}, 12'); k(f's_cselect_b32 s{S_WO1}, s{T+2}, s{S_WO1}')
    k(f's_lshl_b32 s{S_FO}, s{S_G}, 17'); k(f's_add_u32 s{S_FO}, s{S_FO}, {TAB_F}')
    k(f's_getpc_b64 s[{S_TAB}:{S_TAB+1}]')
    k(f's_add_u32 s{S_TAB}, s{S_TAB}, TABS@rel32@lo+4'); k(f's_addc_u32 s{S_TAB+1}, s{S_TAB+1}, TABS@rel32@hi+12')
    k(f's_mov_b32 s{S_TAB+2}, {TAB_END}'); k(f's_mov_b32 s{S_TAB+3}, 0x20000')
    k('s_waitcnt lgkmcnt(0)')
    k(f's_load_dword s{S_NON}, s[82:83], {WS_EPOCH}')
    srd(k, S_X, 64, 65, 2048*512*2); srd(k, S_W1, 72, 73, 512*1792*2); srd(k, S_W3, 74, 75, 512*1792*2)
def prologue2(k):
    L, T0, T1, T2 = V_L, V_A0, V_A1, V_A2
    srd(k, S_W2, 76, 77, 1792*512*2)
    srd(k, S_OUT, 78, 79, 2048*512*2); srd(k, S_WS, 82, 83, WS_SIZE); srd(k, S_DBG, 80, 81, 256)
    k(f's_mov_b32 s{S_SPIN}, {SPIN_MAX}')
    k(f'v_and_b32 v{T0}, 31, v{L}'); k(f'v_lshrrev_b32 v{T1}, 5, v{L}'); k(f'v_bfe_u32 v{T2}, v{T0}, 1, 3')
    k(f'v_xor_b32 v{T1}, v{T1}, v{T2}'); k(f'v_lshlrev_b32 v{T1}, 4, v{T1}')
    k(f's_lshl_b32 s{T}, s{S_WR_}, 13'); k(f'v_lshl_add_u32 v{T0}, v{T0}, 7, s{T}')
    for ks in range(4):
        k(f'v_xor_b32 v{V_XA+ks}, {ks*32}, v{T1}'); k(f'v_add_u32 v{V_XA+ks}, v{V_XA+ks}, v{T0}')
    k(f'v_bfe_u32 v{T0}, v{L}, 4, 1'); k(f'v_bfe_u32 v{T1}, v{L}, 2, 2')
    k(f'v_lshrrev_b32 v{T2}, 1, v{T1}'); k(f'v_lshl_or_b32 v{T2}, v{T0}, 1, v{T2}')
    k(f'v_lshlrev_b32 v{T0}, 13, v{T0}'); k(f'v_lshl_add_u32 v{T0}, v{T1}, 7, v{T0}')
    k(f'v_lshrrev_b32 v{T1}, 5, v{L}'); k(f'v_lshl_add_u32 v{T0}, v{T1}, 10, v{T0}')
    k(f'v_and_b32 v{T1}, 3, v{L}'); k(f'v_lshl_add_u32 v{T0}, v{T1}, 3, v{T0}'); k(f'v_add_u32 v{T0}, {L_W}, v{T0}')
    k(f's_lshl_b32 s{T}, s{S_WC}, 1')
    for t in range(2):
        k(f's_add_u32 s{T+1}, s{T}, {t}'); k(f'v_xor_b32 v{T1}, s{T+1}, v{T2}'); k(f'v_lshl_add_u32 v{V_WA+t}, v{T1}, 5, v{T0}')
    k(f's_lshl_b32 s{T}, s{S_WC}, 11'); k(f's_add_u32 s{T}, s{T}, {L_W}'); k(f'v_lshl_add_u32 v{V_FA}, v{L}, 4, s{T}')
    k(f's_mul_i32 s{T}, s{S_WR_}, {2*112*1024}'); k(f'v_lshl_add_u32 v{V_HO}, v{L}, 4, s{T}')
    k(f's_mul_i32 s{S_HO}, s{S_RB}, {4*112*1024}'); k(f's_add_u32 s{S_HO}, s{S_HO}, {WS_H}')
    k(f's_mul_i32 s{T}, s{S_G}, 28'); k(f's_lshr_b32 s{T+1}, s2, 6'); k(f's_lshl_b32 s{T+1}, s{T+1}, 2'); k(f's_add_u32 s{T}, s{T}, s{T+1}')
    k(f's_lshl_b32 s{T+1}, s{S_WC}, 1'); k(f's_add_u32 s{T}, s{T}, s{T+1}'); k(f's_lshl_b32 s{T}, s{T}, 10'); k(f's_add_u32 s{S_HO}, s{S_HO}, s{T}')
    k(f'v_and_b32 v{T0}, 15, v{L}'); k(f'v_mul_u32_u24 v{T0}, 528, v{T0}')
    k(f'v_bfe_u32 v{T1}, v{L}, 4, 1'); k(f'v_lshl_add_u32 v{T0}, v{T1}, 3, v{T0}')
    k(f'v_lshrrev_b32 v{T1}, 5, v{L}'); k(f'v_lshl_add_u32 v{T0}, v{T1}, 4, v{T0}')
    k(f's_mul_i32 s{T}, s{S_WC}, {32*528}'); k(f's_lshl_b32 s{T+1}, s{S_WR_}, 8'); k(f's_add_u32 s{T}, s{T}, s{T+1}')
    k(f'v_add_u32 v{V_UTW}, s{T}, v{T0}')
    k(f'v_lshrrev_b32 v{T0}, 5, v{L}'); k(f'v_mul_u32_u24 v{T0}, 528, v{T0}')
    k(f'v_and_b32 v{T1}, 31, v{L}'); k(f'v_lshl_add_u32 v{T0}, v{T1}, 4, v{T0}')
    k(f's_mul_i32 s{T}, s{S_WV}, {16*528}'); k(f'v_add_u32 v{V_UTR}, s{T}, v{T0}')
    k(f'v_lshrrev_b32 v{T0}, 5, v{L}'); k(f'v_mul_u32_u24 v{T0}, {CSTR}, v{T0}'); k(f'v_lshl_add_u32 v{T0}, v{T1}, 4, v{T0}')
    k(f's_mul_i32 s{T}, s{S_WV}, {16*CSTR}'); k(f'v_add_u32 v{V_UO}, s{T}, v{T0}')
    k(f's_mul_i32 s{S_UO}, s{S_G}, {64*CSTR}'); k(f's_lshl_b32 s{T}, s{S_RB}, 9'); k(f's_add_u32 s{S_UO}, s{S_UO}, s{T}'); k(f's_add_u32 s{S_UO}, s{S_UO}, {WS_U}')
    k(f'v_cmp_eq_u32 vcc, 0, v{L}'); k(f'v_mov_b32 v{T0}, 0x7fffffff'); k('s_nop 0'); k(f'v_cndmask_b32 v{V_L0}, v{T0}, 0, vcc')
    for i in range(4): k(f'v_mov_b32 v{V_ONE+i}, 0x3f803f80')
    for e in range(2):
        for i in range(1, 4): k(f'v_mov_b32 v{V_BX+4*e+i}, 0')
def side_loads_stats(k, vm):
    L, T0 = V_L, V_A0
    k(f's_lshl_b32 s{T}, s{S_RB}, 7'); k(f's_lshl_b32 s{T+1}, s{S_CB}, 3'); k(f's_add_u32 s{T}, s{T}, s{T+1}')
    k(f's_lshl_b32 s{T+1}, s{S_WV}, 1'); k(f's_add_u32 s{S_A}, s{T}, s{T+1}')
    k(f's_lshl_b32 s{T}, s{S_A}, 10'); k(f'v_lshlrev_b32 v{T0}, 4, v{L}')
    for e in range(2):
        vm.issue(f'buffer_load_dwordx4 v[{V_SR+4*e}:{V_SR+4*e+3}], v{T0}, s[{S_X}:{S_X+3}], s{T} offen offset:{e*1024}', 'srow')
def side_loads_wt(k, vm):
    L = V_L
    k(f's_lshl_b32 s{T}, s{S_WV}, 9'); k(f's_add_u32 s{T}, s{T}, s{S_K2}'); k(f's_mul_i32 s{T}, s{T}, 514')
    k(f's_lshl_b32 s{T+1}, s{S_CBLK}, 7'); k(f's_add_u32 s{T}, s{T}, s{T+1}'); k(f's_add_u32 s{T}, s{T}, 2')
    k(f'v_lshrrev_b32 v{V_A1}, 3, v{L}'); k(f'v_mul_u32_u24 v{V_A1}, {64*514}, v{V_A1}'); k(f'v_and_b32 v{V_A2}, 7, v{L}'); k(f'v_lshl_add_u32 v{V_A1}, v{V_A2}, 4, v{V_A1}')
    vm.issue(f'buffer_load_dwordx4 v[{V_WTD}:{V_WTD+3}], v{V_A1}, s[{S_WR}:{S_WR+3}], s{T} offen', 'wtl')
    vm.issue(f'buffer_load_dwordx4 v[{V_WTD+4}:{V_WTD+7}], v{V_A1}, s[{S_WI}:{S_WI+3}], s{T} offen', 'wtl')
def stats_code(k, vm):
    X = [192, 200]; S0, S1, Q0, Q1, A = 208, 209, 210, 211, 212
    vm.wait('srow')
    for i in range(4):
        for e in range(2):
            k(f'v_lshlrev_b32 v{X[e]+2*i}, 16, v{V_SR+4*e+i}'); k(f'v_and_b32 v{X[e]+2*i+1}, 0xffff0000, v{V_SR+4*e+i}')
    S = [S0, S1]; Q = [Q0, Q1]
    for e in range(2): k(f'v_add_f32 v{S[e]}, v{X[e]}, v{X[e]+1}'); k(f'v_mul_f32 v{Q[e]}, v{X[e]}, v{X[e]}')
    for e in range(2): k(f'v_fma_f32 v{Q[e]}, v{X[e]+1}, v{X[e]+1}, v{Q[e]}')
    for i in range(2, 8):
        for e in range(2): k(f'v_add_f32 v{S[e]}, v{S[e]}, v{X[e]+i}'); k(f'v_fma_f32 v{Q[e]}, v{X[e]+i}, v{X[e]+i}, v{Q[e]}')
    k('s_nop 1')
    k(f'v_permlane32_swap_b32 v{S0}, v{S1}'); k(f'v_permlane32_swap_b32 v{Q0}, v{Q1}'); k('s_nop 0')
    k(f'v_add_f32 v{S0}, v{S0}, v{S1}'); k(f'v_add_f32 v{Q0}, v{Q0}, v{Q1}'); k('s_nop 1')
    k(f'v_permlane16_swap_b32 v{S0}, v{Q0}'); k('s_nop 1')
    k(f'v_add_f32 v{S0}, v{S0}, v{Q0}')
    for r in (8, 4, 2, 1):
        k('s_nop 1'); k(f'v_add_f32_dpp v{S0}, v{S0}, v{S0} row_ror:{r} row_mask:0xf bank_mask:0xf')
    k(f'v_mov_b32 v{Q0}, v{S0}'); k('s_nop 1')
    k(f'v_permlane16_swap_b32 v{S0}, v{Q0}'); k('s_nop 1')
    k(f'v_mul_f32 v{S0}, 0x3b000000, v{S0}'); k(f'v_mul_f32 v{Q0}, 0x3b000000, v{Q0}')
    k(f'v_fma_f32 v{Q0}, -v{S0}, v{S0}, v{Q0}'); k(f'v_max_f32 v{Q0}, 0, v{Q0}')
    k(f'v_cvt_pk_bf16_f32 v{S0}, v{S0}, v{Q0}')
    k(f'v_and_b32 v{Q0}, 0xffff0000, v{S0}'); k(f'v_add_f32 v{Q0}, 0x3727c5ac, v{Q0}')
    k(f'v_cvt_pk_bf16_f32 v{Q0}, v{Q0}, v{Q0}'); k(f'v_and_b32 v{Q0}, 0xffff0000, v{Q0}')
    k(f'v_sqrt_f32 v{Q0}, v{Q0}'); k(f'v_mov_b32 v{A}, 0xffff')
    k(f'v_cvt_pk_bf16_f32 v{Q0}, v{Q0}, v{Q0}')
    k(f'v_bfi_b32 v{S1}, v{A}, v{S0}, v{Q0}'); k(f'v_mov_b32 v{Q0}, s{S_NON}')
    k(f'v_and_b32 v{A}, 31, v{V_L}'); k(f'v_cmp_eq_u32 vcc, 0, v{A}'); k(f'v_lshrrev_b32 v{A}, 2, v{V_L}'); k(f'v_mov_b32 v{A+1}, 0x7fffffff')
    k(f's_lshl_b32 s{S_B}, s{S_A}, 3'); k(f'v_cndmask_b32 v{A}, v{A+1}, v{A}, vcc'); k(f's_add_u32 s{S_B}, s{S_B}, {WS_ST}')
    k(f'v_mov_b32 v{S0}, v{S1}'); k(f'v_mov_b32 v{S1}, v{Q0}')
    vm.issue(f'buffer_store_dwordx2 v[{S0}:{S1}], v{A}, s[{S_WS}:{S_WS+3}], s{S_B} offen sc1', 'stst')
def wt_items(vm, lg):
    L = V_L; O = V_WTD + 8
    a = [f'v_and_b32 v{V_A0}, 7, v{L}', f'v_lshrrev_b32 v{V_A1}, 3, v{L}',
         f's_lshl_b32 s{S_B}, s{S_WV}, 1', f'v_lshrrev_b32 v{V_A2}, 2, v{V_A1}', f'v_add_u32 v{V_A2}, s{S_B}, v{V_A2}',
         f'v_xor_b32 v{V_A2}, v{V_A2}, v{V_A0}', f'v_lshlrev_b32 v{V_A2}, 4, v{V_A2}',
         f'v_and_b32 v{V_A1}, 3, v{V_A1}', f'v_lshl_add_u32 v{V_A2}, v{V_A1}, 2, v{V_A2}',
         f'v_mul_u32_u24 v{V_A0}, {8*144}, v{V_A0}', f'v_add_u32 v{V_A2}, v{V_A2}, v{V_A0}', f'v_add_u32 v{V_A2}, {L_WTB}, v{V_A2}',
         f's_mov_b32 s{S_B}, 0x05040100', f's_mov_b32 s{S_C_}, 0x07060302', ('call', lambda: vm.wait('wtl'))]
    for j in range(4):
        a += [f'v_perm_b32 v{O+2*j}, v{V_WTD+4+j}, v{V_WTD+j}, s{S_B}', f'v_perm_b32 v{O+2*j+1}, v{V_WTD+4+j}, v{V_WTD+j}, s{S_C_}']
    for i in range(8): a.append(('ds', f'ds_write_b32 v{V_A2}, v{O+i} offset:{i*144}', 'wtw'))
    b = [f'v_lshrrev_b32 v{V_A0}, 3, v{L}', f's_lshl_b32 s{S_B}, s{S_WV}, 4', f'v_add_u32 v{V_A0}, s{S_B}, v{V_A0}',
         f'v_and_b32 v{V_A1}, 7, v{L}', f's_lshl_b32 s{S_C_}, s{S_WV}, 1',
         f'v_xor_b32 v{V_A2}, s{S_C_}, v{V_A1}', f'v_lshlrev_b32 v{V_A2}, 4, v{V_A2}',
         f'v_mul_u32_u24 v{V_A3}, 144, v{V_A0}', f'v_add_u32 v{V_A3}, {L_WTB}, v{V_A3}', f'v_add_u32 v{O}, v{V_A3}, v{V_A2}',
         f'v_xor_b32 v{V_A2}, 16, v{V_A2}', f'v_add_u32 v{O+1}, v{V_A3}, v{V_A2}',
         ('ds', f'ds_read_b128 v[{V_WTD}:{V_WTD+3}], v{O}'), ('ds', f'ds_read_b128 v[{V_WTD+4}:{V_WTD+7}], v{O+1} offset:{8*144}', 'wtr'),
         f'v_mul_u32_u24 v{V_A0}, {WSTR}, v{V_A0}', f'v_lshl_add_u32 v{V_A0}, v{V_A1}, 4, v{V_A0}', f'v_add_u32 v{V_A1}, {8*WSTR}, v{V_A0}',
         f's_mul_i32 s{S_B}, s{S_CBLK}, {64*WSTR}', f's_lshl_b32 s{S_C_}, s{S_K2}, 7', f's_add_u32 s{S_B}, s{S_B}, s{S_C_}', f's_add_u32 s{S_B}, s{S_B}, {WS_WT}',
         ('call', lambda: lg.wait('wtr')),
         ('vm', f'buffer_store_dwordx4 v[{V_WTD}:{V_WTD+3}], v{V_A0}, s[{S_WS}:{S_WS+3}], s{S_B} offen sc1', 'wtst'),
         ('vm', f'buffer_store_dwordx4 v[{V_WTD+4}:{V_WTD+7}], v{V_A1}, s[{S_WS}:{S_WS+3}], s{S_B} offen sc1', 'wtst')]
    return a, b
class LG:
    def __init__(self, k): self.k = k; self.q = []; self.ever = set()
    def issue(self, text, tag=None): self.k(text); self.q.append(tag); self.ever.add(tag)
    def wait(self, tag):
        idx = [i for i, t in enumerate(self.q) if t == tag]
        if not idx: return
        n = len(self.q) - 1 - idx[-1]
        self.k(f's_waitcnt lgkmcnt({min(n, 15)})')
        self.q = self.q[idx[-1]+1:] if n <= 15 else self.q[len(self.q)-15:]
    def drain(self): self.k('s_waitcnt lgkmcnt(0)'); self.q = []
class Sched2:
    def __init__(self, k, vm, lg): self.k = k; self.vm = vm; self.lg = lg; self.q = []; self.lo = []
    def add(self, items, lo=False): (self.lo if lo else self.q).extend(items)
    def emit(self, e):
        if isinstance(e, tuple):
            if e[0] == 'vm': self.vm.issue(e[1], e[2]); return 1
            if e[0] == 'ds': self.lg.issue(e[1], e[2] if len(e) > 2 else None); return 1
            if e[0] == 'call': e[1](); return e[2] if len(e) > 2 else 1
            if e[0] == 'grp':
                return sum(self.emit(x) for x in e[1])
        self.k(e); return 1
    @staticmethod
    def cost(e):
        if isinstance(e, str): return 2 if e.startswith(('v_exp', 'v_rcp', 'v_sin', 'v_cos', 'v_sqrt')) else 1
        return 1
    def pop(self, budget):
        c = 0
        while self.q or self.lo:
            src = self.q or self.lo
            if c + self.cost(src[0]) > budget: break
            e = src.pop(0); n = self.emit(e)
            c += max(n, self.cost(e))
        return c
    def flush(self):
        while self.q or self.lo: self.emit((self.q or self.lo).pop(0))
def ffn_unit(p, t, e, packed=False):
    a = acc(p, t, e); E = ET
    out = []
    if packed:
        for half in range(2):
            g = a + 4*half; u = g + 8
            for r in (0, 2): out.append(f'v_pk_mul_f32 v[{E+r}:{E+r+1}], v[{g+r}:{g+r+1}], v[{V_C1P+2*e}:{V_C1P+2*e+1}]')
            out.append(f'v_exp_f32 v{E}, v{E}'); out.append(f'v_pk_mul_f32 v[{g}:{g+1}], v[{g}:{g+1}], v[{u}:{u+1}]')
            out.append(f'v_exp_f32 v{E+1}, v{E+1}'); out.append(f'v_pk_mul_f32 v[{g+2}:{g+3}], v[{g+2}:{g+3}], v[{u+2}:{u+3}]')
            out.append(f'v_exp_f32 v{E+2}, v{E+2}'); out.append(f'v_exp_f32 v{E+3}, v{E+3}')
            out.append(f'v_pk_fma_f32 v[{E}:{E+1}], v[{E}:{E+1}], v[{V_C2P+2*e}:{V_C2P+2*e+1}], v[{V_C2P+2*e}:{V_C2P+2*e+1}]')
            out.append(f'v_pk_fma_f32 v[{E+2}:{E+3}], v[{E+2}:{E+3}], v[{V_C2P+2*e}:{V_C2P+2*e+1}], v[{V_C2P+2*e}:{V_C2P+2*e+1}]')
            for r in range(4): out.append(f'v_rcp_f32 v{E+r}, v{E+r}')
            out.append('s_nop 0' if half == 0 else f's_add_u32 s{S_EP}, s{S_HO}, {(12*p + t)*1024 + e*112*1024}')
            for r in (0, 2): out.append(f'v_pk_mul_f32 v[{g+r}:{g+r+1}], v[{g+r}:{g+r+1}], v[{E+r}:{E+r+1}]')
            out.append(f'v_cvt_pk_bf16_f32 v{E+4+2*half}, v{g}, v{g+1}')
            out.append(f'v_cvt_pk_bf16_f32 v{E+5+2*half}, v{g+2}, v{g+3}')
    else:
        for half in range(2):
            g = a + 4*half; u = g + 8
            M1 = [f'v_mul_f32 v{E+r}, v{g+r}, v{V_C1+e}' for r in range(4)]
            EX = [f'v_exp_f32 v{E+r}, v{E+r}' for r in range(4)]
            M2 = [f'v_mul_f32 v{g+r}, v{g+r}, v{u+r}' for r in range(4)]
            FM = [f'v_fma_f32 v{E+r}, v{E+r}, v{V_C2+e}, v{V_C2+e}' for r in range(4)]
            RC = [f'v_rcp_f32 v{E+r}, v{E+r}' for r in range(4)]
            M3 = [f'v_mul_f32 v{g+r}, v{g+r}, v{E+r}' for r in range(4)]
            out += [M1[0], M1[1], EX[0], M1[2], EX[1], M1[3], EX[2], M2[0], EX[3], M2[1], FM[0], M2[2], FM[1], RC[0], FM[2], RC[1], FM[3], RC[2], M2[3], RC[3], M3[0]]
            out.append(f's_add_u32 s{S_EP}, s{S_HO}, {(12*p + t)*1024 + e*112*1024}' if half == 1 else M3[1])
            out += ([M3[1]] if half == 1 else []) + [M3[2], M3[3]]
            out.append(f'v_cvt_pk_bf16_f32 v{E+4+2*half}, v{g}, v{g+1}')
            out.append(f'v_cvt_pk_bf16_f32 v{E+5+2*half}, v{g+2}, v{g+3}')
    out.append(('vm', f'buffer_store_dwordx4 v[{E+4}:{E+7}], v{V_HO}, s[{S_WS}:{S_WS+3}], s{S_EP} offen sc1', f'hst{p}'))
    return out
def p1_body(k, isB, st):
    nm = 'B' if isB else 'A'
    vm = VM(k); lg = LG(k); sc = Sched2(k, vm, lg)
    L = V_L
    def dma_group(i):
        p, s_ = i >> 3, i & 7; slot = i & 3
        ch = []
        pre = [f's_add_u32 s{S_ST}, s{S_ROT}, {s_}', f's_and_b32 s{S_ST}, s{S_ST}, 7']
        if i < 8:
            pre += [f's_lshl_b32 s{S_SX}, s{S_ST}, 7', f's_add_u32 m0, s{S_MX}, {L_X + slot*16384}', f's_add_u32 s{S_SX}, s{S_XO}, s{S_SX}']
            for e in range(4):
                ch.append(('grp', pre + [('vm', f'buffer_load_dwordx4 v{V_XD+e}, s[{S_X}:{S_X+3}], s{S_SX} offen offset:{e*1024} lds', ('st', i))])); pre = []
        if isB and p == 0:
            pre += [f's_lshl_b32 s{S_SW}, s{S_ST}, 14', f's_add_u32 m0, s{S_MX}, {L_W + slot*16384}', f's_add_u32 s{S_SW}, s{S_FO}, s{S_SW}']
            for e in range(4):
                ch.append(('grp', pre + [('vm', f'buffer_load_dwordx4 v{V_FD}, s[{S_TAB}:{S_TAB+3}], s{S_SW} offen offset:{e*1024} lds', ('st', i))])); pre = []
        else:
            pre += [f's_mul_i32 s{S_SW}, s{S_ST}, {64*3584}', f's_add_u32 m0, s{S_MW1}, {slot*16384}', f's_add_u32 s{S_SW}, s{S_WO0 if p == 0 else S_WO1}, s{S_SW}']
            for e in range(2):
                ch.append(('grp', pre + [('vm', f'buffer_load_dwordx4 v{V_W1D+e}, s[{S_W1}:{S_W1+3}], s{S_SW} offen offset:{e*1024} lds', ('st', i))])); pre = []
            pre = [f's_add_u32 m0, s{S_MW1}, {slot*16384 + 8192}', 's_nop 0']
            for e in range(2):
                ch.append(('grp', pre + [('vm', f'buffer_load_dwordx4 v{V_W3D+e}, s[{S_W3}:{S_W3+3}], s{S_SW} offen offset:{e*1024} lds', ('st', i))])); pre = []
        return ch
    def reads(n):
        i, ks = n >> 2, n & 3
        p = i >> 3; slot = i & 3; b0 = AF + 8*(n % 3)
        out = []
        if p == 0:
            kk = 4*i + ks
            for e in range(2):
                a = xf(e, kk)
                out.append(('ds', f'ds_read_b128 a[{a}:{a+3}], v{V_XA+ks} offset:{slot*16384 + e*4096}', ('fr', n)))
        for t in range(2):
            b = b0 + 4*t
            if isB and p == 0:
                out.append(('ds', f'ds_read_b128 v[{b}:{b+3}], v{V_FA} offset:{slot*16384 + (ks*4+t)*1024}', ('fr', n)))
            else:
                for part in range(2):
                    out.append(('ds', f'ds_read_b64_tr_b16 v[{b+2*part}:{b+2*part+1}], v{V_WA+t} offset:{slot*16384 + (16*ks+4*part)*128}', ('fr', n)))
        return out
    lab = f'L_cs1d_{nm}'
    g = ([f's_cmp_eq_u32 s{S_PAR}, 0', f's_cbranch_scc1 {lab}'] if isB else []) + \
        [f's_cmp_eq_u32 s{S_PAR}, 0', f's_cselect_b32 s{S_C_}, s{S_WO0}, s{S_WO1}', f's_mul_i32 s{S_B}, s{S_PP}, {64*3584}', f's_add_u32 s{S_B}, s{S_B}, s{S_C_}',
         f's_lshl_b32 s{S_C_}, s{S_WV}, 11', f's_add_u32 m0, s{S_C_}, {L_CSW}', 's_nop 0']
    for e in range(2): g.append(('call', lambda e=e: k(f'buffer_load_dwordx4 v{V_W1D+e}, s[{S_W1}:{S_W1+3}], s{S_B} offen offset:{e*1024} lds')))
    g += [f's_add_u32 m0, s{S_C_}, {L_CSW + 8192}', 's_nop 0']
    for e in range(2): g.append(('call', lambda e=e: k(f'buffer_load_dwordx4 v{V_W3D+e}, s[{S_W3}:{S_W3+3}], s{S_B} offen offset:{e*1024} lds')))
    g.append(lab + ':')
    cs_side = ('grp', g)
    srd(k, S_WR, 66, 67, 2048*257*2); srd(k, S_WI, 68, 69, 2048*257*2)
    if st: st.stamp('karg')
    side_loads_stats(k, vm)
    for x in dma_group(0): sc.emit(x)
    if 'touch0' in OPT:
        k(f's_lshr_b32 s{T}, s2, 6'); k(f's_lshl_b32 s{T}, s{T}, 5'); k(f's_lshl_b32 s{T+1}, s{S_WV}, 3'); k(f's_add_u32 s{T}, s{T}, s{T+1}')
        k(f'v_lshrrev_b32 v{V_A0}, 3, v{L}'); k(f'v_add_u32 v{V_A0}, s{T}, v{V_A0}'); k(f'v_lshlrev_b32 v{V_A0}, 10, v{V_A0}')
        k(f'v_and_b32 v{V_A1}, 7, v{L}'); k(f'v_lshl_add_u32 v{V_A0}, v{V_A1}, 7, v{V_A0}')
        vm.issue(f'buffer_load_dword v0, v{V_A0}, s[{S_X}:{S_X+3}], s{S_XO} offen', 'tch')
        k(f's_and_b32 s{T}, s{S_RB}, 7'); k(f's_lshl_b32 s{T}, s{T}, 6'); k(f'v_add_u32 v{V_A0}, s{T}, v{L}')
        lab = f'L_t0_{nm}'
        if isB:
            k(f's_cmp_ge_u32 s{S_WV}, 2'); k(f's_cbranch_scc1 {lab}w')
            k(f's_lshl_b32 s{T}, s{T}, 8'); k(f's_lshl_b32 s{T+1}, s{S_WV}, 13'); k(f's_add_u32 s{T}, s{T}, s{T+1}'); k(f's_add_u32 s{T}, s{T}, s{S_FO}')
            k(f'v_lshlrev_b32 v{V_A0}, 7, v{L}')
            k(f'buffer_load_dword v0, v{V_A0}, s[{S_TAB}:{S_TAB+3}], s{T} offen'); k(f's_branch {lab}e')
            k.label(f'{lab}w')
        k(f'v_mul_u32_u24 v{V_A0}, 3584, v{V_A0}')
        k(f's_cmp_ge_u32 s{S_WV}, 2'); k(f's_cselect_b32 s{T}, s{S_WO1}, s{S_WO0}')
        k(f's_bitcmp1_b32 s{S_WV}, 0'); k(f's_cbranch_scc1 {lab}3')
        k(f'buffer_load_dword v0, v{V_A0}, s[{S_W1}:{S_W1+3}], s{T} offen'); k(f's_branch {lab}e')
        k.label(f'{lab}3')
        k(f'buffer_load_dword v0, v{V_A0}, s[{S_W3}:{S_W3+3}], s{T} offen')
        k.label(f'{lab}e')
        vm.q.append('tch')
    if st: st.stamp('iss0')
    prologue2(k)
    if 'early' in OPT:
        lab = f'L_early_{nm}'
        k(f's_cmp_eq_u32 s{S_WV}, 0'); k(f's_cbranch_scc0 {lab}1')
        k(f'v_lshlrev_b32 v{V_A0}, 18, v{L}'); k(f'buffer_load_dword v0, v{V_A0}, s[{S_WS}:{S_WS+3}], 0 offen'); k(f's_branch {lab}e')
        k.label(f'{lab}1')
        k(f's_cmp_eq_u32 s{S_WV}, 1'); k(f's_cbranch_scc0 {lab}2')
        k(f'v_lshlrev_b32 v{V_A0}, 15, v{L}'); k(f'buffer_load_dword v0, v{V_A0}, s[{S_OUT}:{S_OUT+3}], 0 offen'); k(f's_branch {lab}e')
        k.label(f'{lab}2')
        k(f's_getpc_b64 s[{S_CD}:{S_CD+1}]'); k.label(f'{lab}pc')
        k(f's_mov_b32 s{S_CD+2}, 0x8000'); k(f's_mov_b32 s{S_CD+3}, 0x20000')
        k(f's_lshr_b32 s{T}, s2, 3'); k(f's_and_b32 s{T}, s{T}, 1'); k(f's_lshl_b32 s{T}, s{T}, 1'); k(f's_and_b32 s{T+1}, s{S_WV}, 1'); k(f's_add_u32 s{T}, s{T}, s{T+1}'); k(f's_lshl_b32 s{T}, s{T}, 13')
        k(f'v_lshlrev_b32 v{V_A0}, 7, v{L}'); k(f'buffer_load_dword v0, v{V_A0}, s[{S_CD}:{S_CD+3}], s{T} offen')
        k.label(f'{lab}e')
    k('s_waitcnt lgkmcnt(0)')
    k(f's_mul_i32 s{S_NON}, s{S_NON}, 0x19660D'); k(f's_add_u32 s{S_NON}, s{S_NON}, 0x3C6EF35F')
    if st: st.stamp('setup')
    for x in dma_group(1): sc.emit(x)
    if st: st.stamp('iss1')
    stats_code(k, vm)
    if st: st.stamp('side')
    vm.wait(('st', 0)); k('s_barrier')
    if st: st.stamp('st0')
    for x in reads(0) + reads(1): sc.emit(x)
    ev = {}
    evlo = {}
    def at(n, items, lo=False): (evlo if lo else ev).setdefault(n, []).extend(items)
    def flag_store(off_items, tag):
        lab = f'L_fl_{nm}_{tag}'
        return ('grp', [f's_cmp_lg_u32 s{S_WV}, 0', f's_cbranch_scc1 {lab}'] + off_items +
                [f'v_mov_b32 v{V_SR}, s{S_NON}',
                 ('call', lambda: k(f'buffer_store_dword v{V_SR}, v{V_L0}, s[{S_WS}:{S_WS+3}], s{S_F0} offen sc1')), lab + ':'])
    bar_pre = {}
    bar_post = {}
    wta, wtb = wt_items(vm, lg)
    at(8, wta); at(14, wtb)
    bar_pre[30] = ['wtst']
    bar_post[30] = [flag_store([f's_lshl_b32 s{S_F0}, s{S_CBLK}, 8', f's_lshl_b32 s{S_F1}, s{S_K2}, 2', f's_add_u32 s{S_F0}, s{S_F0}, s{S_F1}', f's_add_u32 s{S_F0}, s{S_F0}, {WS_WTF}'], 'wt')]
    CT = ET + 8
    cs_at = {}; direct = {}
    def cs_store(lab):
        return ('grp', [f's_cmp_eq_u32 s{S_D}, 0', f's_cbranch_scc1 {lab}',
                        f's_lshl_b32 s{S_B}, s{S_CB}, 3', f's_lshl_b32 s{S_C_}, s{S_WC}, 1', f's_add_u32 s{S_B}, s{S_B}, s{S_C_}', f's_add_u32 s{S_B}, s{S_B}, s{S_WR_}',
                        f's_lshl_b32 s{S_C_}, s{S_PAR}, 2', f's_add_u32 s{S_B}, s{S_B}, s{S_C_}', f's_lshl_b32 s{S_B}, s{S_B}, 3', f's_add_u32 s{S_B}, s{S_B}, s{S_PP}', f's_lshl_b32 s{S_B}, s{S_B}, 8', f's_add_u32 s{S_B}, s{S_B}, {WS_CS}',
                        f'v_mov_b32 v{CT+1}, s{S_NON}', f'v_lshlrev_b32 v{V_A0}, 3, v{L}', f'v_cmp_gt_u32 vcc, 32, v{L}', f'v_mov_b32 v{V_A1}, 0x7fffffff', 's_nop 0',
                        f'v_cndmask_b32 v{V_A0}, v{V_A1}, v{V_A0}, vcc',
                        ('call', lambda: k(f'buffer_store_dwordx2 v[{CT}:{CT+1}], v{V_A0}, s[{S_WS}:{S_WS+3}], s{S_B} offen sc1')), lab + ':'])
    lab = f'L_cs1c_{nm}'
    CF = V_CSG
    g = ([f's_cmp_eq_u32 s{S_PAR}, 0', f's_cselect_b32 s{S_D}, 0, 1', f's_cbranch_scc1 {lab}'] if isB else [f's_mov_b32 s{S_D}, 1']) + [
         f'v_mov_b32 v{V_A0}, v{V_WA}', f's_cmp_eq_u32 s{S_WR_}, 0', f's_cbranch_scc1 {lab}a', f'v_mov_b32 v{V_A0}, v{V_WA+1}', lab + 'a:',
         f'v_add_u32 v{V_A0}, {L_CSW - L_W}, v{V_A0}']
    for ks in range(4):
        b = CF + 4*(ks & 1)
        for part in range(2):
            g.append(f'ds_read_b64_tr_b16 v[{b+2*part}:{b+2*part+1}], v{V_A0} offset:{(16*ks+4*part)*128}')
        if ks & 1:
            g.append('s_waitcnt lgkmcnt(0)')
            for kk_ in (ks - 1, ks):
                b2 = CF + 4*(kk_ & 1)
                g.append(f'v_mfma_f32_32x32x16_bf16 v[{CT}:{CT+15}], v[{V_ONE}:{V_ONE+3}], v[{b2}:{b2+3}], ' + ('0' if kk_ == 0 else f'v[{CT}:{CT+15}]'))
    g.append(lab + ':')
    at(6, [('grp', g)])
    at(7, [cs_store(f"L_csst_{nm}_1")])
    if 'notouch' not in OPT:
        for j in range(7):
            lab = f'L_tw_{nm}_{j}'
            g = [f's_cmp_lg_u32 s{S_WV}, {j & 3}', f's_cbranch_scc1 {lab}', f'v_lshlrev_b32 v{V_TCH+1}, 7, v{L}', f's_lshr_b32 s{S_F0}, s2, 3',
                 f's_mul_i32 s{S_F0}, s{S_F0}, {7*8192}', f's_add_u32 s{S_F0}, s{S_F0}, {j*8192}',
                 ('call', lambda: k(f'buffer_load_dword v0, v{V_TCH+1}, s[{S_W2}:{S_W2+3}], s{S_F0} offen')), lab + ':']
            at(TOUCH_AT + TOUCH_STEP*j, [('grp', g)])
        for wi, srd_ in (((0, S_W1), (1, S_W3)) if 'touch0' not in OPT else ()):
            lab = f'L_tp_{nm}_{wi}'
            g = [f's_cmp_lg_u32 s{S_WV}, {wi}', f's_cbranch_scc1 {lab}', f's_and_b32 s{S_F0}, s{S_RB}, 7', f's_lshl_b32 s{S_F0}, s{S_F0}, 6',
                 f'v_add_u32 v{V_TCH+1}, s{S_F0}, v{L}', f'v_mul_u32_u24 v{V_TCH+1}, 3584, v{V_TCH+1}',
                 ('call', lambda srd_=srd_: k(f'buffer_load_dword v0, v{V_TCH+1}, s[{srd_}:{srd_+3}], s{S_WO1} offen')), lab + ':']
            at(TOUCH1_AT + 2*wi, [('grp', g)])
        if 'gtab' in OPT:
            for j in range(2):
                lab = f'L_tg_{nm}_{j}'
                g = [f's_cmp_lg_u32 s{S_WV}, {2 + j}', f's_cbranch_scc1 {lab}', f'v_lshlrev_b32 v{V_TCH+1}, 7, v{L}', f's_lshr_b32 s{S_F0}, s2, 3',
                     f's_lshl_b32 s{S_F0}, s{S_F0}, 14', f's_add_u32 s{S_F0}, s{S_F0}, {TAB_G + j*8192}',
                     ('call', lambda: k(f'buffer_load_dword v0, v{V_TCH+1}, s[{S_TAB}:{S_TAB+3}], s{S_F0} offen')), lab + ':']
                at(GT_AT + 4*j, [('grp', g)])
        lab = f'L_tch_{nm}'
        g = [f's_cmp_lg_u32 s{S_WV}, 3', f's_cbranch_scc1 {lab}b', f'v_lshlrev_b32 v{V_TCH+1}, 7, v{L}', f's_lshr_b32 s{S_F0}, s2, 3',
             f's_min_u32 s{S_F0}, s{S_F0}, 6', f's_lshl_b32 s{S_F0}, s{S_F0}, 13', f's_add_u32 s{S_F1}, s{S_F0}, {TAB_E64}',
             ('call', lambda: k(f'buffer_load_dword v0, v{V_TCH+1}, s[{S_TAB}:{S_TAB+3}], s{S_F1} offen')), lab + 'b:']
        at(TOUCH_AT + 2, [('grp', g)])
        g = [f's_cmp_lg_u32 s{S_WV}, 2', f's_cbranch_scc1 {lab}c', f'v_lshlrev_b32 v{V_TCH+1}, 7, v{L}', f's_lshr_b32 s{S_F0}, s2, 3',
             f's_min_u32 s{S_F0}, s{S_F0}, 1', f's_lshl_b32 s{S_F0}, s{S_F0}, 13',
             f's_getpc_b64 s[{S_CD}:{S_CD+1}]', f'{lab}pc:', f's_add_u32 s{S_CD}, s{S_CD}, L_common-{lab}pc', f's_addc_u32 s{S_CD+1}, s{S_CD+1}, 0',
             f's_mov_b32 s{S_CD+2}, L_codeend-L_common', f's_mov_b32 s{S_CD+3}, 0x20000',
             ('call', lambda: k(f'buffer_load_dword v0, v{V_TCH+1}, s[{S_CD}:{S_CD+3}], s{S_F0} offen')), lab + 'c:']
        at(TOUCH_AT + 6, [('grp', g)])
    stl = [f'buffer_load_dwordx2 v[{V_STG+2*e}:{V_STG+2*e+1}], v{V_A2+e}, s[{S_WS}:{S_WS+3}], s{S_C_} offen sc1' for e in range(2)]
    staddr = [f'v_and_b32 v{V_A0}, 31, v{L}',
              f'v_and_b32 v{V_A1}, 3, v{V_A0}', f'v_lshlrev_b32 v{V_A2}, 8, v{V_A1}',
              f'v_lshrrev_b32 v{V_A1}, 3, v{V_A0}', f'v_lshl_add_u32 v{V_A2}, v{V_A1}, 4, v{V_A2}',
              f'v_bfe_u32 v{V_A1}, v{V_A0}, 2, 1', f'v_lshl_add_u32 v{V_A2}, v{V_A1}, 3, v{V_A2}',
              f's_lshl_b32 s{S_C_}, s{S_WR_}, 7', f'v_add_u32 v{V_A2}, s{S_C_}, v{V_A2}',
              f'v_add_u32 v{V_A3}, 64, v{V_A2}',
              f's_lshl_b32 s{S_C_}, s{S_RB}, 10', f's_add_u32 s{S_C_}, s{S_C_}, {WS_ST}']
    at(9, staddr + [('vm', l, 'stg') for l in stl])
    def st_check():
        vm.wait('stg')
        tag_check(k, f'st{nm}', [V_STG+1, V_STG+3], staddr + stl)
    stc = [('call', st_check, 8)]
    for e in range(2):
        d = V_STG + 2*e
        stc += [f'v_and_b32 v{d+1}, 0xffff0000, v{d}',
                f'v_and_b32 v{d}, 0xffff, v{d}', f'v_xor_b32 v{d}, 0x8000, v{d}', f'v_lshl_or_b32 v{d}, v{d}, 16, v{d}',
                f'v_mul_f32 v{V_C2+e}, v{d+1}, v{d+1}', f'v_rcp_f32 v{d+1}, v{d+1}', f'v_cmp_gt_u32 vcc, 32, v{L}', 's_nop 0',
                f'v_mul_f32 v{V_C1+e}, 0xbfb8aa3b, v{d+1}', f'v_cndmask_b32 v{V_BX+4*e}, 0, v{d}, vcc']
        if isB:
            stc += [f'v_and_b32 v{V_A0}, 31, v{L}', f'v_lshlrev_b32 v{V_A0}, 2, v{V_A0}', f's_lshl_b32 s{S_C_}, s{S_WR_}, 8', f's_add_u32 s{S_C_}, s{S_C_}, {L_RS + 128*e}',
                    f'v_add_u32 v{V_A0}, s{S_C_}, v{V_A0}', ('ds', f'ds_write_b32 v{V_A0}, v{d+1}')]
    at(18, stc)
    def cs_cons(p):
        if isB and p == 0: return
        early = p == 1 and not isB and 'cs1late' not in OPT
        g = ET if early else V_CSG
        lax = L_WTB if early else L_AX
        n_ld = CS0_LD if p == 0 else (22 if early else 34)
        n_wb = n_ld + 16
        n_rd = n_wb if p == 0 else 50
        addr = [f'v_and_b32 v{V_A0}, 31, v{L}', f'v_lshlrev_b32 v{V_A0}, 3, v{V_A0}', f'v_lshrrev_b32 v{V_A1}, 5, v{L}', f'v_lshl_add_u32 v{V_A0}, v{V_A1}, 10, v{V_A0}',
                f's_lshl_b32 s{S_B}, s{S_CB}, 3', f's_lshl_b32 s{S_C_}, s{S_WC}, 1', f's_add_u32 s{S_B}, s{S_B}, s{S_C_}', f's_add_u32 s{S_B}, s{S_B}, s{S_WR_}',
                f's_add_u32 s{S_B}, s{S_B}, {4*p}', f's_lshl_b32 s{S_B}, s{S_B}, 11', f's_add_u32 s{S_B}, s{S_B}, {WS_CS}']
        lds = [f'buffer_load_dwordx2 v[{g+2*i}:{g+2*i+1}], v{V_A0}, s[{S_WS}:{S_WS+3}], s{S_B} offen offset:{i*256} sc1' for i in range(4)]
        at(n_ld, addr + [('vm', l, f'csg{p}') for l in lds])
        def chk():
            vm.wait(f'csg{p}')
            tag_check(k, f'cs{nm}{p}', [g+1, g+3, g+5, g+7], addr + lds)
        at(n_ld + 12, [('call', chk, 12),
                     f'v_add_f32 v{g}, v{g}, v{g+2}', f'v_add_f32 v{g+4}, v{g+4}, v{g+6}', f'v_add_f32 v{g}, v{g}, v{g+4}', f'v_mov_b32 v{g+1}, v{g}', 's_nop 1',
                     f'v_permlane32_swap_b32 v{g}, v{g+1}', 's_nop 0', f'v_add_f32 v{g}, v{g}, v{g+1}',
                     f'v_cvt_pk_bf16_f32 v{g+1}, v{g}, v{g}', f'v_and_b32 v{g+1}, 0xffff0000, v{g+1}', f'v_sub_f32 v{g+2}, v{g}, v{g+1}',
                     f'v_cvt_pk_bf16_f32 v{g+4}, v{g+1}, v{g+2}', f'v_cmp_gt_u32 vcc, 32, v{L}', f'v_mov_b32 v{g+5}, 0', f'v_mov_b32 v{g+6}, 0',
                     f'v_cndmask_b32 v{g+4}, 0, v{g+4}, vcc', f'v_mov_b32 v{g+7}, 0',
                     f's_lshl_b32 s{S_C_}, s{S_WC}, 1', f's_add_u32 s{S_C_}, s{S_C_}, s{S_WR_}', f's_lshl_b32 s{S_C_}, s{S_C_}, 10', f's_add_u32 s{S_C_}, s{S_C_}, {lax}',
                     f'v_lshl_add_u32 v{V_A0}, v{L}, 4, s{S_C_}', ('ds', f'ds_write_b128 v{V_A0}, v[{g+4}:{g+7}]', f'axw{p}')])
        bar_lg.setdefault(n_wb if (p == 0 or not early) else 42, []).append(f'axw{p}')
        AX = V_WTD
        rd = [f's_lshl_b32 s{S_C_}, s{S_WC}, 11', f's_add_u32 s{S_C_}, s{S_C_}, {lax}', f'v_lshl_add_u32 v{V_A0}, v{L}, 4, s{S_C_}',
              ('ds', f'ds_read_b128 v[{AX}:{AX+3}], v{V_A0}'), ('ds', f'ds_read_b128 v[{AX+4}:{AX+7}], v{V_A0} offset:1024', f'axr{p}')]
        at(n_rd, rd)
        mm = [('call', lambda: lg.wait(f'axr{p}'))]
        for t in range(2):
            for e in range(2):
                a = acc(p, t, e)
                mm.append(f'v_mfma_f32_32x32x16_bf16 v[{a}:{a+15}], v[{AX+4*t}:{AX+4*t+3}], v[{V_BX+4*e}:{V_BX+4*e+3}], v[{a}:{a+15}]')
        at(n_rd + 2, mm)
    bar_lg = {14: ['wtw']}
    cs_cons(0); cs_cons(1)
    if not isB:
        items = []
        for t in range(2):
            for e in range(2): items += ffn_unit(0, t, e)
        at(EPI0_AT, items, lo=True)
        bar_pre[H0F] = ['hst0']
        bar_post[H0F] = [flag_store([f's_lshl_b32 s{S_F0}, s{S_RB}, 7', f's_lshl_b32 s{S_F1}, s{S_CB}, 2', f's_add_u32 s{S_F0}, s{S_F0}, s{S_F1}', f's_add_u32 s{S_F0}, s{S_F0}, {WS_HF}'], 'h0')]
    else:
        items = []
        RS = V_WTD
        for e in range(2):
            items += [f'v_lshrrev_b32 v{V_EA}, 5, v{L}', f'v_lshlrev_b32 v{V_EA}, 4, v{V_EA}', f's_lshl_b32 s{S_EP}, s{S_WR_}, 8', f's_add_u32 s{S_EP}, s{S_EP}, {L_RS + 128*e}',
                      f'v_add_u32 v{V_EA}, s{S_EP}, v{V_EA}']
            for q in range(4): items.append(('ds', f'ds_read_b128 v[{RS+4*q}:{RS+4*q+3}], v{V_EA} offset:{q*32}', f'rs{e}'))
            items.append(('call', lambda e=e: lg.wait(f'rs{e}')))
            for t in range(2):
                a = acc(0, t, e)
                for q in range(4):
                    for r in range(4): items.append(f'v_mul_f32 v{a+4*q+r}, v{a+4*q+r}, v{RS+4*q+r}')
                    E = ET + 2*(q & 3)
                    items.append(f'v_cvt_pk_bf16_f32 v{E}, v{a+4*q}, v{a+4*q+1}'); items.append(f'v_cvt_pk_bf16_f32 v{E+1}, v{a+4*q+2}, v{a+4*q+3}')
                    items.append(('ds', f'ds_write_b64 v{V_UTW}, v[{E}:{E+1}] offset:{L_UT + t*16*528 + e*128 + q*32}', 'utw_last' if (e, t, q) == (1, 1, 3) else 'utw'))
        at(33, items, lo=True)
        UTB = UTB0; UFL = UFL0
        bar_lg.setdefault(UTB, []).append('utw_last')
        rb = []
        for half in range(2):
            for e in range(4):
                E = ET + 4*e
                rb.append(('ds', f'ds_read_b128 v[{E}:{E+3}], v{V_UTR} offset:{L_UT + (4*half+e)*2*528}', f'utr{half}'))
            rb.append(('call', lambda half=half: lg.wait(f'utr{half}')))
            for e in range(4):
                E = ET + 4*e
                rb.append(f's_add_u32 s{S_EP}, s{S_UO}, {(4*half+e)*2*CSTR}')
                rb.append(('vm', f'buffer_store_dwordx4 v[{E}:{E+3}], v{V_UO}, s[{S_WS}:{S_WS+3}], s{S_EP} offen sc1', 'ust_last' if (half, e) == (1, 3) else 'ust'))
            rb.append('s_nop 0'); rb.append('s_nop 0')
        at(UTB, rb, lo=True)
        bar_pre[UFL] = ['ust_last']
        bar_post[UFL] = [flag_store([f's_lshl_b32 s{S_F0}, s{S_G}, 7', f's_lshl_b32 s{S_F1}, s{S_RB}, 2', f's_add_u32 s{S_F0}, s{S_F0}, s{S_F1}', f's_add_u32 s{S_F0}, s{S_F0}, {WS_UF}'], 'u')]
    NST = 64
    dmaq = [cs_side, ('call', lambda: side_loads_wt(k, vm), 12)] + dma_group(2) + dma_group(3); dstep = [1]; dcnt = [0]
    BARGAP = BARG; PF0 = 50 if isB else 46
    pf_setup, pf = tail_prefetch_items()
    sc_setup_done = [False]
    for n in range(NST):
        i, ks = n >> 2, n & 3
        p = i >> 3
        mand = []
        dobar = (ks == 2 and i + 1 < 16) or n == 62
        def barrier_now():
            for tg in bar_pre.get(n, []): assert tg in vm.ever or 'noepi' in OPT, (n, tg)
            if 'hst0' in bar_pre.get(n, []): assert not sc.lo, (n, len(sc.lo), len(sc.q))
            for tg in bar_lg.get(n, []): assert tg in lg.ever, (n, tg)
            vm.wait_many(([('st', i + 1)] if i + 1 < 16 else []) + bar_pre.get(n, []))
            for tg in bar_lg.get(n, []): lg.wait(tg)
            lg.wait(('fr', n + 1))
            if 'nobar' not in OPT: k('s_barrier')
            for x in bar_post.get(n, []): sc.emit(x)
            if i + 4 < 16 and 'nodma' not in OPT:
                assert not dmaq or n <= 6, (n, len(dmaq))
                dmaq.extend(dma_group(i + 4)); dstep[0] = max(1, 16 // len(dmaq)); dcnt[0] = 0
        rd = reads(n + 2) if (n + 2 < NST and 'noreads' not in OPT) else []
        if n in ev and not dobar: sc.add(ev.pop(n))
        if n in evlo and not dobar:
            x_ = evlo.pop(n)
            if 'noepi' not in OPT or isB: sc.add(x_, lo=True)
        if n == SETUP_AT: sc.add(pf_setup, lo=True)
        for x in direct.get(n, []): k(x)
        lg.wait(('fr', n))
        if st and n in (tuple(range(2, 34, 2)) if 'p0ts' in OPT else (33, 39, 42, 43, 44, 46, 47, 50, 54, 58, 59, 62) if 'bts' in OPT else () if 'g2ts' in OPT else (32,) if 'tailts' in OPT else (16, 32, 48) if 'fine' in OPT else (8, 16, 24, 32, 40, 48, 56)): st.stamp(f'n{n}')
        kk = 4*(i & 7) + ks
        b0 = AF + 8*(n % 3)
        mand = rd + mand
        gap = 0
        for t in range(2):
            for e in range(2):
                a = acc(p, t, e); d = f'v[{a}:{a+15}]'; c = '0' if kk == 0 else d
                x = f'a[{xf(e, kk)}:{xf(e, kk)+3}]'; w = f'v[{b0+4*t}:{b0+4*t+3}]'
                if isB and p == 0: k(f'v_mfma_f32_32x32x16_bf16 {d}, {x}, {w}, {c}')
                else: k(f'v_mfma_f32_32x32x16_bf16 {d}, {w}, {x}, {c}')
                used = 0
                if dobar and gap == BARGAP:
                    barrier_now(); used += 3
                    if n in ev: sc.add(ev.pop(n))
                    if n in evlo:
                        x_ = evlo.pop(n)
                        if 'noepi' not in OPT or isB: sc.add(x_, lo=True)
                if not (dobar and gap < BARGAP):
                    g0 = BARGAP if dobar else 0
                    nm_ = (len(mand) + (3 - gap)) // (4 - gap)
                    for _ in range(nm_):
                        used += sc.emit(mand.pop(0))
                if dmaq and dcnt[0] % dstep[0] == 0: used += sc.emit(dmaq.pop(0))
                elif pf and not dmaq and n >= PF0 and (4*n + gap) % 2 == 1 and (len(pf) > 4 or n >= 56):
                    while pf and not any(isinstance(x_, tuple) and x_[0] == 'vm' for x_ in pf[0][1]): used += sc.emit(pf.pop(0))
                    used += sc.emit(pf.pop(0))
                dcnt[0] += 1
                if gap == 3 and n in cs_at:
                    for x_ in cs_at[n]: used += sc.emit(x_)
                sc.pop(max(0, (BUDGET + (BEXTRA if (isB and 32 < n < 42) else 0)) - used))
                gap += 1
        assert not mand
    assert not ev and not evlo, (ev.keys(), evlo.keys())
    sc.flush()
    for x in pf: sc.emit(x)
    lg.drain()
    return vm
BUDGET = 6
BARG = 1
UTB0, UFL0 = 42, 50
H0F = 62
BEXTRA = 1
PACKED = 1
def remap_temps(items, lo, new, n):
    import re
    def f(s):
        def r1(m):
            v = int(m.group(1)); return f'v{v - lo + new}' if lo <= v < lo + n else m.group(0)
        def r2(m):
            a, b = int(m.group(1)), int(m.group(2))
            return f'v[{a-lo+new}:{b-lo+new}]' if lo <= a < lo + n else m.group(0)
        s = re.sub(r'v\[(\d+):(\d+)\]', r2, s)
        return re.sub(r'\bv(\d+)\b', r1, s)
    out = []
    for e in items:
        if isinstance(e, str): out.append(f(e))
        elif e[0] in ('vm', 'ds'): out.append((e[0], f(e[1])) + tuple(e[2:]))
        else: out.append(e)
    return out
A_E64, A_E32, A_H = 0, 32, 96
NH = 20
V_L16, V_DW, V_PL = 43, 44, 45
V_DW1 = 2
V_L16H = 47
TW, UFR, WT_, D_, T_, B_, WU = 48, 64, 112, 192, 208, 224, 232
V_UA, V_VA, V_YW0, V_YW1, V_YR0, V_YR1, V_P0, V_P1 = 24, 25, 26, 27, 28, 29, 30, 31
V_TW0, V_TW1, V_TV0, V_TV1, V_DV, V_RA, V_OO, V_GP, V_G0, V_G1 = 2, 3, 4, 5, 6, 7, 8, 9, 10, 11
G_D = 12
G_PH = 16
G_TR, G_X, G_T, G_ACC, G_G = 96, 112, 120, 128, 192
S_HB, S_W2B, S_VB, S_LB, S_PA, S_PB, S_VS = 72, 73, 74, 75, 76, 77, 78
S_R2, S_PC = 79, 80
S_WOF, S_W2C, S_HOF = 81, 82, 83
S_WBLK = 32
S_HBLK = 8
S_RA = 79
V_DV1 = 40
RING = 18
SL = [16, 17, 5, 6, 7, 0, 1, 2, 3, 4, 8, 9, 10, 11, 12, 13, 14, 15]
def slot_addr(n): return SL[n % RING]*8192
RED_STRIDE = 1056; RED_W = 16*RED_STRIDE
def mf16(d, a, b, c, aa='v', ab='v'):
    return f'v_mfma_f32_16x16x32_bf16 v[{d}:{d+3}], {aa}[{a}:{a+3}], {ab}[{b}:{b+3}], ' + ('0' if c is None else f'v[{c}:{c+3}]')
def flag_store_now(k, off_items, lab):
    k(f's_cmp_lg_u32 s{S_WV}, 0'); k(f's_cbranch_scc1 {lab}')
    for x in off_items: k(x)
    k(f'v_mov_b32 v{V_PL}, s{S_NON}')
    k(f'buffer_store_dword v{V_PL}, v{V_L0}, s[{S_WS}:{S_WS+3}], s{S_F0} offen sc1')
    k.label(lab)
def w2_row(n):
    return S_WBLK + (n >> 2), (n & 3)*16384
def rot_items(kind):
    o = []
    A, R = S_RA, S_PB
    o.append(('grp', [f's_mul_i32 s{R}, s{S_CB2}, 11', f's_lshr_b32 s{R}, s{R}, 5', f's_mul_i32 s{R}, s{R}, 3', f's_sub_u32 s{R}, s{S_CB2}, s{R}']))
    for j in range(3):
        g = [f's_add_u32 s{A}, s{R}, {j}', f's_sub_u32 s{S_PA}, s{A}, 3', f's_min_u32 s{A}, s{A}, s{S_PA}']
        if kind == 'w': g += [f's_lshl_b32 s{A}, s{A}, 17', f's_add_u32 s{S_WBLK+j}, s{S_W2B}, s{A}']
        else: g += [f's_lshl_b32 s{A}, s{A}, 12', f's_add_u32 s{S_HBLK+j}, s{S_HB}, s{A}']
        o.append(('grp', g))
    for j in range(4):
        g = [f's_add_u32 s{A}, s{S_CB2}, {j}', f's_and_b32 s{A}, s{A}, 3']
        if kind == 'w':
            g += [f's_lshl_b32 s{S_PA}, s{A}, 17', f's_add_u32 s{S_PA}, s{S_PA}, {4*16384}', f's_add_u32 s{S_PA}, s{S_PA}, s{S_W2B}',
                  f's_cmp_eq_u32 s{A}, 3', f's_cselect_b32 s{S_WBLK+3+j}, s{S_W2C}, s{S_PA}']
        else:
            g += [f's_lshl_b32 s{A}, s{A}, 12', f's_add_u32 s{A}, s{A}, {12*1024}', f's_add_u32 s{S_HBLK+3+j}, s{S_HB}, s{A}']
        o.append(('grp', g))
    return o
def w2_dma_chunks(n):
    a = slot_addr(n); b, o = w2_row(n)
    return [('grp', [f's_add_u32 m0, s{S_LB}, {a}', f's_add_u32 s{S_WOF}, s{b}, {o}', ('vm', f'buffer_load_dwordx4 v{V_DW}, s[{S_W2}:{S_W2+3}], s{S_WOF} offen lds', ('w', n))]),
            ('grp', [('vm', f'buffer_load_dwordx4 v{V_DW+V_DW1}, s[{S_W2}:{S_W2+3}], s{S_WOF} offen offset:1024 lds', ('w', n))])]
def tail_prefetch_items():
    L = V_L; T0, T1 = V_P0, V_P1
    it = []
    T0, T1 = 46, 47
    pre = [f'v_lshlrev_b32 v{V_L16}, 4, v{L}',
           f'v_lshrrev_b32 v{T0}, 3, v{L}', f'v_lshlrev_b32 v{V_DW}, 10, v{T0}',
           f'v_bfe_u32 v{T0}, v{L}, 4, 1', f'v_bfe_u32 v{T1}, v{L}, 2, 1', f'v_xor_b32 v{T0}, v{T0}, v{T1}',
           f'v_lshl_add_u32 v{V_DW}, v{T0}, 6, v{V_DW}', f'v_and_b32 v{T0}, 3, v{L}', f'v_lshl_add_u32 v{V_DW}, v{T0}, 4, v{V_DW}',
           f'v_add_u32 v{V_DW+V_DW1}, {8192-1024}, v{V_DW}', f'v_add_u32 v{V_L16H}, {112*1024}, v{V_L16}',
           f's_mul_i32 s{S_W2B}, s{S_WV}, {24*16384}', f's_lshl_b32 s{S_PA}, s{S_CB2}, 7', f's_add_u32 s{S_W2B}, s{S_W2B}, s{S_PA}',
           f's_lshl_b32 s{S_W2C}, s{S_WV}, 16', f's_add_u32 s{S_W2C}, s{S_W2C}, s{S_PA}', f's_add_u32 s{S_W2C}, s{S_W2C}, {96*16384}',
           f's_lshl_b32 s{S_LB}, s{S_WV}, 11']
    setup = pre + rot_items('w')
    pre = [f's_lshl_b32 s{S_PB}, s{S_WV}, 13', f's_add_u32 s{S_PB}, s{S_PB}, {TAB_E64}']
    for idx in range(8):
        r = A_E64 + 4*idx
        g = pre + ([f's_add_u32 s{S_PB}, s{S_PB}, 4096'] if idx == 4 else [])
        it.append(('grp', g + [('vm', f'buffer_load_dwordx4 a[{r}:{r+3}], v{V_L16}, s[{S_TAB}:{S_TAB+3}], s{S_PB} offen offset:{(idx&3)*1024}', 'pre')])); pre = []
    for i in range(6):
        r = A_E32 + 4*i
        g = [f's_mov_b32 s{S_PB}, {TAB_E32 + (i>>2)*4096}'] if (i & 3) == 0 else []
        it.append(('grp', g + [('vm', f'buffer_load_dwordx4 a[{r}:{r+3}], v{V_L16}, s[{S_TAB}:{S_TAB+3}], s{S_PB} offen offset:{(i&3)*1024}', 'pre')]))
    for n in range(5): it += w2_dma_chunks(n)
    for i in range(4):
        g = [f's_lshl_b32 s{S_PB}, s{S_WV}, 12', f's_add_u32 s{S_PB}, s{S_PB}, {TAB_TW}'] if i == 0 else []
        it.append(('grp', g + [('vm', f'buffer_load_dwordx4 v[{TW+4*i}:{TW+4*i+3}], v{V_L16}, s[{S_TAB}:{S_TAB+3}], s{S_PB} offen offset:{i*1024}', 'tw')]))
    return setup, it
def p2a_poll_lines():
    L = V_L
    return [f's_lshr_b32 s{S_B}, s2, 6', f's_lshl_b32 s{S_C_}, s{S_B}, 7', f's_add_u32 s{S_C_}, s{S_C_}, {WS_UF}',
            f's_lshl_b32 s{S_B}, s{S_B}, 8', f's_add_u32 s{S_B}, s{S_B}, {WS_WTF}',
            f'v_lshlrev_b32 v{V_P0}, 2, v{L}', f'v_and_b32 v{V_P1}, 60, v{V_P0}',
            f'buffer_load_dword v{V_YR0}, v{V_P1}, s[{S_WS}:{S_WS+3}], s{S_C_} offen sc1',
            f'buffer_load_dword v{V_YR1}, v{V_P0}, s[{S_WS}:{S_WS+3}], s{S_B} offen sc1']
class Pacer:
    def __init__(self, k, sc, every): self.k = k; self.sc = sc; self.every = every; self.c = 0; self.q = []
    def __call__(self, s):
        self.k(s); self.tick()
    def tick(self, n=1):
        self.c += n
        if self.c >= self.every and self.q:
            self.c = 0; self.sc.emit(self.q.pop(0))
    def flush(self):
        while self.q: self.sc.emit(self.q.pop(0))
GMARK = '%gmark'
S_GB = 15
GDL = 1
def g2_addr_items():
    L, T0, T1 = V_L, V_G0, V_G1
    o = []
    k = o.append
    k(f's_lshl_b32 s{T}, s{S_RB2}, 2'); k(f's_lshl_b32 s{T+1}, s{S_G2}, 1'); k(f's_add_u32 s{T}, s{T}, s{T+1}')
    k(f's_mul_i32 s{T}, s{T}, 112'); k(f's_mul_i32 s{T+1}, s{S_WV}, 28'); k(f's_add_u32 s{T}, s{T}, s{T+1}')
    k(f's_lshl_b32 s{S_HB}, s{T}, 10'); k(f's_add_u32 s{S_HB}, s{S_HB}, {WS_H}')
    k('#late')
    k(f'v_lshrrev_b32 v{T0}, 4, v{L}'); k(f'v_mul_u32_u24 v{V_DV}, {CSTR}, v{T0}')
    k(f'v_and_b32 v{T0}, 1, v{T0}'); k(f'v_lshlrev_b32 v{T0}, 3, v{T0}'); k(f'v_and_b32 v{T1}, 15, v{L}'); k(f'v_xor_b32 v{T0}, v{T0}, v{T1}')
    k(f'v_lshl_add_u32 v{V_DV}, v{T0}, 4, v{V_DV}'); k(f'v_add_u32 v{V_DV1}, {4*CSTR-1024}, v{V_DV}')
    k(f's_mul_i32 s{S_VB}, s{S_WV}, {64*CSTR}'); k(f's_lshl_b32 s{T}, s{S_RB2}, 9'); k(f's_add_u32 s{S_VB}, s{S_VB}, s{T}')
    k(f's_lshl_b32 s{T}, s{S_G2}, 8'); k(f's_add_u32 s{S_VB}, s{S_VB}, s{T}'); k(f's_add_u32 s{S_VB}, s{S_VB}, {WS_V}')
    k('#now')
    k(f'v_lshrrev_b32 v{T0}, 5, v{L}'); k(f'v_lshlrev_b32 v{V_TW0}, 9, v{T0}')
    k(f'v_bfe_u32 v{T0}, v{L}, 2, 2'); k(f'v_lshl_add_u32 v{V_TW0}, v{T0}, 7, v{V_TW0}')
    k(f'v_bfe_u32 v{T0}, v{L}, 3, 1'); k(f'v_lshl_add_u32 v{V_TW0}, v{T0}, 6, v{V_TW0}')
    k(f'v_bfe_u32 v{T0}, v{L}, 4, 1'); k(f'v_lshl_add_u32 v{V_TW0}, v{T0}, 5, v{V_TW0}')
    k(f'v_and_b32 v{T0}, 3, v{L}'); k(f'v_lshl_add_u32 v{V_TW0}, v{T0}, 3, v{V_TW0}')
    k(f'v_add_u32 v{V_TW0}, s{S_LB}, v{V_TW0}'); k(f'v_xor_b32 v{V_TW1}, 64, v{V_TW0}')
    for va in (V_TW0, V_TW1): k(f'v_add_u32 v{va+V_HI}, 0x10000, v{va}'); k(f'v_add_u32 v{va+V_HI2}, 0x20000, v{va}')
    k('#late')
    k(f'v_lshrrev_b32 v{T0}, 5, v{L}'); k(f'v_lshlrev_b32 v{V_TV0}, 10, v{T0}')
    k(f'v_bfe_u32 v{T0}, v{L}, 3, 1'); k(f'v_lshl_add_u32 v{V_TV0}, v{T0}, 8, v{V_TV0}'); k(f'v_lshl_add_u32 v{V_TV0}, v{T0}, 7, v{V_TV0}')
    k(f'v_bfe_u32 v{T0}, v{L}, 4, 1'); k(f'v_lshl_add_u32 v{V_TV0}, v{T0}, 6, v{V_TV0}')
    k(f'v_and_b32 v{T0}, 3, v{L}'); k(f'v_lshl_add_u32 v{V_TV0}, v{T0}, 4, v{V_TV0}')
    k(f'v_bfe_u32 v{T0}, v{L}, 2, 1'); k(f'v_lshl_add_u32 v{V_TV0}, v{T0}, 3, v{V_TV0}')
    k(f'v_add_u32 v{V_TV0}, s{S_LB}, v{V_TV0}'); k(f'v_xor_b32 v{V_TV1}, 128, v{V_TV0}')
    for va in (V_TV0, V_TV1): k(f'v_add_u32 v{va+V_HI}, 0x10000, v{va}'); k(f'v_add_u32 v{va+V_HI2}, 0x20000, v{va}')
    k(f's_lshr_b32 s{T}, s{S_WV}, 1'); k(f's_and_b32 s{T+1}, s{S_WV}, 1'); k(f's_lshl_b32 s{T+1}, s{T+1}, 4')
    k(f'v_lshrrev_b32 v{T0}, 3, v{L}'); k(f'v_add_u32 v{T0}, s{T+1}, v{T0}')
    k(f'v_and_b32 v{T1}, 7, v{L}')
    k(f'v_mul_u32_u24 v{V_RA}, {RED_STRIDE}, v{T1}'); k(f'v_lshl_add_u32 v{V_RA}, v{T0}, 4, v{V_RA}')
    k(f's_mul_i32 s{T+2}, s{T}, {8*RED_STRIDE}'); k(f'v_add_u32 v{V_RA}, s{T+2}, v{V_RA}')
    k(f'v_lshlrev_b32 v{V_OO}, 4, v{T1}')
    k(f'v_and_b32 v{T1}, 3, v{T0}'); k(f'v_lshl_add_u32 v{V_OO}, v{T1}, 15, v{V_OO}')
    k(f'v_lshrrev_b32 v{T1}, 3, v{T0}'); k(f'v_lshl_add_u32 v{V_OO}, v{T1}, 11, v{V_OO}')
    k(f'v_bfe_u32 v{T1}, v{T0}, 2, 1'); k(f'v_lshl_add_u32 v{V_OO}, v{T1}, 10, v{V_OO}')
    k(f's_lshl_b32 s{T+2}, s{S_G2}, 1'); k(f's_add_u32 s{T+2}, s{T+2}, s{T}'); k(f's_lshl_b32 s{T+2}, s{T+2}, 13')
    k(f's_lshl_b32 s{T+3}, s{S_RB2}, 17'); k(f's_add_u32 s{T+2}, s{T+2}, s{T+3}')
    k(f's_lshl_b32 s{T+3}, s{S_CB2}, 7'); k(f's_add_u32 s{T+2}, s{T+2}, s{T+3}')
    k(f'v_add_u32 v{V_OO}, s{T+2}, v{V_OO}')
    k(GMARK)
    k(f'v_and_b32 v{T0}, 31, v{L}'); k(f's_lshl_b32 s{T}, s{S_CB2}, 6'); k(f'v_add_u32 v{T0}, s{T}, v{T0}')
    k(f'v_cvt_f32_u32 v{G_D}, v{T0}'); k(f'v_add_u32 v{T0}, 32, v{T0}'); k(f'v_cvt_f32_u32 v{G_D+1}, v{T0}')
    k(f'v_lshrrev_b32 v{T1}, 5, v{L}'); k(f'v_lshlrev_b32 v{T1}, 2, v{T1}'); k(f's_lshl_b32 s{T}, s{S_WV}, 6'); k(f's_add_u32 s{T}, s{T}, 1')
    k(f'v_add_u32 v{T1}, s{T}, v{T1}'); k(f'v_cvt_f32_u32 v{T1}, v{T1}')
    for ct in range(2):
        k(f'v_mul_f32 v{G_D+ct}, 0x3b000000, v{G_D+ct}')
        k(f'v_mul_f32 v{G_D+2+ct}, 0x40a00000, v{G_D+ct}')
        k(f'v_mul_f32 v{G_PH+ct}, v{T1}, v{G_D+ct}')
    parts = {'early': [], 'now': [], 'late': []}; cur = 'early'
    for x in o:
        if x.startswith('#'): cur = x[1:]
        else: parts[cur].append(x)
    return parts['early'], parts['now'], parts['late']
def g_gen_items():
    o = []
    for c in range(8):
        for j in range(4):
            for ct in range(2):
                t = G_T + 2*ct
                o.append(f'v_cos_f32 v{t}, v{G_PH+ct}'); o.append(f'v_sin_f32 v{t+1}, v{G_PH+ct}')
            for ct in range(2):
                if not (c == 7 and j == 3):
                    o.append(f'v_add_f32 v{G_PH+ct}, v{G_PH+ct}, v{G_D + (2 if j == 3 else 0) + ct}')
            for ct in range(2):
                t = G_T + 2*ct
                o.append(f'v_cvt_pk_bf16_f32 v{G_G + 8*c + 4*ct + j}, v{t}, -v{t+1}')
    return o
def h_chunks(n):
    d = A_H + 8*(n % NH)
    return [('grp', [f's_add_u32 s{S_HOF}, s{S_HBLK + (n >> 2)}, {(n & 3)*1024}', ('vm', f'buffer_load_dwordx4 a[{d}:{d+3}], v{V_L16}, s[{S_WS}:{S_WS+3}], s{S_HOF} offen sc1', ('h', n))]),
            ('grp', [('vm', f'buffer_load_dwordx4 a[{d+4}:{d+7}], v{V_L16H}, s[{S_WS}:{S_WS+3}], s{S_HOF} offen sc1', ('h', n))])]
def v_chunks(n):
    c = n - 28; a = slot_addr(n)
    return [('grp', [f's_add_u32 m0, s{S_LB}, {a}', f's_add_u32 s{S_PA}, s{S_VB}, {8*c*CSTR}',
                     ('vm', f'buffer_load_dwordx4 v{V_DV}, s[{S_WS}:{S_WS+3}], s{S_PA} offen sc1 lds', ('w', n))]),
            ('grp', [('vm', f'buffer_load_dwordx4 v{V_DV1}, s[{S_WS}:{S_WS+3}], s{S_PA} offen offset:1024 sc1 lds', ('w', n))])]
class VQ:
    def __init__(self, sc): self.sc = sc; self.items = []; self.half = None
    def add(self, deadline, chunks): self.items.append((deadline, list(chunks))); self.items.sort(key=lambda x: x[0])
    def pending(self): return len(self.items) + (1 if self.half else 0)
    def one(self, limit=10**9):
        if self.half:
            self.sc.emit(self.half.pop(0))
            if not self.half: self.half = None
            return True
        if self.items and self.items[0][0] <= limit:
            d, ch = self.items.pop(0)
            self.sc.emit(ch.pop(0))
            if ch: self.half = ch
            return True
        return False
    def settle(self):
        while self.half: self.one()
    def force(self, deadline):
        self.settle()
        while self.items and self.items[0][0] <= deadline:
            self.one(); self.settle()
class Pacer2:
    def __init__(self, k, vq, period): self.k = k; self.vq = vq; self.every = period; self.c = 0
    @staticmethod
    def cyc(s):
        op = s.split()[0]
        if op.startswith('v_mfma'): return 16 if '16x16' in op else 32
        if op.startswith(('v_exp', 'v_rcp', 'v_sin', 'v_cos', 'v_sqrt')): return 8
        if op == 's_nop': return 4*(int(s.split()[1]) + 1)
        return 4
    def __call__(self, s): self.k(s); self.tick(self.cyc(s))
    def tick(self, n=4):
        self.c += n
        if self.c >= self.every:
            if self.vq.one(): self.c -= self.every
            else: self.c = 0
def tail(k, st, ts):
    L = V_L
    vm = VM(k); lg = LG(k); sc = Sched2(k, vm, lg); vq = VQ(sc)
    vm.q = ['pre']; vm.ever.add('pre')
    NF, NS = 28, 36
    T0, T1 = V_G0, V_G1
    def wait_w(n):
        if n < 5: vm.wait('pre')
        else:
            vq.force(n - 1 if n < 28 else 28 + (n - 28)//2 - 1)
            assert ('w', n) in vm.ever, n
            vm.wait(('w', n))
    def wait_h(n):
        vq.force(n)
        assert ('h', n) in vm.ever, n
        vm.wait(('h', n))
    stamp = lambda nm: st.stamp(nm) if st else None
    stamp('mfma_done')
    hf_off = lambda p: [f's_lshl_b32 s{S_F0}, s{S_RB}, 7', f's_lshl_b32 s{S_F1}, s{S_CB}, 2', f's_add_u32 s{S_F0}, s{S_F0}, s{S_F1}', f's_add_u32 s{S_F0}, s{S_F0}, {WS_HF + 64*p}']
    hp = lambda p: [f's_lshl_b32 s{S_B}, s{S_RB2}, 7', f's_add_u32 s{S_B}, s{S_B}, {WS_HF + 64*p}', f'v_lshlrev_b32 v{V_GP}, 2, v{L}',
                    f'v_min_u32 v{V_GP}, {44 if p == 0 else 60}, v{V_GP}',
                    f'buffer_load_dword v{V_G_HP}, v{V_GP}, s[{S_WS}:{S_WS+3}], s{S_B} offen sc1']
    if PACKED:
        for e in range(2):
            for j in range(2): k(f'v_mov_b32 v{V_C1P+2*e+j}, v{V_C1+e}'); k(f'v_mov_b32 v{V_C2P+2*e+j}, v{V_C2+e}')
    units = [ffn_unit(1, t, e, PACKED) for t in range(2) for e in range(2)]
    P = Pacer2(k, vq, PERIOD)
    def run_unit(u):
        for x in u:
            if isinstance(x, str): P(x)
            else: sc.emit(x); P.c = max(0, P.c - PERIOD)
    pl = p2a_poll_lines()
    for x in pl[:-2]: k(x)
    vm.issue(pl[-2], 'pp'); vm.issue(pl[-1], 'pp')
    ga_early, ga_now, ga_late = g2_addr_items()
    for x in ga_early: k(x)
    for x in rot_items('h'): sc.emit(x)
    for n in range(5, RING): vq.add(n - 1, w2_dma_chunks(n))
    run_unit(units[0]); run_unit(units[1])
    if 'galate' not in OPT:
        for x in ga_late:
            if x != GMARK: P(x)
        ga_late = []
    vq.settle()
    vm.wait('pp'); tag_check(k, 'p2a', [V_YR0, V_YR1], pl)
    stamp('uf_ok')
    k(f's_mul_i32 s{T}, s2, {CSTR}'); k(f's_lshl_b32 s{T+1}, s{S_WV}, 11'); k(f's_add_u32 s{T+2}, s{T}, s{T+1}')
    k(f's_add_u32 m0, s{T+1}, {L_U}'); k(f's_add_u32 s{T+3}, s{T+2}, {WS_U}')
    for e in range(2):
        vm.issue(f'buffer_load_dwordx4 v{V_L16}, s[{S_WS}:{S_WS+3}], s{T+3} offen offset:{e*1024} sc1 lds', 'u')
    P(f'v_and_b32 v{V_P0}, 15, v{L}'); k(f'v_lshrrev_b32 v{V_P1}, 4, v{L}')
    k(f'v_lshlrev_b32 v{V_VA}, 7, v{V_P0}'); k(f'v_lshl_add_u32 v{V_VA}, v{V_P1}, 4, v{V_VA}')
    k(f's_mul_i32 s{T+2}, s2, {WSTR}'); k(f's_add_u32 s{T+2}, s{T+2}, s{T+1}'); k(f's_add_u32 s{T+3}, s{T+2}, {WS_WT}')
    vq.settle()
    for mt in range(2):
        vm.issue(f'buffer_load_dwordx4 v[{WT_+4*mt}:{WT_+4*mt+3}], v{V_VA}, s[{S_WS}:{S_WS+3}], s{T+3} offen offset:{mt*64} sc1', 'wt')
    k(f'v_lshlrev_b32 v{V_VA}, 9, v{V_P1}'); k(f'v_lshl_add_u32 v{V_VA}, v{V_P0}, 4, v{V_VA}')
    k(f'v_add_u32 v{V_UA}, {L_U}, v{V_VA}')
    for x in hp(0)[:-1]: k(x)
    vm.issue(hp(0)[-1], 'hp0')
    P.c = 0
    run_unit(units[2]); run_unit(units[3])
    stamp('p1_end')
    if 'galate' not in OPT:
        for x in ga_now: P(x)
        ga_now = []
    vq.settle()
    vm.wait('hp0'); tag_check(k, 'hf0', [V_G_HP], hp(0))
    stamp('hf0_ok')
    for n in range(12): vq.add(n, h_chunks(n))
    for x in ga_now: P(x)
    def vstep(n):
        m = n - NF; return m >> 2, 2*(m & 3)
    def wdeps(n):
        if n < NF: return [n]
        e, c = vstep(n); return [NF + c, NF + c + 1]
    def reads(n):
        b = G_TR + 8*(n & 1); o = []
        if n < NF:
            a = slot_addr(n)
            for t in range(2):
                for part in range(2): o.append(((V_TW0, V_TW1)[t], a + part*8*128, b + 4*t + 2*part))
        else:
            e, c = vstep(n)
            for t in range(2):
                a = slot_addr(NF + c + t)
                for part in range(2): o.append(((V_TV0, V_TV1)[e], a + part*2*256, b + 4*t + 2*part))
        return o
    def emit_read(n, r):
        va, off, b = r
        lg.issue(f'ds_read_b64_tr_b16 v[{b}:{b+1}], v{va + (0, V_HI, V_HI2)[off >> 16]} offset:{off & 0xffff}', ('tr', n))
    gq = []; redq = []
    def step(n, prefetch_next=True, rate=None):
        rate = GRATE
        rd = []
        if prefetch_next and n + 1 < NS:
            for m_ in wdeps(n + 1): wait_w(m_)
            rd = reads(n + 1)
        if n < NF: wait_h(n)
        elif 'gtab' in OPT and n < NF + 4:
            e_, c_0 = vstep(n)
            for c_ in (c_0, c_0 + 1):
                assert ('g', c_) in vm.ever
                vm.wait(('g', c_))
        lg.wait(('tr', n))
        b = G_TR + 8*(n & 1)
        gap = 0
        for i0_ in range(2):
            for ct in range(2):
                if n < NF:
                    e = i0_
                    a_ = f'v[{G_ACC+16*(2*e+ct)}:{G_ACC+16*(2*e+ct)+15}]'; c_ = '0' if n == 0 else a_
                    d = A_H + 8*(n % NH)
                    k(f'v_mfma_f32_32x32x16_bf16 {a_}, v[{b+4*ct}:{b+4*ct+3}], a[{d+4*e}:{d+4*e+3}], {c_}')
                else:
                    e, c = vstep(n)
                    a_ = f'v[{G_ACC+16*(2*e+ct)}:{G_ACC+16*(2*e+ct)+15}]'
                    g = G_G + 8*(c + i0_) + 4*ct
                    k(f'v_mfma_f32_32x32x16_bf16 {a_}, v[{g}:{g+3}], v[{b+4*i0_}:{b+4*i0_+3}], {a_}')
                    if redq and n >= 33: lg.issue(redq.pop(0), 'red0')
                for _ in range(2):
                    if rd: emit_read(n + 1, rd.pop(0))
                if vq.half or gap < rate or True:
                    lim = n + URG if gap >= rate else 10**9
                    vq.one(lim)
                for _ in range(GPACE + (1 if gap < GP1 else 0)):
                    if gq: k(gq.pop(0))
                gap += 1
    vq.settle()
    vm.wait('wt'); k('s_barrier')
    stamp('u_ok')
    for ks in range(4):
        for mt in range(2):
            r = UFR + 4*(mt*4+ks)
            lg.issue(f'ds_read_b128 v[{r}:{r+3}], v{V_UA} offset:{ks*2048 + mt*256}', ('uf', ks))
    P = Pacer2(k, vq, PERIOD)
    kk = P
    D, Tt, B = D_, T_, B_
    kk(f'v_and_b32 v{V_P0}, 15, v{L}'); kk(f'v_lshlrev_b32 v{V_YW0}, 6, v{V_P0}')
    kk(f'v_bfe_u32 v{V_P0}, v{L}, 2, 1'); kk(f'v_lshl_add_u32 v{V_YW0}, v{V_P0}, 5, v{V_YW0}')
    kk(f'v_lshrrev_b32 v{V_P0}, 4, v{L}'); kk(f'v_lshl_add_u32 v{V_YW0}, v{V_P0}, 3, v{V_YW0}')
    k(f's_lshl_b32 s{T}, s{S_WV}, 10'); k(f's_add_u32 s{T}, s{T}, {L_Y}'); kk(f'v_add_u32 v{V_YW0}, s{T}, v{V_YW0}')
    kk(f'v_xor_b32 v{V_YW1}, 32, v{V_YW0}')
    kk(f'v_lshrrev_b32 v{V_P0}, 2, v{L}'); kk(f'v_lshlrev_b32 v{V_YR0}, 6, v{V_P0}')
    kk(f'v_bfe_u32 v{V_P0}, v{L}, 4, 1'); kk(f'v_lshl_add_u32 v{V_YR0}, v{V_P0}, 5, v{V_YR0}')
    kk(f'v_and_b32 v{V_P0}, 3, v{L}'); kk(f'v_lshl_add_u32 v{V_YR0}, v{V_P0}, 3, v{V_YR0}')
    kk(f'v_add_u32 v{V_YR0}, {L_Y}, v{V_YR0}'); kk(f'v_xor_b32 v{V_YR1}, 32, v{V_YR0}')
    for ks in range(4):
        lg.wait(('uf', ks))
        for mt in range(2):
            for var in range(2):
                d = D + 4*(mt*2+var)
                kk(mf16(d, UFR + 4*(mt*4+ks), A_E64 + 4*(ks*2+var), None if ks == 0 else d, 'v', 'a'))
    k.nop(6)
    pr = lambda r: f'v[{r}:{r+1}]'
    def cmul(R, I, c, s_, oR, oI, conj):
        kk(f'v_pk_mul_f32 {pr(oR)}, {pr(R)}, {pr(c)}'); kk(f'v_pk_mul_f32 {pr(oI)}, {pr(I)}, {pr(c)}')
        n = ' neg_lo:[1,0,0] neg_hi:[1,0,0]'
        kk(f'v_pk_fma_f32 {pr(oR)}, {pr(I)}, {pr(s_)}, {pr(oR)}' + ('' if conj else n))
        kk(f'v_pk_fma_f32 {pr(oI)}, {pr(R)}, {pr(s_)}, {pr(oI)}' + (n if conj else ''))
    def twiddle(sign):
        for mt in range(2):
            for r in (0, 2):
                cmul(D + 8*mt + r, D + 8*mt + 4 + r, TW + 8*mt + r, TW + 8*mt + 4 + r, Tt + 8*mt + r, Tt + 8*mt + 4 + r, sign > 0)
    def pack():
        for mt in range(2):
            for part in range(2):
                kk(f'v_cvt_pk_bf16_f32 v{B+4*part+2*mt}, v{Tt+8*mt+4*part}, v{Tt+8*mt+4*part+1}')
                kk(f'v_cvt_pk_bf16_f32 v{B+4*part+2*mt+1}, v{Tt+8*mt+4*part+2}, v{Tt+8*mt+4*part+3}')
    twiddle(+1); pack(); k.nop(2)
    Br, Bi = B, B + 4
    C32 = lambda mt: A_E32 + 12*mt; S32 = lambda mt: A_E32 + 12*mt + 4; N32 = lambda mt: A_E32 + 12*mt + 8
    for mt in range(2):
        kk(mf16(D + 8*mt, C32(mt), Br, None, 'a')); kk(mf16(D + 8*mt + 4, C32(mt), Bi, None, 'a'))
    for mt in range(2):
        kk(mf16(D + 8*mt, S32(mt), Bi, D + 8*mt, 'a')); kk(mf16(D + 8*mt + 4, N32(mt), Br, D + 8*mt + 4, 'a'))
    if 'h1early' in OPT:
        vq.settle(); vm.wait('hst1'); k('s_barrier')
        flag_store_now(k, hf_off(1), 'L_fl_h1')
        stamp('hflag')
    for mt in range(2):
        for r in range(4):
            kk(f'v_lshlrev_b32 v{WU+4*mt+r}, 16, v{WT_+4*mt+r}'); kk(f'v_and_b32 v{WU+8+4*mt+r}, 0xffff0000, v{WT_+4*mt+r}')
    for mt in range(2):
        for r in (0, 2):
            cmul(D + 8*mt + r, D + 8*mt + 4 + r, WU + 4*mt + r, WU + 8 + 4*mt + r, Tt + 8*mt + r, Tt + 8*mt + 4 + r, False)
    pack(); k.nop(2)
    for mt in range(2):
        kk(mf16(D + 8*mt, C32(mt), Br, None, 'a')); kk(mf16(D + 8*mt + 4, C32(mt), Bi, None, 'a'))
    for mt in range(2):
        kk(mf16(D + 8*mt, N32(mt), Bi, D + 8*mt, 'a')); kk(mf16(D + 8*mt + 4, S32(mt), Br, D + 8*mt + 4, 'a'))
    k.nop(8)
    twiddle(-1); pack()
    for mt in range(2):
        va = V_YW0 if mt == 0 else V_YW1
        lg.issue(f'ds_write_b64 v{va}, v[{B+4+2*mt}:{B+4+2*mt+1}]'); lg.issue(f'ds_write_b64 v{va}, v[{B+2*mt}:{B+2*mt+1}] offset:4096')
    if 'h1early' in OPT:
        lg.drain(); k('s_barrier')
    else:
        vm.wait('hst1'); lg.drain(); k('s_barrier')
        flag_store_now(k, hf_off(1), 'L_fl_h1')
        stamp('hflag')
    FB = UFR
    for nt in range(2):
        va = V_YR0 if nt == 0 else V_YR1
        for ks in range(4):
            r = FB + 4*(nt*4+ks)
            lg.issue(f'ds_read_b64_tr_b16 v[{r}:{r+1}], v{va} offset:{ks*1024}'); P.tick(8)
            lg.issue(f'ds_read_b64_tr_b16 v[{r+2}:{r+3}], v{va} offset:{4096 + ks*1024}', ('yb', nt)); P.tick(8)
    k(f's_mov_b32 s{S_VS}, 0x36000000'); k('s_cmp_eq_u32 s2, 255'); k(f's_cselect_b32 s{S_VS}, 0x35800000, s{S_VS}')
    k(f's_mul_i32 s{T}, s2, {CSTR}'); k(f's_lshl_b32 s{T+1}, s{S_WV}, 11'); k(f's_add_u32 s{T}, s{T}, s{T+1}'); k(f's_add_u32 s{T+4}, s{T}, {WS_V}')
    k(f'v_mov_b32 v{WU}, s{S_VS}'); k(f'v_mov_b32 v{WU+1}, s{S_VS}')
    for nt in range(2):
        lg.wait(('yb', nt))
        for ks in range(4):
            f = FB + 4*(nt*4+ks)
            kk(mf16(D + 8*nt + 4, A_E64 + 4*(ks*2+0), f, None if ks == 0 else D + 8*nt + 4, 'a'))
            kk(mf16(D + 8*nt, A_E64 + 4*(ks*2+1), f, None if ks == 0 else D + 8*nt, 'a'))
    wait_w(0)
    for r in reads(0): emit_read(0, r)
    k.nop(4)
    for nt in range(2):
        for i in range(0, 8, 2): kk(f'v_pk_mul_f32 {pr(D+8*nt+i)}, {pr(D+8*nt+i)}, {pr(WU)}')
        o = B + 4*nt
        kk(f'v_cvt_pk_bf16_f32 v{o}, v{D+8*nt}, v{D+8*nt+1}'); kk(f'v_cvt_pk_bf16_f32 v{o+1}, v{D+8*nt+2}, v{D+8*nt+3}')
        kk(f'v_cvt_pk_bf16_f32 v{o+2}, v{D+8*nt+4}, v{D+8*nt+5}'); kk(f'v_cvt_pk_bf16_f32 v{o+3}, v{D+8*nt+6}, v{D+8*nt+7}')
        if VST_AT < 0: vm.issue(f'buffer_store_dwordx4 v[{o}:{o+3}], v{V_VA}, s[{S_WS}:{S_WS+3}], s{T+4} offen offset:{nt*256} sc1', 'vst')
    if VST_AT >= 0: k(f's_mov_b32 s{S_VS}, s{T+4}')
    stamp('p2a_end')
    if 'gtab' in OPT:
        gq += [x for x in ga_late[:ga_late.index(GMARK)]] + [f's_lshl_b32 s{S_GB}, s{S_CB2}, 16', f's_lshl_b32 s{T}, s{S_WV}, 14', f's_add_u32 s{S_GB}, s{S_GB}, s{T}', f's_add_u32 s{S_GB}, s{S_GB}, {TAB_G}']
        gsetup = gq[-4:]; gq[-4:] = []
        for x in gsetup: k(x)
        for c in range(8):
            vq.add(GDL + c, [('grp', [f's_add_u32 s{S_PC}, s{S_GB}, {c*2048}', ('vm', f'buffer_load_dwordx4 v[{G_G+8*c}:{G_G+8*c+3}], v{V_L16}, s[{S_TAB}:{S_TAB+3}], s{S_PC} offen', ('g', c))]),
                             ('grp', [('vm', f'buffer_load_dwordx4 v[{G_G+8*c+4}:{G_G+8*c+7}], v{V_L16}, s[{S_TAB}:{S_TAB+3}], s{S_PC} offen offset:1024', ('g', c))])])
    else:
        gq += [x for x in ga_late if x != GMARK] + g_gen_items()
    vp = [f's_lshl_b32 s{S_B}, s{S_WV}, 8', f's_add_u32 s{S_B}, s{S_B}, {WS_VF}', f'v_lshlrev_b32 v{V_GP}, 2, v{L}',
          f'buffer_load_dword v{T1}, v{V_GP}, s[{S_WS}:{S_WS+3}], s{S_B} offen sc1']
    hn = 12; h1ok = False; vready = []
    for n in range(NS):
        if n == HP1_AT:
            vq.settle()
            for x in hp(1)[:-1]: k(x)
            vm.issue(hp(1)[-1], 'hp1')
        if n == VFL_AT:
            vq.settle(); vm.wait('vst'); k('s_barrier')
            flag_store_now(k, [f's_lshl_b32 s{S_F0}, s2, 2', f's_add_u32 s{S_F0}, s{S_F0}, {WS_VF}'], 'L_fl_v')
            stamp('vflag')
        if n == H1CHK:
            vq.settle(); vm.wait('hp1'); tag_check(k, 'hf1', [V_G_HP], hp(1)); h1ok = True
            stamp('hf1_ok')
            while hn < NF and hn < n + NH: vq.add(hn, h_chunks(hn)); hn += 1
        if n == VST_AT:
            vq.settle()
            for nt in range(2):
                vm.issue(f'buffer_store_dwordx4 v[{B+4*nt}:{B+4*nt+3}], v{V_VA}, s[{S_WS}:{S_WS+3}], s{S_VS} offen offset:{nt*256} sc1', 'vst')
        if n == VP_AT:
            vq.settle()
            for x in vp[:-1]: k(x)
            vm.issue(vp[-1], 'vp')
        if n == VCHK:
            vq.settle(); vm.wait('vp'); tag_check(k, 'vf', [T1], vp)
            stamp('vf_ok')
        if n == NF:
            k('s_barrier')
            k(f's_mul_i32 s{T}, s{S_WV}, {RED_W}'); k(f'v_lshl_add_u32 v{V_RW}, v{L}, 4, s{T}')
            for ct in range(2):
                for q in range(4):
                    r = G_ACC + 16*ct + 4*q
                    redq.append(f'ds_write_b128 v{V_RW}, v[{r}:{r+3}] offset:{(ct*4+q)*RED_STRIDE}')
        if n == 30: vq.add(NS, [('grp', [('vm', f'buffer_load_dwordx4 v[{G_X+4*j}:{G_X+4*j+3}], v{V_OO}, s[{S_X}:{S_X+3}], 0 offen offset:{j*2048}', 'x') for j in range(2)])])
        step(n)
        m = n + RING - 1
        if n >= 1 and m < NF: vq.add(m - 1, w2_dma_chunks(m))
        if n >= 1 and NF <= m < NS: vready.append(m)
        if n >= VCHK:
            while vready: mm = vready.pop(0); vq.add(NF + (mm - NF)//2 - 1, v_chunks(mm))
        if h1ok and hn < NF and hn < n + 1 + NH: vq.add(hn, h_chunks(hn)); hn += 1
        if st and n in ((5, 7, 9, 11, 13, 15, 17, 19, 21, 23, 25, 27, 31) if 'g2ts' in OPT else (11, 27)): stamp(f'g{n}')
    assert not gq and not vq.pending() and hn == NF, (len(gq), vq.pending(), hn)
    stamp('kdone')
    assert not redq
    k('s_barrier')
    k.nop(11)
    for ct in range(2):
        for q in range(4):
            r = G_ACC + 32 + 16*ct + 4*q
            k(f'ds_write_b128 v{V_RW}, v[{r}:{r+3}] offset:{(8+ct*4+q)*RED_STRIDE}')
    k('s_waitcnt lgkmcnt(0)'); k('s_barrier')
    stamp('redw')
    for j in range(2):
        for w in range(4):
            r = G_ACC + 32*j + 8*w
            k(f'ds_read_b128 v[{r}:{r+3}], v{V_RA} offset:{w*RED_W + j*128}')
            k(f'ds_read_b128 v[{r+4}:{r+7}], v{V_RA} offset:{w*RED_W + j*128 + 512}')
    vm.wait('x')
    pr2 = lambda r: f'v[{r}:{r+1}]'
    XU = G_TR
    for j in range(2):
        for i in range(4):
            x = G_X + 4*j + i
            k(f'v_lshlrev_b32 v{XU+8*j+2*i}, 16, v{x}'); k(f'v_and_b32 v{XU+8*j+2*i+1}, 0xffff0000, v{x}')
    for j in range(2):
        S = G_ACC + 32*j
        for w in range(1, 4):
            k(f's_waitcnt lgkmcnt({min(15, 8*(1-j) + 2*(3-w))})')
            for i in range(0, 8, 2): k(f'v_pk_add_f32 {pr2(S+i)}, {pr2(S+i)}, {pr2(S+8*w+i)}')
        for i in range(0, 8, 2): k(f'v_pk_add_f32 {pr2(S+i)}, {pr2(S+i)}, {pr2(XU+8*j+i)}')
        for i in range(4): k(f'v_cvt_pk_bf16_f32 v{G_X+4*j+i}, v{S+2*i}, v{S+2*i+1}')
        vm.issue(f'buffer_store_dwordx4 v[{G_X+4*j}:{G_X+4*j+3}], v{V_OO}, s[{S_OUT}:{S_OUT+3}], 0 offen offset:{j*2048}' + (' sc1' if 'outsc1' in OPT else ''), 'o')
V_RW = 19
V_G_HP = 41
V_HI, V_HI2 = 30, 34
PERIOD, GPACE, URG, GP1, GRATE = 64, 2, 10, 2, 2
VFL_AT, H1CHK, VP_AT, VCHK, HP1_AT, VST_AT = 6, 6, 17, 20, 2, -1
def merge_waits(lines):
    import re
    out = []
    for l in lines:
        t = l.strip()
        if t.startswith('s_waitcnt') and out and out[-1].strip().startswith('s_waitcnt'):
            c = {}
            for x in (out[-1], t):
                for nm, v in re.findall(r'(vmcnt|lgkmcnt)\((\d+)\)', x): c[nm] = min(int(v), c.get(nm, 99))
            out[-1] = '    s_waitcnt ' + ' '.join(f'{nm}({c[nm]})' for nm in ('vmcnt', 'lgkmcnt') if nm in c)
        else: out.append(l)
    return out
def build(ts=False):
    global slow_paths
    slow_paths.clear(); slow_id[0] = 0
    k = K()
    st = Stamps(k, ts, 0, vts=V_TS)
    k('s_cmp_ge_u32 s2, 256'); k('s_cbranch_scc1 L_end')
    st.stamp('start')
    if 'shuf' in OPT:
        k('s_and_b32 s3, s2, 7'); k('s_lshl_b32 s3, s3, 3'); k('s_bfe_u32 s4, s2, 0x30003'); k('s_or_b32 s3, s3, s4'); k('s_and_b32 s2, s2, 0xc0'); k('s_or_b32 s2, s2, s3')
    prologue(k, st)
    k(f's_cmp_ge_u32 s{S_CB}, 12'); k('s_cbranch_scc1 L_typeB')
    n0, nm0 = st.n, list(st.names)
    sta = st if ts else None
    p1_body(k, False, sta)
    k('s_branch L_common')
    st.n, st.names = n0, list(nm0)
    k.label('L_typeB')
    p1_body(k, True, sta)
    k.label('L_common')
    tail(k, sta, ts)
    k('s_cmp_lg_u32 s2, 0'); k('s_cbranch_scc1 L_noep')
    flag_store_now(k, [f's_mov_b32 s{S_F0}, {WS_EPOCH}'], 'L_fl_e')
    k.label('L_noep')
    if 'dbgts' in OPT:
        k('s_waitcnt vmcnt(0)'); k('s_memrealtime s[64:65]'); k('s_waitcnt lgkmcnt(0)')
        k('s_not_b32 s101, s101'); k('v_mov_b32 v2, s101'); k('v_mov_b32 v3, s64'); k('v_mov_b32 v4, 48'); k('v_mov_b32 v5, 52')
        k(f'v_cndmask_b32 v4, v4, v4, vcc')
        k('s_mov_b64 exec, 1')
        k(f'buffer_atomic_umax v2, v4, s[{S_DBG}:{S_DBG+3}], 0 offen sc1'); k(f'buffer_atomic_umax v3, v5, s[{S_DBG}:{S_DBG+3}], 0 offen sc1')
        k('s_mov_b64 exec, -1')
    st.flush(2, 3)
    k.label('L_end'); k('s_endpgm')
    for sp in slow_paths: k.l += sp.l
    k.label('L_codeend'); k('s_endpgm')
    if 'nomerge' not in OPT: k.l = merge_waits(k.l)
    probs = check(k.l, 'fused')
    if probs: print('\n'.join(probs[:10])); raise SystemExit('hazards')
    hdr = f"""; out = x + irfft2(rfft2(LN(x)) * W) + (silu(LN(x) w1) * (LN(x) w3)) w2      S=2048 D=512 F=1792, bf16 in/out, fp32 accumulate
;  P1   128 rows x 8 tiles of 32 columns per workgroup (x fragments resident in AGPRs, weights streamed by LDS-DMA).
;       LayerNorm is applied algebraically: raw x enters the MFMAs, -mean*colsum(w) is one extra K step, 1/std is folded
;  G2   64 x 64 output tile: h w2 + V G (inverse DFT along D, G generated with v_sin/v_cos), K split over the waves, + x.
; Hand-offs through d_ws: write-through (sc1) stores, s_waitcnt, barrier, flag word; row statistics and column-sum partials are
; 8-byte value+tag granules.  Flags and tags carry a per-launch value derived from a word of d_ws, so stale words of an earlier
; @launch grid=(256,1,1) block=(256,1,1) lds={LDS_TOTAL}
.amdgcn_target "amdgcn-amd-amdhsa--gfx950"
"""
    out = hdr + kernel_header(NAME) + k.text() + kernel_desc(NAME, 512, sgpr=102, accum=256) + tables_asm()
    if ts: out += '; TSNAMES 0 ' + ' '.join(st.names) + '\n'
    return out
if __name__ == '__main__':
    dst = sys.argv[1]
    OPT.update(a for a in sys.argv[2:])
    for a in sys.argv[2:]:
        if '=' in a:
            nm_, v_ = a.split('='); assert nm_ in globals(), nm_; globals()[nm_] = int(v_)
    if 'ts2' in OPT: Stamps.only = ('start', 'end')
    if 'g2ts' in OPT: Stamps.only = ['start', 'p2a_end', 'vflag', 'hf1_ok', 'vf_ok', 'kdone', 'end'] + [f'g{i}' for i in range(40)]
    if 'p0ts' in OPT: Stamps.only = ['start', 'karg', 'iss0', 'setup', 'side', 'st0', 'mfma_done', 'end'] + [f'n{i}' for i in range(64)]
    s = build(ts='ts' in sys.argv or 'ts2' in sys.argv)
    open(dst, 'w').write(s)
    print(len(s), 'bytes ->', dst)
```
